```python
import torch

def _softmax(x, axis=-1):
    return torch.softmax(x, dim=axis)
def _gelu(x):
    return torch.nn.functional.gelu(x, approximate="tanh")
def _silu(x):
    return torch.nn.functional.silu(x)
def _sigmoid(x):
    return torch.sigmoid(x)
def _layernorm(x, axis=-1, eps=1e-5):
    m = x.mean(dim=axis, keepdim=True)
    v = x.var(dim=axis, keepdim=True, unbiased=False)
    return (x - m) / torch.sqrt(v + eps)
def _scatter_add(tgt, idx, src, axis=0):
    return tgt.clone().index_add_(axis, idx, src)
def _segment_sum(src, seg, n):
    out = torch.zeros((n,) + src.shape[1:], dtype=src.dtype)
    return out.index_add_(0, seg, src)
def _pad(x, pw):
    flat = tuple(v for pair in reversed(pw) for v in pair)
    return torch.nn.functional.pad(x, flat)

kernel_name = 'standalone__edge_featured_mpnn_egc__graph'

def setup_inputs():

    _w = (lambda a: (lambda t: t.to(torch.bfloat16) if t.is_floating_point() else t)(torch.as_tensor(a)))
    N, deg, D, De = 50000, 16, 64, max(16, 1)
    E = N * deg
    return {
        "x": _w((lambda *s: torch.randn(*s, dtype=torch.bfloat16) * 0.2)(N, D)),
        "e_attr": _w((lambda *s: torch.randn(*s, dtype=torch.bfloat16) * 0.2)(E, De)),
        "src": _w((lambda lo, hi, *s: torch.randint(lo, hi, s))(0, N, E).to(torch.int64)),
        "dst": _w((lambda lo, hi, *s: torch.randint(lo, hi, s))(0, N, E).to(torch.int64)),
        "u_w": _w((lambda *s: torch.randn(*s, dtype=torch.bfloat16) * 0.05)(D, D)),
        "v_w": _w((lambda *s: torch.randn(*s, dtype=torch.bfloat16) * 0.05)(D, D)),
        "g_w": _w((lambda *s: torch.randn(*s, dtype=torch.bfloat16) * 0.2)(2 * D + De, D)),
    }

def reference(x, e_attr, src, dst, u_w, v_w, g_w):
    N, D = x.shape
    g_in = torch.concatenate([x[dst], x[src], e_attr], axis=-1)
    eta = _sigmoid(g_in @ g_w)
    hv = x @ v_w
    msg = eta * hv[src]
    agg = _segment_sum(msg, dst, N)
    return _silu(x @ u_w + agg)
```

```python
import sys, struct

class Opt:
    FOLD = False
    NT_E = True
    NT_IDX = True

for a in sys.argv[1:]:
    if '=' in a:
        k, v = a.split('=')
        setattr(Opt, k, type(getattr(Opt, k))(int(v)))

N = 50000; E = 800000
NB = 250
CH = 3200
NCH = 250
TN = 25
WS_REC = 0
WS_TAB = 0x700000
WS_WF = 0x780000
WS_SIZE = 0x10000000
NLOG2E = 0xbfb8aa3b

out = []
def emit(s): out.append("    " + s)
def label(s): out.append(s + ":")
def comment(s): out.append("    ; " + s)

def srd(base, ptr, size):
    emit(f"s_mov_b32 s{base}, s{ptr}")
    emit(f"s_and_b32 s{base+1}, s{ptr+1}, 0xffff")
    emit(f"s_mov_b32 s{base+2}, {size:#x}")
    emit(f"s_mov_b32 s{base+3}, 0x20000")

def vr(b, n): return f"v[{b}:{b+n-1}]"

K1_HIST = 0; K1_START = 1024; K1_SORT = 2048
K1_LDS = 2048 + CH * 8

def gen_k1():
    nt = " nt" if Opt.NT_IDX else ""
    out.append(".p2align 8")
    out.append(".globl part_kernel")
    out.append(".type part_kernel,@function")
    label("part_kernel")
    emit("s_cmp_ge_u32 s2, 267")
    emit("s_cbranch_scc1 K1_end")
    emit("s_cmp_ge_u32 s2, 250")
    emit("s_cbranch_scc1 K1_wprep")
    emit("s_load_dwordx4 s[4:7], s[0:1], 16")
    emit("s_load_dwordx2 s[8:9], s[0:1], 72")
    emit("v_lshlrev_b32 v1, 4, v0")
    emit("s_mul_i32 s3, s2, 12800")
    emit("v_lshlrev_b32 v2, 2, v0")
    emit("v_mov_b32 v3, 0")
    emit("v_cmp_gt_u32 vcc, 0x100, v0")
    emit("s_and_saveexec_b64 s[10:11], vcc")
    emit(f"ds_write_b32 v2, v3 offset:{K1_HIST}")
    emit("s_mov_b64 exec, s[10:11]")
    emit("v_readfirstlane_b32 s25, v0")
    emit("s_waitcnt lgkmcnt(0)")
    srd(12, 4, E * 4)
    srd(16, 6, E * 4)
    srd(20, 8, WS_SIZE)
    emit(f"buffer_load_dwordx4 v[4:7], v1, s[16:19], s3 offen{nt}")
    emit(f"buffer_load_dwordx4 v[8:11], v1, s[12:15], s3 offen{nt}")
    emit("s_mov_b32 s24, 83887")
    emit("s_mul_i32 s26, s2, 102400")
    emit("v_lshlrev_b32 v28, 7, v0")
    emit("v_add_u32 v28, s26, v28")
    emit("v_mov_b32 v29, 1")
    emit("s_movk_i32 s27, 96")
    emit("s_barrier")
    emit("s_waitcnt vmcnt(1)")
    for j in range(4):
        emit(f"v_mul_u32_u24 v{12+j}, s24, v{4+j}")
    for j in range(4):
        emit(f"v_lshrrev_b32 v{12+j}, 21, v{12+j}")
    for j in range(4):
        emit(f"v_lshrrev_b32 v{16+j}, 3, v{12+j}")
    for j in range(4):
        emit(f"v_lshlrev_b32 v{16+j}, 2, v{16+j}")
    for j in range(4):
        emit(f"ds_add_rtn_u32 v{20+j}, v{16+j}, v29 offset:{K1_HIST}")
    for j in range(4):
        emit(f"v_mul_u32_u24 v{24+j}, 25, v{12+j}")
    for j in range(4):
        emit(f"v_sub_u32 v{24+j}, v{4+j}, v{24+j}")
    for j in range(4):
        c = ["0", "32", "64", "s27"][j]
        emit(f"v_add3_u32 v{33+2*j}, v28, v{24+j}, {c}")
    for j in range(4):
        emit(f"v_lshlrev_b32 v{12+j}, 29, v{12+j}")
    emit("s_waitcnt vmcnt(0)")
    for j in range(4):
        emit(f"v_lshl_or_b32 v{32+2*j}, v{8+j}, 7, v{12+j}")
    emit("s_waitcnt lgkmcnt(0)")
    emit("s_barrier")
    emit("s_cmp_lg_u32 s25, 0")
    emit("s_cbranch_scc1 K1_noscan")
    emit(f"ds_read_b128 v[40:43], v1 offset:{K1_HIST}")
    emit("s_and_b32 s28, s2, 31")
    emit("s_lshl_b32 s28, s28, 3")
    emit("s_lshr_b32 s29, s2, 5")
    emit("s_add_u32 s28, s28, s29")
    emit("s_lshl_b32 s28, s28, 2")
    emit(f"s_add_u32 s28, s28, {WS_TAB:#x}")
    emit("v_lshlrev_b32 v52, 12, v0")
    emit("s_waitcnt lgkmcnt(0)")
    emit("v_add_u32 v44, v40, v41")
    emit("v_add_u32 v45, v44, v42")
    emit("v_add_u32 v46, v45, v43")
    emit("v_mov_b32 v47, v46")
    for sh in (1, 2, 4, 8):
        emit("s_nop 1")
        emit(f"v_add_u32_dpp v47, v47, v47 row_shr:{sh} row_mask:0xf bank_mask:0xf")
    emit("s_nop 1")
    emit("v_add_u32_dpp v47, v47, v47 row_bcast:15 row_mask:0xa bank_mask:0xf")
    emit("s_nop 1")
    emit("v_add_u32_dpp v47, v47, v47 row_bcast:31 row_mask:0xc bank_mask:0xf")
    emit("v_sub_u32 v48, v47, v46")
    emit("v_add_u32 v49, v48, v40")
    emit("v_add_u32 v50, v48, v44")
    emit("v_add_u32 v51, v48, v45")
    emit(f"ds_write_b128 v1, v[48:51] offset:{K1_START}")
    for j in range(4):
        emit(f"v_lshl_or_b32 v{56+j}, v{40+j}, 16, v{48+j}")
    for j in range(4):
        emit(f"buffer_store_dword v{56+j}, v52, s[20:23], s28 offen offset:{j*1024}")
    emit("s_waitcnt lgkmcnt(0)")
    label("K1_noscan")
    emit("s_barrier")
    for j in range(4):
        emit(f"ds_read_b32 v{24+j}, v{16+j} offset:{K1_START}")
    emit("s_waitcnt lgkmcnt(0)")
    for j in range(4):
        emit(f"v_add_lshl_u32 v{24+j}, v{24+j}, v{20+j}, 3")
    for j in range(4):
        emit(f"ds_write_b64 v{24+j}, v[{32+2*j}:{33+2*j}] offset:{K1_SORT}")
    emit("s_mul_i32 s26, s2, 25600")
    emit("s_add_u32 s27, s26, 12800")
    emit("s_waitcnt lgkmcnt(0)")
    emit("s_barrier")
    emit(f"ds_read_b128 v[4:7], v1 offset:{K1_SORT}")
    emit(f"ds_read_b128 v[8:11], v1 offset:{K1_SORT+12800}")
    emit("s_waitcnt lgkmcnt(1)")
    emit("buffer_store_dwordx4 v[4:7], v1, s[20:23], s26 offen")
    emit("s_waitcnt lgkmcnt(0)")
    emit("buffer_store_dwordx4 v[8:11], v1, s[20:23], s27 offen")
    emit("s_endpgm")
    label("K1_wprep")
    emit("v_readfirstlane_b32 s25, v0")
    emit("s_nop 3")
    emit("s_cmp_lg_u32 s25, 0")
    emit("s_cbranch_scc1 K1_end")
    emit("s_load_dwordx4 s[4:7], s[0:1], 32")
    emit("s_load_dwordx2 s[8:9], s[0:1], 48")
    emit("s_load_dwordx2 s[10:11], s[0:1], 72")
    emit("s_sub_u32 s3, s2, 250")
    emit("v_and_b32 v1, 31, v0")
    emit("v_lshlrev_b32 v1, 2, v1")
    emit("v_lshrrev_b32 v2, 5, v0")
    emit("v_lshl_add_u32 v1, v2, 10, v1")
    emit("v_lshlrev_b32 v2, 4, v0")
    emit("s_waitcnt lgkmcnt(0)")
    emit("s_cmp_lt_u32 s3, 13")
    emit("s_cselect_b32 s12, s6, s4")
    emit("s_cselect_b32 s13, s7, s5")
    emit("s_cselect_b32 s26, 9, 13")
    emit("s_cmp_lt_u32 s3, 9")
    emit("s_cselect_b32 s12, s8, s12")
    emit("s_cselect_b32 s13, s9, s13")
    emit("s_cselect_b32 s26, 0, s26")
    emit("s_movk_i32 s27, 0x2000")
    emit("s_cselect_b32 s14, 0x4800, s27")
    emit("s_and_b32 s13, s13, 0xffff")
    emit("s_mov_b32 s15, 0x20000")
    srd(20, 10, WS_SIZE)
    emit("s_sub_u32 s26, s3, s26")
    emit("s_lshl_b32 s26, s26, 11")
    for q in range(8):
        emit(f"buffer_load_dword v{4+q}, v1, s[12:15], s26 offen offset:{q*128}")
    emit("s_mov_b32 s28, 1.0")
    if Opt.FOLD:
        emit("s_sub_u32 s29, s3, 4")
        emit("s_cmp_lt_u32 s29, 5")
        emit(f"s_cselect_b32 s28, {NLOG2E:#x}, s28")
    emit("s_lshl_b32 s27, s3, 11")
    emit(f"s_add_u32 s27, s27, {WS_WF:#x}")
    emit("s_waitcnt vmcnt(0)")
    if Opt.FOLD:
        for q in range(8):
            emit(f"v_lshlrev_b32 v{12+q}, 16, v{4+q}")
            emit(f"v_and_b32 v{20+q}, 0xffff0000, v{4+q}")
        for q in range(16):
            emit(f"v_mul_f32 v{12+q}, s28, v{12+q}")
        for j in range(4):
            emit(f"v_cvt_pk_bf16_f32 v{28+j}, v{12+2*j}, v{13+2*j}")
            emit(f"v_cvt_pk_bf16_f32 v{32+j}, v{20+2*j}, v{21+2*j}")
    else:
        emit("s_mov_b32 s28, 0x05040100")
        emit("s_mov_b32 s29, 0x07060302")
        for j in range(4):
            emit(f"v_perm_b32 v{28+j}, v{5+2*j}, v{4+2*j}, s28")
            emit(f"v_perm_b32 v{32+j}, v{5+2*j}, v{4+2*j}, s29")
    emit("buffer_store_dwordx4 v[28:31], v2, s[20:23], s27 offen")
    emit("buffer_store_dwordx4 v[32:35], v2, s[20:23], s27 offen offset:1024")
    label("K1_end")
    emit("s_endpgm")

STG = 0; STG_W = 10240; BUF = 5120
SM = 81920; SM_W = 2560
AOT = 102400
CNT = 104960
L0 = 105024
CAP = 576; CAPT = 704
LST = CAPT * 4
L1 = L0 + 8 * LST
K2_LDS = L1 + 8 * LST
L1OFF = (L1 - L0) // 256
assert (L1 - L0) % 256 == 0

class R: pass
_next = [1]
def alloc(n, align=1):
    b = _next[0]
    b = (b + align - 1) // align * align
    _next[0] = b + n
    return b
R.lane16 = alloc(1); R.dmab = alloc(1); R.rde = alloc(1)
R.rd = alloc(4)
R.l0a = alloc(1); R.l1a = alloc(1); R.h16 = alloc(1); R.aoc = alloc(1); R.sc = alloc(1); R.sr = alloc(1)
R.one = alloc(1); R.zero = alloc(1)
R.w1d = alloc(1); R.w1n = alloc(1); R.aoa = alloc(1); R.sa = alloc(1); R.t0 = alloc(1); R.t1 = alloc(1)
R.w0 = alloc(4, 4)
R.WB = alloc(32, 4); R.WC = alloc(8, 4); R.WV = alloc(32, 4); R.P = alloc(16, 4)
R.AGG = alloc(32, 4)
R.Z = [alloc(16, 4), 0]; R.H = [alloc(16, 4), 0]
R.Z[1] = alloc(16, 4); R.H[1] = alloc(16, 4)
R.AX = alloc(16, 4); R.AE = alloc(4, 4); R.AO = alloc(8, 4); R.AS = alloc(8, 4)
K2_VGPR = _next[0]
assert K2_VGPR <= 256, K2_VGPR

SX = 8; SE = 12; SO = 16; SW = 20
S_B = 3; S_WAVE = 4; S_NG = 5; S_G = 6; S_MODE = 7
S_STG = 24
S_MSKE = 25; S_80 = 26; S_N = 27; S_IT = 28; S_P = 29; S_TOT = 30; S_T0 = 31
S_MASK = 32
S_T1 = 64; S_T2 = 65; S_C = 66; S_TABO = 67; S_NODE0 = 68; S_T3 = 69
K2_SGPR = 72

def WB(s, t): return vr(R.WB + (s * 2 + t) * 4, 4)
def WV(s, t): return vr(R.WV + (s * 2 + t) * 4, 4)
def WC(t): return vr(R.WC + t * 4, 4)
def PP(s, t): return vr(R.P + (s * 2 + t) * 4, 4)
def AX(s): return vr(R.AX + s * 4, 4)
def AO(s): return vr(R.AO + s * 4, 4)
def AS(s): return vr(R.AS + s * 4, 4)
AE = vr(R.AE, 4)
def AGG(t): return vr(R.AGG + t * 16, 16)
def Zr(t): return vr(R.Z[t], 16)
def Hr(t): return vr(R.H[t], 16)
def mfma(d, a, b, c): return f"v_mfma_f32_32x32x16_bf16 {d}, {a}, {b}, {c}"

def zh_mfmas(t):
    z, h = Zr(t), Hr(t)
    m = [mfma(z, AO(0), PP(0, t), "0"), mfma(z, AO(1), PP(1, t), z), mfma(z, AE, WC(t), z)]
    for s in range(4):
        m.append(mfma(z, AX(s), WB(s, t), z))
        m.append(mfma(h, AX(s), WV(s, t), "0" if s == 0 else h))
    return m

def agg_mfmas(t):
    return [mfma(AGG(t), AS(0), vr(R.Z[t], 4), AGG(t)), mfma(AGG(t), AS(1), vr(R.Z[t] + 8, 4), AGG(t))]

def sig_stream(t):
    z, h = R.Z[t], R.H[t]
    st = []
    for m in range(4):
        rs = [4 * m + i for i in range(4)]
        if not Opt.FOLD:
            for r in rs: st.append((f"v_mul_f32 v{z+r}, s{S_C}, v{z+r}", 4))
        for r in rs: st.append((f"v_exp_f32 v{z+r}, v{z+r}", 8))
        for r in rs: st.append((f"v_add_f32 v{z+r}, 1.0, v{z+r}", 4))
        for r in rs: st.append((f"v_rcp_f32 v{z+r}, v{z+r}", 8))
        for r in rs: st.append((f"v_mul_f32 v{z+r}, v{z+r}, v{h+r}", 4))
        d = 8 * (m // 2) + 2 * (m % 2)
        st.append((f"v_cvt_pk_bf16_f32 v{z+d}, v{z+4*m}, v{z+4*m+1}", 4))
        st.append((f"v_cvt_pk_bf16_f32 v{z+d+1}, v{z+4*m+2}, v{z+4*m+3}", 4))
    return st

def dma_issue(bufoff, w0, w1):
    nte = " nt" if Opt.NT_E else ""
    seq = []
    seq.append(f"s_add_u32 m0, s{S_STG}, {bufoff}")
    for t in range(4):
        seq.append(f"v_xad_u32 v{w0+t}, v{R.dmab}, {16*t}, v{w0+t}")
        seq.append(f"buffer_load_dwordx4 v{w0+t}, s[{SX}:{SX+3}], 0 offen lds")
        seq.append(f"s_add_u32 m0, m0, 0x400")
    seq.append(f"v_and_or_b32 v{w1}, v{w1}, s{S_MSKE}, v{R.h16}")
    seq.append(f"buffer_load_dwordx4 v{w1}, s[{SE}:{SE+3}], 0 offen{nte} lds")
    return seq

def nl_addr():
    return [f"v_and_b32 v{R.w1n}, 31, v{R.w1n}",
            f"v_mad_u32_u24 v{R.aoa}, v{R.w1n}, s{S_80}, v{R.aoc}",
            f"v_mad_u32_u24 v{R.sa}, v{R.w1n}, s{S_80}, v{R.sc}"]

def interleave(valu, mfmas, after, pre=None, spacing=None):
    pre = pre or {}
    total = sum(c for _, c in valu)
    n = len(mfmas)
    spacing = spacing or (total - 48) / (n - 1)
    k = 0; cum = 0
    for ins, c in valu:
        while k < n and cum >= k * spacing - 1e-9:
            for x in pre.get(k, []): emit(x)
            emit(mfmas[k])
            for x in after.get(k, []): emit(x)
            k += 1
        emit(ins); cum += c
    assert k == n, (k, n)

def group_body(par, lo):
    nb = BUF * (1 - par)
    m = agg_mfmas(1) + zh_mfmas(1)
    after = {
        0: [f"ds_read_b32 v{R.w1n}, v{R.l1a} offset:{lo+128}"],
        1: [f"ds_write_b16 v{R.sa}, v{R.one}",
            f"ds_read_b128 {AS(0)}, v{R.sr}",
            f"ds_read_b128 {AS(1)}, v{R.sr} offset:32",
            f"ds_write_b16 v{R.sa}, v{R.zero}"],
        3: ["s_waitcnt lgkmcnt(4)"] + nl_addr() +
           [f"ds_read_b128 {AO(0)}, v{R.aoa}", f"ds_read_b128 {AO(1)}, v{R.aoa} offset:32"],
        4: ["s_waitcnt vmcnt(5)", f"ds_read_b128 {AE}, v{R.rde} offset:{nb}"],
        6: [f"ds_read_b128 {AX(0)}, v{R.rd} offset:{nb}"],
        8: [f"ds_read_b128 {AX(1)}, v{R.rd+1} offset:{nb}"],
        10: [f"ds_read_b128 {AX(2)}, v{R.rd+2} offset:{nb}",
             f"ds_read_b128 {vr(R.w0,4)}, v{R.l0a} offset:{lo+384}",
             f"ds_read_b32 v{R.w1d}, v{R.l1a} offset:{lo+384}"],
        12: [f"ds_read_b128 {AX(3)}, v{R.rd+3} offset:{nb}"],
    }
    interleave(sig_stream(0), m, after)
    m = agg_mfmas(0) + zh_mfmas(0)
    d = dma_issue(nb, R.w0, R.w1d)
    pre = {0: ["s_waitcnt lgkmcnt(1)"]}
    after = {
        1: ["s_waitcnt lgkmcnt(0)"] + d[0:4],
        2: d[4:7],
        3: d[7:10],
        4: d[10:13],
        5: d[13:15],
    }
    interleave(sig_stream(1), m, after, pre)

def gen_k2():
    out.append(".p2align 8")
    out.append(".globl cons_kernel")
    out.append(".type cons_kernel,@function")
    label("cons_kernel")
    emit("s_cmp_ge_u32 s2, 256")
    emit("s_cbranch_scc1 K2_end")
    emit("s_and_b32 s3, s2, 7")
    emit("s_lshl_b32 s3, s3, 5")
    emit("s_lshr_b32 s4, s2, 3")
    emit(f"s_add_u32 s{S_B}, s3, s4")
    emit(f"s_cmp_ge_u32 s{S_B}, {NB}")
    emit("s_cbranch_scc1 K2_end")
    emit("s_load_dwordx4 s[32:35], s[0:1], 0")
    emit("s_load_dwordx2 s[36:37], s[0:1], 56")
    emit("s_load_dwordx2 s[38:39], s[0:1], 72")
    t0, t1 = R.t0, R.t1
    emit(f"v_lshrrev_b32 v{t0}, 6, v0")
    emit(f"v_and_b32 v{t1}, 63, v0")
    emit(f"v_readfirstlane_b32 s{S_WAVE}, v{t0}")
    emit(f"v_lshlrev_b32 v{R.lane16}, 4, v{t1}")
    emit(f"v_lshrrev_b32 v{t0}, 4, v0")
    emit(f"v_lshlrev_b32 v{R.w0}, 5, v{t0}")
    emit(f"s_lshl_b32 s{S_TABO}, s{S_B}, 10")
    emit(f"s_add_u32 s{S_TABO}, s{S_TABO}, {WS_TAB:#x}")
    emit("s_waitcnt lgkmcnt(0)")
    srd(SW, 38, WS_SIZE)
    emit(f"buffer_load_dwordx4 {AO(0)}, v{R.w0}, s[{SW}:{SW+3}], s{S_TABO} offen")
    emit(f"buffer_load_dwordx4 {AO(1)}, v{R.w0}, s[{SW}:{SW+3}], s{S_TABO} offen offset:16")
    srd(SX, 32, N * 128)
    srd(SE, 34, E * 32)
    srd(SO, 36, N * 128)
    emit(f"s_lshl_b32 s{S_T0}, s{S_WAVE}, 10")
    emit(f"s_add_u32 s{S_T1}, s{S_T0}, {WS_WF:#x}")
    emit(f"s_mov_b32 m0, s{S_T0}")
    for k in range(5):
        emit("s_nop 0")
        emit(f"buffer_load_dwordx4 v{R.lane16}, s[{SW}:{SW+3}], s{S_T1} offen lds")
        if k < 4:
            emit(f"s_add_u32 m0, m0, 0x2000")
            emit(f"s_add_u32 s{S_T1}, s{S_T1}, 0x2000")
    i, h = R.w1n, R.w1d
    emit(f"v_and_b32 v{i}, 31, v{t1}")
    emit(f"v_lshrrev_b32 v{h}, 5, v{t1}")
    emit(f"v_lshlrev_b32 v{R.h16}, 4, v{h}")
    emit(f"s_mul_i32 s{S_NODE0}, s{S_B}, 200")
    emit(f"s_mul_i32 s{S_T0}, s{S_WAVE}, {TN}")
    emit(f"s_add_u32 s{S_NODE0}, s{S_NODE0}, s{S_T0}")
    emit(f"s_lshl_b32 s{S_NODE0}, s{S_NODE0}, 7")
    emit(f"v_lshl_add_u32 v{t0}, v{i}, 7, v{R.h16}")
    for s in range(4):
        emit(f"buffer_load_dwordx4 {AX(s)}, v{t0}, s[{SX}:{SX+3}], s{S_NODE0} offen offset:{32*s}")
    emit(f"s_mul_i32 s{S_STG}, s{S_WAVE}, {STG_W}")
    emit(f"s_mov_b32 s{S_MSKE}, 0xffffffe0")
    emit(f"s_movk_i32 s{S_80}, 80")
    emit(f"s_mov_b32 s{S_C}, {NLOG2E:#x}")
    emit(f"s_mov_b32 s{S_MODE}, 0")
    emit(f"v_mov_b32 v{R.one}, 0x3f80")
    emit(f"v_mov_b32 v{R.zero}, 0")
    emit(f"v_and_b32 v{t0}, 7, v{t1}")
    emit(f"v_lshlrev_b32 v{R.dmab}, 2, v{h}")
    emit(f"v_xor_b32 v{R.dmab}, v{R.dmab}, v{t0}")
    emit(f"v_lshlrev_b32 v{R.dmab}, 4, v{R.dmab}")
    emit(f"v_add_u32 v{R.rde}, s{S_STG}, v{R.lane16}")
    emit(f"v_add_u32 v{R.rde}, 0x1000, v{R.rde}")
    a, b = R.aoa, R.sa
    emit(f"v_and_b32 v{a}, 3, v{i}")
    emit(f"v_lshrrev_b32 v{b}, 4, v{i}")
    emit(f"v_lshl_add_u32 v{b}, v{b}, 2, v{a}")
    emit(f"v_xor_b32 v{b}, v{b}, v{h}")
    emit(f"v_lshlrev_b32 v{b}, 4, v{b}")
    emit(f"v_lshlrev_b32 v{a}, 10, v{a}")
    emit(f"v_lshrrev_b32 v{t0}, 2, v{i}")
    emit(f"v_lshl_add_u32 v{a}, v{t0}, 7, v{a}")
    emit(f"v_add_u32 v{a}, s{S_STG}, v{a}")
    emit(f"s_movk_i32 s{S_T0}, 96")
    for s in range(4):
        c = ["0", "32", "64", f"s{S_T0}"][s]
        emit(f"v_xad_u32 v{R.rd+s}, v{b}, {c}, v{a}")
    emit(f"v_and_b32 v{t0}, 19, v{i}")
    emit(f"v_and_b32 v{a}, 4, v{i}")
    emit(f"v_lshl_or_b32 v{t0}, v{a}, 1, v{t0}")
    emit(f"v_and_b32 v{a}, 8, v{i}")
    emit(f"v_lshrrev_b32 v{a}, 1, v{a}")
    emit(f"v_or_b32 v{t0}, v{t0}, v{a}")
    emit(f"v_lshlrev_b32 v{t0}, 1, v{t0}")
    emit(f"s_mul_i32 s{S_T0}, s{S_WAVE}, {SM_W}")
    emit(f"s_add_u32 s{S_T0}, s{S_T0}, {SM}")
    emit(f"v_add_u32 v{R.sc}, s{S_T0}, v{t0}")
    emit(f"v_mad_u32_u24 v{a}, v{i}, s{S_80}, v{R.h16}")
    emit(f"v_add_u32 v{R.sr}, s{S_T0}, v{a}")
    emit(f"v_add_u32 v{R.aoc}, {AOT}, v{R.h16}")
    emit(f"v_mov_b32 v{R.w0+2}, 0")
    emit(f"v_mov_b32 v{R.w0+3}, 0")
    emit(f"v_lshlrev_b32 v{b}, 3, v{t1}")
    emit(f"v_add_u32 v{a}, s{S_T0}, v{b}")
    for k in range(5):
        emit(f"ds_write_b64 v{a}, v[{R.w0+2}:{R.w0+3}] offset:{512*k}")
    emit(f"s_cmp_lg_u32 s{S_WAVE}, 0")
    emit("s_cbranch_scc1 K2_noinit")
    emit(f"v_add_u32 v{a}, {AOT}, v{b}")
    for k in range(5):
        emit(f"ds_write_b64 v{a}, v[{R.w0+2}:{R.w0+3}] offset:{512*k}")
    emit(f"v_mad_u32_u24 v{a}, v{i}, s{S_80}, v{t0}")
    emit(f"v_add_u32 v{a}, {AOT}, v{a}")
    emit(f"ds_write_b16 v{a}, v{R.one}")
    cnt_init(t1)
    label("K2_noinit")
    emit(f"s_mul_i32 s{S_T0}, s{S_WAVE}, {LST}")
    emit(f"s_add_u32 s{S_T0}, s{S_T0}, {L0}")
    emit(f"v_lshrrev_b32 v{a}, 3, v{t1}")
    emit(f"v_lshlrev_b32 v{a}, 4, v{a}")
    emit(f"v_add_u32 v{R.l0a}, s{S_T0}, v{a}")
    emit(f"v_lshlrev_b32 v{a}, 2, v{i}")
    emit(f"v_add_u32 v{a}, s{S_T0}, v{a}")
    emit(f"v_add_u32 v{R.l1a}, {L1-L0}, v{a}")
    emit(f"v_lshrrev_b32 v{a}, 4, v0")
    emit(f"v_and_b32 v{b}, 15, v0")
    emit(f"v_mul_u32_u24 v{t0}, {CH}, v{a}")
    emit(f"v_add_u32 v{t0}, v{t0}, v{b}")
    emit(f"v_cmp_gt_u32 vcc, {NCH-7*32}, v{a}")
    emit("s_nop 0")
    emit("s_waitcnt vmcnt(9)")
    emit(f"v_cndmask_b32 v{R.AO+7}, 0, v{R.AO+7}, vcc")
    for it in range(8):
        emit(f"v_lshrrev_b32 v{R.AS+it}, 16, v{R.AO+it}")
        emit(f"v_sub_u32 v{R.AS+it}, v{R.AS+it}, v{b}")
        emit(f"v_and_b32 v{R.AO+it}, 0xffff, v{R.AO+it}")
        emit(f"v_add_u32 v{R.AO+it}, {it*32*CH}, v{R.AO+it}")
        emit(f"v_add_lshl_u32 v{R.AO+it}, v{R.AO+it}, v{t0}, 3")
    emit(f"v_mov_b32 v{R.w0}, 0x7ffffff0")
    REC = R.Z[1]
    assert R.H[1] == R.Z[1] + 16
    def rec_loads():
        for k in range(16):
            it, p = k % 8, k // 8
            emit(f"v_cmp_lt_i32 s[{S_MASK+2*k}:{S_MASK+2*k+1}], {16*p}, v{R.AS+it}")
        for k in range(16):
            it, p = k % 8, k // 8
            tmp = R.w0 + 1 + (k % 3)
            emit(f"v_cndmask_b32 v{tmp}, v{R.w0}, v{R.AO+it}, s[{S_MASK+2*k}:{S_MASK+2*k+1}]")
            emit(f"buffer_load_dwordx2 v[{REC+2*k}:{REC+2*k+1}], v{tmp}, s[{SW}:{SW+3}], 0 offen offset:{128*p}")
    rec_loads()
    emit("s_waitcnt vmcnt(16) lgkmcnt(0)")
    emit("s_barrier")
    for f in range(8):
        emit(f"ds_read_b128 {vr(R.WV+4*f,4)}, v{R.lane16} offset:{f*1024}")
    for f in range(8):
        emit(f"ds_read_b128 {vr(R.WB+4*f,4)}, v{R.lane16} offset:{(26+f)*1024}")
    emit("s_waitcnt lgkmcnt(8)")
    PA = [Zr(0), Hr(0)]
    for s in range(4):
        for t in range(2):
            emit(mfma(PA[t], AX(s), WV(s, t), "0" if s == 0 else PA[t]))
    emit("s_waitcnt lgkmcnt(0)")
    for s in range(4):
        for t in range(2):
            emit(mfma(AGG(t), AX(s), WB(s, t), "0" if s == 0 else AGG(t)))
    for f in range(8):
        emit(f"ds_read_b128 {vr(R.WV+4*f,4)}, v{R.lane16} offset:{(18+f)*1024}")
    for f in range(2):
        emit(f"ds_read_b128 {vr(R.WC+4*f,4)}, v{R.lane16} offset:{(16+f)*1024}")
    emit("s_nop 3")
    pa = [R.Z[0], R.H[0]]
    if Opt.FOLD:
        for t in range(2):
            for r in range(16):
                emit(f"v_mul_f32 v{pa[t]+r}, s{S_C}, v{pa[t]+r}")
    for t in range(2):
        for s in range(2):
            for j in range(4):
                emit(f"v_cvt_pk_bf16_f32 v{R.P+(s*2+t)*4+j}, v{pa[t]+8*s+2*j}, v{pa[t]+8*s+2*j+1}")
    emit("s_waitcnt lgkmcnt(0)")
    for f in range(8):
        emit(f"ds_read_b128 {vr(R.WB+4*f,4)}, v{R.lane16} offset:{(8+f)*1024}")
    RK = R.Z[0]; TA = R.H[0]
    emit(f"v_mov_b32 v{R.t0}, 4")
    emit(f"s_mov_b32 s{S_T3}, {L1-4}")
    label("K2_collect")
    emit("s_waitcnt vmcnt(0)")
    for k in range(16):
        emit(f"v_lshrrev_b32 v{TA+k}, 27, v{REC+2*k}")
    for k in range(16):
        emit(f"v_add_u32 v{TA+k}, {CNT}, v{TA+k}")
    for k in range(16):
        emit(f"s_mov_b64 exec, s[{S_MASK+2*k}:{S_MASK+2*k+1}]")
        emit(f"ds_add_rtn_u32 v{RK+k}, v{TA+k}, v{R.t0}")
    emit("s_mov_b64 exec, -1")
    for k in range(16):
        emit(f"v_and_b32 v{REC+2*k}, 0x7fffff, v{REC+2*k}")
    emit("s_waitcnt lgkmcnt(0)")
    for k in range(16):
        emit(f"v_min_u32 v{RK+k}, s{S_T3}, v{RK+k}")
    for k in range(16):
        emit(f"s_mov_b64 exec, s[{S_MASK+2*k}:{S_MASK+2*k+1}]")
        emit(f"ds_write2st64_b32 v{RK+k}, v{REC+2*k}, v{REC+2*k+1} offset0:0 offset1:{L1OFF}")
    emit("s_mov_b64 exec, -1")
    for it in range(8):
        emit(f"v_subrev_u32 v{R.AS+it}, 32, v{R.AS+it}")
        emit(f"v_add_u32 v{R.AO+it}, 0x100, v{R.AO+it}")
    emit(f"v_max3_i32 v{R.t1}, v{R.AS}, v{R.AS+1}, v{R.AS+2}")
    emit(f"v_max3_i32 v{R.t1}, v{R.t1}, v{R.AS+3}, v{R.AS+4}")
    emit(f"v_max3_i32 v{R.t1}, v{R.t1}, v{R.AS+5}, v{R.AS+6}")
    emit(f"v_max_i32 v{R.t1}, v{R.t1}, v{R.AS+7}")
    emit(f"v_cmp_lt_i32 vcc, 0, v{R.t1}")
    emit("s_cbranch_vccz K2_collected")
    emit("s_waitcnt lgkmcnt(0)")
    rec_loads()
    emit("s_branch K2_collect")
    label("K2_collected")
    emit("s_waitcnt lgkmcnt(0)")
    emit("s_barrier")
    label("K2_counts")
    emit(f"v_and_b32 v{R.t0}, 7, v0")
    emit(f"v_lshlrev_b32 v{R.t1}, 2, v{R.t0}")
    emit(f"v_add_u32 v{R.t1}, {CNT}, v{R.t1}")
    emit(f"ds_read_b32 v{R.t1}, v{R.t1}")
    emit(f"v_mul_u32_u24 v{R.t0}, {LST}, v{R.t0}")
    emit(f"v_add_u32 v{R.t0}, {L0}, v{R.t0}")
    emit("s_waitcnt lgkmcnt(0)")
    emit(f"v_sub_u32 v{R.t1}, v{R.t1}, v{R.t0}")
    emit(f"v_lshrrev_b32 v{R.t1}, 2, v{R.t1}")
    emit(f"v_cmp_lt_u32 vcc, {CAP}, v{R.t1}")
    emit(f"v_cmp_ne_u32 s[{S_MASK}:{S_MASK+1}], 0, v{R.t1}")
    emit(f"v_readlane_b32 s{S_N}, v{R.t1}, s{S_WAVE}")
    emit("s_nop 3")
    emit(f"s_or_b32 s{S_TOT}, s{S_MASK}, s{S_MASK+1}")
    emit("s_cbranch_vccnz K2_slow_init")
    label("K2_main")
    emit(f"s_add_u32 s{S_NG}, s{S_N}, 31")
    emit(f"s_lshr_b32 s{S_NG}, s{S_NG}, 5")
    emit(f"s_cmp_eq_u32 s{S_NG}, 0")
    emit("s_cbranch_scc1 K2_main_done")
    emit(f"s_mul_i32 s{S_T0}, s{S_WAVE}, {LST}")
    emit(f"s_lshl_b32 s{S_T1}, s{S_N}, 2")
    emit(f"s_add_u32 s{S_T0}, s{S_T0}, s{S_T1}")
    emit(f"s_add_u32 s{S_T0}, s{S_T0}, {L0}")
    emit(f"v_lshrrev_b32 v{R.t0}, 2, v{R.lane16}")
    emit(f"v_add_u32 v{R.t0}, s{S_T0}, v{R.t0}")
    emit(f"v_mov_b32 v{R.w0}, 0x7fffff80")
    emit(f"v_mov_b32 v{R.w0+1}, {0x7fffffe0 | TN:#x}")
    emit(f"ds_write2st64_b32 v{R.t0}, v{R.w0}, v{R.w0+1} offset0:0 offset1:{L1OFF}")
    emit(f"ds_write2st64_b32 v{R.t0}, v{R.w0}, v{R.w0+1} offset0:1 offset1:{L1OFF+1}")
    emit(f"ds_read_b128 {AX(0)}, v{R.l0a}")
    emit(f"ds_read_b32 v{R.AX+8}, v{R.l1a}")
    emit(f"ds_read_b128 {AX(1)}, v{R.l0a} offset:128")
    emit(f"ds_read_b32 v{R.AX+9}, v{R.l1a} offset:128")
    emit(f"ds_read_b128 {vr(R.w0,4)}, v{R.l0a} offset:256")
    emit(f"ds_read_b32 v{R.w1d}, v{R.l1a} offset:256")
    emit("s_waitcnt lgkmcnt(4)")
    emit(f"v_mov_b32 v{R.w1n}, v{R.AX+8}")
    for x in dma_issue(0, R.AX, R.AX + 8): emit(x)
    emit("s_waitcnt lgkmcnt(2)")
    for x in dma_issue(BUF, R.AX + 4, R.AX + 9): emit(x)
    for x in nl_addr(): emit(x)
    emit(f"ds_read_b128 {AO(0)}, v{R.aoa}")
    emit(f"ds_read_b128 {AO(1)}, v{R.aoa} offset:32")
    for r in range(8):
        emit(f"v_mov_b32 v{R.AS+r}, 0")
    for r in (0, 1, 2, 3, 8, 9, 10, 11):
        emit(f"v_mov_b32 v{R.Z[1]+r}, 0")
    emit(f"s_mov_b32 s{S_G}, 0")
    emit("s_waitcnt vmcnt(5)")
    emit(f"ds_read_b128 {AE}, v{R.rde}")
    for s in range(4):
        emit(f"ds_read_b128 {AX(s)}, v{R.rd+s}")
    emit("s_waitcnt lgkmcnt(0)")
    for x in dma_issue(0, R.w0, R.w1d): emit(x)
    for x in zh_mfmas(0): emit(x)
    emit("s_nop 7")
    emit("s_nop 3")
    label("K2_loop")
    group_body(0, 0)
    emit(f"s_add_u32 s{S_G}, s{S_G}, 1")
    emit(f"s_cmp_ge_u32 s{S_G}, s{S_NG}")
    emit("s_cbranch_scc1 K2_loop_exit")
    group_body(1, 128)
    emit(f"v_add_u32 v{R.l0a}, 0x100, v{R.l0a}")
    emit(f"v_add_u32 v{R.l1a}, 0x100, v{R.l1a}")
    emit(f"s_add_u32 s{S_G}, s{S_G}, 1")
    emit(f"s_cmp_lt_u32 s{S_G}, s{S_NG}")
    emit("s_cbranch_scc1 K2_loop")
    label("K2_loop_exit")
    emit("s_nop 1")
    for x in agg_mfmas(1): emit(x)
    emit(f"s_lshr_b32 s{S_T0}, s{S_G}, 1")
    emit(f"s_lshl_b32 s{S_T0}, s{S_T0}, 8")
    emit(f"v_subrev_u32 v{R.l0a}, s{S_T0}, v{R.l0a}")
    emit(f"v_subrev_u32 v{R.l1a}, s{S_T0}, v{R.l1a}")
    label("K2_main_done")
    emit(f"s_cmp_lg_u32 s{S_MODE}, 0")
    emit("s_cbranch_scc1 K2_slow_next")
    label("K2_epi")
    emit("s_nop 7")
    emit("s_nop 7")
    emit(f"v_and_b32 v{R.t0}, 31, v0")
    emit(f"v_lshlrev_b32 v{R.t0}, 2, v{R.t0}")
    emit(f"v_lshl_add_u32 v{R.t0}, v{R.h16}, 5, v{R.t0}")
    z = R.Z[0]
    regs = [(t, r) for r in range(13) for t in range(2)]
    def tmp(t, r): return z + 2 * r + t
    assert R.H[0] == R.Z[0] + 16
    for (t, r) in regs: emit(f"v_mul_f32 v{tmp(t,r)}, s{S_C}, v{R.AGG+16*t+r}")
    for (t, r) in regs: emit(f"v_exp_f32 v{tmp(t,r)}, v{tmp(t,r)}")
    for (t, r) in regs: emit(f"v_add_f32 v{tmp(t,r)}, 1.0, v{tmp(t,r)}")
    for (t, r) in regs: emit(f"v_rcp_f32 v{tmp(t,r)}, v{tmp(t,r)}")
    for (t, r) in regs: emit(f"v_mul_f32 v{tmp(t,r)}, v{tmp(t,r)}, v{R.AGG+16*t+r}")
    for r in range(13):
        emit(f"v_cvt_pk_bf16_f32 v{R.Z[1]+r}, v{tmp(0,r)}, v{tmp(1,r)}")
    for r in range(12):
        row = (r // 4) * 8 + r % 4
        emit(f"buffer_store_dword v{R.Z[1]+r}, v{R.t0}, s[{SO}:{SO+3}], s{S_NODE0} offen offset:{row*128}")
    emit("s_mov_b64 exec, 0xffffffff")
    emit(f"buffer_store_dword v{R.Z[1]+12}, v{R.t0}, s[{SO}:{SO+3}], s{S_NODE0} offen offset:{24*128}")
    label("K2_end")
    emit("s_endpgm")
    label("K2_slow_init")
    emit(f"s_mov_b32 s{S_MODE}, 1")
    emit(f"s_mov_b32 s{S_IT}, 0")
    emit(f"s_mov_b32 s{S_P}, 0")
    emit("s_branch K2_slow_batch")
    label("K2_slow_next")
    emit(f"s_add_u32 s{S_P}, s{S_P}, 1")
    emit(f"s_cmp_lg_u32 s{S_TOT}, 0")
    emit("s_cbranch_scc1 K2_slow_batch")
    emit(f"s_mov_b32 s{S_P}, 0")
    emit(f"s_add_u32 s{S_IT}, s{S_IT}, 1")
    emit(f"s_cmp_ge_u32 s{S_IT}, 8")
    emit("s_cbranch_scc1 K2_epi")
    label("K2_slow_batch")
    emit("s_waitcnt vmcnt(0) lgkmcnt(0)")
    emit("s_barrier")
    emit(f"s_cmp_lg_u32 s{S_WAVE}, 0")
    emit("s_cbranch_scc1 K2_slow_nocnt")
    emit(f"v_and_b32 v{R.w1d}, 63, v0")
    cnt_init(R.w1d)
    label("K2_slow_nocnt")
    a, b = R.aoa, R.sa
    emit(f"v_lshrrev_b32 v{a}, 4, v0")
    emit(f"v_and_b32 v{b}, 15, v0")
    emit(f"v_lshlrev_b32 v{R.t0}, 5, v{a}")
    emit(f"s_lshl_b32 s{S_T0}, s{S_IT}, 2")
    emit(f"s_add_u32 s{S_T0}, s{S_T0}, s{S_TABO}")
    emit(f"buffer_load_dword v{R.t1}, v{R.t0}, s[{SW}:{SW+3}], s{S_T0} offen")
    emit(f"s_lshl_b32 s{S_T0}, s{S_IT}, 5")
    emit(f"v_add_u32 v{a}, s{S_T0}, v{a}")
    emit(f"s_lshl_b32 s{S_T1}, s{S_P}, 4")
    emit(f"v_add_u32 v{b}, s{S_T1}, v{b}")
    emit(f"v_cmp_gt_u32 vcc, {NCH}, v{a}")
    emit(f"v_mul_u32_u24 v{a}, {CH}, v{a}")
    emit(f"v_add_u32 v{a}, v{a}, v{b}")
    emit("s_waitcnt vmcnt(0) lgkmcnt(0)")
    emit("s_barrier")
    emit(f"v_cndmask_b32 v{R.t1}, 0, v{R.t1}, vcc")
    emit(f"v_lshrrev_b32 v{R.t0}, 16, v{R.t1}")
    emit(f"v_and_b32 v{R.t1}, 0xffff, v{R.t1}")
    emit(f"v_add_lshl_u32 v{a}, v{a}, v{R.t1}, 3")
    emit(f"v_cmp_lt_u32 vcc, v{b}, v{R.t0}")
    emit(f"v_mov_b32 v{R.w0}, 0x7ffffff0")
    emit("s_nop 1")
    emit(f"v_cndmask_b32 v{a}, v{R.w0}, v{a}, vcc")
    emit(f"buffer_load_dwordx2 v[{R.w0+2}:{R.w0+3}], v{a}, s[{SW}:{SW+3}], 0 offen")
    emit(f"v_mov_b32 v{R.t0}, 4")
    emit("s_waitcnt vmcnt(0)")
    emit(f"v_lshrrev_b32 v{a}, 27, v{R.w0+2}")
    emit(f"v_add_u32 v{a}, {CNT}, v{a}")
    emit(f"v_and_b32 v{R.w0+2}, 0x7fffff, v{R.w0+2}")
    emit("s_mov_b64 exec, vcc")
    emit(f"ds_add_rtn_u32 v{b}, v{a}, v{R.t0}")
    emit("s_waitcnt lgkmcnt(0)")
    emit(f"ds_write2st64_b32 v{b}, v{R.w0+2}, v{R.w0+3} offset0:0 offset1:{L1OFF}")
    emit("s_mov_b64 exec, -1")
    emit("s_waitcnt lgkmcnt(0)")
    emit("s_barrier")
    emit("s_branch K2_counts")

def cnt_init(lane):
    emit(f"v_and_b32 v{R.w0+1}, 7, v{lane}")
    emit(f"v_mul_u32_u24 v{R.aoa}, {LST}, v{R.w0+1}")
    emit(f"v_add_u32 v{R.aoa}, {L0}, v{R.aoa}")
    emit(f"v_lshlrev_b32 v{R.w0+1}, 2, v{R.w0+1}")
    emit(f"v_add_u32 v{R.w0+1}, {CNT}, v{R.w0+1}")
    emit(f"ds_write_b32 v{R.w0+1}, v{R.aoa}")

def kd(name, vgpr, sgpr):
    acc = (vgpr + 3) // 4 * 4
    out.append(".p2align 6")
    out.append(f".amdhsa_kernel {name}")
    out.append(f"  .amdhsa_next_free_vgpr {vgpr}")
    out.append(f"  .amdhsa_next_free_sgpr {sgpr}")
    out.append(f"  .amdhsa_accum_offset {acc}")
    out.append("  .amdhsa_group_segment_fixed_size 0")
    out.append("  .amdhsa_kernarg_size 80")
    out.append("  .amdhsa_user_sgpr_count 2")
    out.append("  .amdhsa_user_sgpr_kernarg_segment_ptr 1")
    out.append("  .amdhsa_system_sgpr_workgroup_id_x 1")
    out.append(".end_amdhsa_kernel")

hdr = open("standalone__edge_featured_mpnn_egc__graph.s.ref").read().split("\n")
for l in hdr:
    if l.startswith("; Override"): break
    out.append(l)
out.append(f"; @launch kernel=part_kernel grid=(267,1,1) block=(800,1,1) lds={K1_LDS}")
out.append(f"; @launch kernel=cons_kernel grid=(256,1,1) block=(512,1,1) lds={K2_LDS}")
out.append('.amdgcn_target "amdgcn-amd-amdhsa--gfx950"')
out.append(".text")
gen_k1()
gen_k2()
out.append('.section .rodata,"a"')
kd("part_kernel", 64, 32)
kd("cons_kernel", K2_VGPR, K2_SGPR)
print("\n".join(out))
```

```python
import sys

class Opt:
    FOLD = True
    NT_E = True
    NT_IDX = True
    NODMA = False
    NOLDS = False
    FIXNG = 0
    PRIO = 2
    XPF = 0
    STAMP = False

for a in sys.argv[1:]:
    if '=' in a:
        k, v = a.split('=')
        setattr(Opt, k, type(getattr(Opt, k))(int(v)))

N = 50000; E = 800000
NB = 250; CH = 3200; NCH = 250; TN = 25
WS_REC = 0
WS_TAB = 0x700000
WS_WF = 0x780000
WS_SIZE = 0x10000000
NLOG2E = 0xbfb8aa3b

out = []
def emit(s): out.append("    " + s)
def label(s): out.append(s + ":")
def comment(s): out.append("    ; " + s)

def srd(base, ptr, size):
    emit(f"s_mov_b32 s{base}, s{ptr}")
    emit(f"s_and_b32 s{base+1}, s{ptr+1}, 0xffff")
    emit(f"s_mov_b32 s{base+2}, {size:#x}")
    emit(f"s_mov_b32 s{base+3}, 0x20000")

STB = 0xF000000
_st = {"base": 72, "n": 0}
def stamp_begin(base):
    _st["base"] = base; _st["n"] = 0
def stamp(kind="s_memrealtime"):
    if not Opt.STAMP: return
    b = _st["base"] + 2 * _st["n"]; _st["n"] += 1
    emit(f"{kind} s[{b}:{b+1}]")
def cstamp(): stamp("s_memtime")
def vstamp(sreg):
    if not Opt.STAMP: return
    b = _st["base"] + 2 * _st["n"]; _st["n"] += 1
    emit(f"s_mov_b32 s{b}, s{sreg}")
    emit(f"s_mov_b32 s{b+1}, 0")
def stamp_flush(kidx, srdn, swave_global, va, tmp_s):
    if not Opt.STAMP: return
    emit("s_waitcnt lgkmcnt(0)")
    emit("s_mov_b64 exec, 1")
    emit(f"s_lshl_b32 s{tmp_s}, s{swave_global}, 7")
    emit(f"s_add_u32 s{tmp_s}, s{tmp_s}, {STB + (kidx << 20):#x}")
    emit(f"v_mov_b32 v{va+2}, 0")
    for k in range(_st["n"]):
        b = _st["base"] + 2 * k
        emit(f"v_mov_b32 v{va}, s{b}")
        emit(f"v_mov_b32 v{va+1}, s{b+1}")
        emit(f"buffer_store_dwordx2 v[{va}:{va+1}], v{va+2}, s[{srdn}:{srdn+3}], s{tmp_s} offen offset:{8*k}")
        emit("s_nop 1")

def vr(b, n): return f"v[{b}:{b+n-1}]"

K1_HIST = 0; K1_START = 1024; K1_SORT = 2048
K1_LDS = 2048 + CH * 8
K1_T = 800

def gen_k1():
    nt = " nt" if Opt.NT_IDX else ""
    out.append(".p2align 8")
    out.append(".globl part_kernel")
    out.append(".type part_kernel,@function")
    label("part_kernel")
    emit("s_cmp_ge_u32 s2, 250")
    emit("s_cbranch_scc1 K1_wprep")
    stamp_begin(32); stamp()
    emit("s_load_dwordx4 s[4:7], s[0:1], 16")
    emit("s_load_dwordx2 s[8:9], s[0:1], 72")
    emit("v_lshlrev_b32 v1, 4, v0")
    emit("s_mul_i32 s3, s2, 12800")
    emit("v_lshlrev_b32 v2, 2, v0")
    emit("v_mov_b32 v3, 0")
    emit("v_cmp_gt_u32 vcc, 0x100, v0")
    emit("s_and_saveexec_b64 s[10:11], vcc")
    emit(f"ds_write_b32 v2, v3 offset:{K1_HIST}")
    emit("s_mov_b64 exec, s[10:11]")
    emit("v_readfirstlane_b32 s25, v0")
    emit("s_waitcnt lgkmcnt(0)")
    srd(16, 6, E * 4)
    emit(f"buffer_load_dwordx4 v[4:7], v1, s[16:19], s3 offen{nt}")
    srd(12, 4, E * 4)
    emit(f"buffer_load_dwordx4 v[8:11], v1, s[12:15], s3 offen{nt}")
    srd(20, 8, WS_SIZE)
    emit("s_mov_b32 s24, 83887")
    emit("s_mul_i32 s26, s2, 102400")
    emit("v_lshlrev_b32 v28, 7, v0")
    emit("v_add_u32 v28, s26, v28")
    emit("v_mov_b32 v29, 1")
    emit("s_movk_i32 s27, 96")
    emit("s_and_b32 s28, s2, 63")
    emit("s_lshl_b32 s28, s28, 2")
    emit("s_lshr_b32 s29, s2, 6")
    emit("s_add_u32 s28, s28, s29")
    emit("s_lshl_b32 s28, s28, 2")
    emit(f"s_add_u32 s28, s28, {WS_TAB:#x}")
    emit("s_mul_i32 s30, s2, 25600")
    emit("s_add_u32 s31, s30, 12800")
    emit("s_barrier")
    emit("s_waitcnt vmcnt(1)")
    stamp()
    for j in range(4): emit(f"v_mul_u32_u24 v{12+j}, s24, v{4+j}")
    for j in range(4): emit(f"v_lshrrev_b32 v{16+j}, 24, v{12+j}")
    for j in range(4): emit(f"v_lshlrev_b32 v{16+j}, 2, v{16+j}")
    for j in range(4): emit(f"ds_add_rtn_u32 v{20+j}, v{16+j}, v29 offset:{K1_HIST}")
    for j in range(4): emit(f"v_lshrrev_b32 v{12+j}, 21, v{12+j}")
    for j in range(4): emit(f"v_mul_u32_u24 v{24+j}, 25, v{12+j}")
    for j in range(4): emit(f"v_sub_u32 v{24+j}, v{4+j}, v{24+j}")
    for j in range(4): emit(f"v_lshl_or_b32 v{24+j}, v{12+j}, 29, v{24+j}")
    for j in range(4):
        c = ["0", "32", "64", "s27"][j]
        emit(f"v_add3_u32 v{33+2*j}, v28, v{24+j}, {c}")
    emit("s_waitcnt lgkmcnt(0)")
    emit("s_barrier")
    emit("s_cmp_lg_u32 s25, 0")
    emit("s_cbranch_scc1 K1_noscan")
    emit(f"ds_read_b128 v[40:43], v1 offset:{K1_HIST}")
    emit("v_lshlrev_b32 v52, 12, v0")
    emit("s_waitcnt lgkmcnt(0)")
    emit("v_add_u32 v44, v40, v41")
    emit("v_add_u32 v45, v44, v42")
    emit("v_add_u32 v46, v45, v43")
    emit("v_mov_b32 v47, v46")
    for sh in (1, 2, 4, 8):
        emit("s_nop 1")
        emit(f"v_add_u32_dpp v47, v47, v47 row_shr:{sh} row_mask:0xf bank_mask:0xf")
    emit("s_nop 1")
    emit("v_add_u32_dpp v47, v47, v47 row_bcast:15 row_mask:0xa bank_mask:0xf")
    emit("s_nop 1")
    emit("v_add_u32_dpp v47, v47, v47 row_bcast:31 row_mask:0xc bank_mask:0xf")
    emit("v_sub_u32 v48, v47, v46")
    emit("v_add_u32 v49, v48, v40")
    emit("v_add_u32 v50, v48, v44")
    emit("v_add_u32 v51, v48, v45")
    emit(f"ds_write_b128 v1, v[48:51] offset:{K1_START}")
    for j in range(4): emit(f"v_lshl_or_b32 v{56+j}, v{40+j}, 16, v{48+j}")
    for j in range(4): emit(f"buffer_store_dword v{56+j}, v52, s[20:23], s28 offen offset:{j*1024}")
    emit("s_waitcnt vmcnt(4) lgkmcnt(0)")
    emit("s_branch K1_scanned")
    label("K1_noscan")
    emit("s_waitcnt vmcnt(0)")
    label("K1_scanned")
    for j in range(4): emit(f"v_lshlrev_b32 v{32+2*j}, 7, v{8+j}")
    emit("s_barrier")
    stamp()
    for j in range(4): emit(f"ds_read_b32 v{24+j}, v{16+j} offset:{K1_START}")
    for j in range(4):
        emit(f"s_waitcnt lgkmcnt({3-j})" if j == 0 else "s_waitcnt lgkmcnt(3)")
        emit(f"v_add_lshl_u32 v{24+j}, v{24+j}, v{20+j}, 3")
        emit(f"ds_write_b64 v{24+j}, v[{32+2*j}:{33+2*j}] offset:{K1_SORT}")
    emit("s_waitcnt lgkmcnt(0)")
    emit("s_barrier")
    emit(f"ds_read_b128 v[4:7], v1 offset:{K1_SORT}")
    emit(f"ds_read_b128 v[8:11], v1 offset:{K1_SORT+12800}")
    emit("s_waitcnt lgkmcnt(1)")
    emit("buffer_store_dwordx4 v[4:7], v1, s[20:23], s30 offen")
    emit("s_waitcnt lgkmcnt(0)")
    emit("buffer_store_dwordx4 v[8:11], v1, s[20:23], s31 offen")
    stamp()
    if Opt.STAMP:
        emit("s_waitcnt vmcnt(0)")
        stamp()
        emit("s_lshr_b32 s25, s25, 6")
        emit("s_mul_i32 s26, s2, 13")
        emit("s_add_u32 s25, s25, s26")
        stamp_flush(0, 20, 25, 12, 26)
    emit("s_endpgm")
    label("K1_wprep")
    emit("s_cmp_ge_u32 s2, 252")
    emit("s_cbranch_scc1 K1_end")
    emit("v_readfirstlane_b32 s25, v0")
    emit("s_sub_u32 s3, s2, 250")
    emit("s_mul_i32 s3, s3, 9")
    emit("s_nop 1")
    emit("s_lshr_b32 s25, s25, 6")
    emit("s_cmp_ge_u32 s25, 9")
    emit("s_cbranch_scc1 K1_end")
    emit("s_add_u32 s3, s3, s25")
    emit("s_cmp_ge_u32 s3, 17")
    emit("s_cbranch_scc1 K1_end")
    emit("s_load_dwordx4 s[4:7], s[0:1], 32")
    emit("s_load_dwordx2 s[8:9], s[0:1], 48")
    emit("s_load_dwordx2 s[10:11], s[0:1], 72")
    emit("v_and_b32 v0, 63, v0")
    emit("v_and_b32 v1, 31, v0")
    emit("v_lshlrev_b32 v1, 2, v1")
    emit("v_lshrrev_b32 v2, 5, v0")
    emit("v_lshl_add_u32 v1, v2, 10, v1")
    emit("v_lshlrev_b32 v2, 4, v0")
    emit("s_waitcnt lgkmcnt(0)")
    emit("s_cmp_lt_u32 s3, 13")
    emit("s_cselect_b32 s12, s6, s4")
    emit("s_cselect_b32 s13, s7, s5")
    emit("s_cselect_b32 s26, 9, 13")
    emit("s_cmp_lt_u32 s3, 9")
    emit("s_cselect_b32 s12, s8, s12")
    emit("s_cselect_b32 s13, s9, s13")
    emit("s_cselect_b32 s26, 0, s26")
    emit("s_movk_i32 s27, 0x2000")
    emit("s_cselect_b32 s14, 0x4800, s27")
    emit("s_and_b32 s13, s13, 0xffff")
    emit("s_mov_b32 s15, 0x20000")
    srd(20, 10, WS_SIZE)
    emit("s_sub_u32 s26, s3, s26")
    emit("s_lshl_b32 s26, s26, 11")
    for q in range(8):
        emit(f"buffer_load_dword v{4+q}, v1, s[12:15], s26 offen offset:{q*128}")
    emit("s_lshl_b32 s27, s3, 11")
    emit(f"s_add_u32 s27, s27, {WS_WF:#x}")
    emit("s_mov_b32 s28, 0x05040100")
    emit("s_mov_b32 s29, 0x07060302")
    emit("s_waitcnt vmcnt(0)")
    if Opt.FOLD:
        emit("s_sub_u32 s30, s3, 4")
        emit("s_cmp_lt_u32 s30, 5")
        emit("s_cbranch_scc0 K1_wplain")
        emit(f"s_mov_b32 s30, {NLOG2E:#x}")
        for q in range(8):
            emit(f"v_lshlrev_b32 v{12+q}, 16, v{4+q}")
            emit(f"v_and_b32 v{20+q}, 0xffff0000, v{4+q}")
        for q in range(16):
            emit(f"v_mul_f32 v{12+q}, s30, v{12+q}")
        for j in range(4):
            emit(f"v_cvt_pk_bf16_f32 v{28+j}, v{12+2*j}, v{13+2*j}")
            emit(f"v_cvt_pk_bf16_f32 v{32+j}, v{20+2*j}, v{21+2*j}")
        emit("s_branch K1_wstore")
        label("K1_wplain")
    for j in range(4):
        emit(f"v_perm_b32 v{28+j}, v{5+2*j}, v{4+2*j}, s28")
        emit(f"v_perm_b32 v{32+j}, v{5+2*j}, v{4+2*j}, s29")
    label("K1_wstore")
    emit("buffer_store_dwordx4 v[28:31], v2, s[20:23], s27 offen")
    emit("buffer_store_dwordx4 v[32:35], v2, s[20:23], s27 offen offset:1024")
    label("K1_end")
    emit("s_endpgm")

CNT = 0
AOT = 64
SM = AOT + 2560; SM_W = 2560
STG0 = SM + 8 * SM_W
assert STG0 % 16 == 0
BUFW = 5120
BUF = 8 * BUFW
WFL = STG0 + BUF
L0 = STG0 + 2 * BUF
CAP = 576; CAPT = 704
LST = CAPT * 4
L1 = L0 + 8 * LST
K2_LDS = L1 + 8 * LST
L1OFF = (L1 - L0) // 256
assert (L1 - L0) % 256 == 0 and K2_LDS <= 163840 and L0 % 16 == 0

class R: pass
_next = [1]
def alloc(n, align=1):
    b = _next[0]
    b = (b + align - 1) // align * align
    _next[0] = b + n
    return b
R.lane16 = alloc(1); R.dmab = alloc(1); R.rde = alloc(1)
R.rd = alloc(4)
R.l0a = alloc(1); R.l1a = alloc(1); R.h16 = alloc(1); R.aoc = alloc(1); R.sc = alloc(1); R.sr = alloc(1)
R.one = alloc(1); R.zero = alloc(1); R.eh16 = alloc(1); R.l1b = alloc(1)
R.w1d = alloc(1); R.w1n = alloc(1); R.aoa = alloc(1); R.sa = alloc(1); R.t0 = alloc(1); R.t1 = alloc(1)
R.w0 = alloc(4, 4)
R.WB = alloc(32, 4); R.WC = alloc(8, 4); R.WV = alloc(32, 4); R.P = alloc(16, 4)
R.AGG = alloc(32, 4)
R.Z = [alloc(16, 4), 0]; R.H = [alloc(16, 4), 0]
R.Z[1] = alloc(16, 4); R.H[1] = alloc(16, 4)
R.AX = alloc(16, 4); R.AE = alloc(4, 4); R.AO = alloc(8, 4); R.AS = alloc(8, 4)
K2_VGPR = _next[0]
assert K2_VGPR <= 256, K2_VGPR

SX = 8; SE = 12; SO = 16; SW = 20
S_B = 3; S_WAVE = 4; S_NG = 5; S_G = 6; S_MODE = 7
S_STG = 24; S_MSKE = 25; S_80 = 26; S_N = 27; S_IT = 28; S_P = 29; S_TOT = 30; S_T0 = 31
S_MASK = 32
S_T1 = 64; S_T2 = 65; S_C = 66; S_TABO = 67; S_NODE0 = 68; S_T3 = 69; S_GP = 70; S_TILE = 71
K2_SGPR = 72

def WB(s, t): return vr(R.WB + (s * 2 + t) * 4, 4)
def WV(s, t): return vr(R.WV + (s * 2 + t) * 4, 4)
def WC(t): return vr(R.WC + t * 4, 4)
def PP(s, t): return vr(R.P + (s * 2 + t) * 4, 4)
def AX(s): return vr(R.AX + s * 4, 4)
def AO(s): return vr(R.AO + s * 4, 4)
def AS(s): return vr(R.AS + s * 4, 4)
AE = vr(R.AE, 4)
def AGG(t): return vr(R.AGG + t * 16, 16)
def Zr(t): return vr(R.Z[t], 16)
def Hr(t): return vr(R.H[t], 16)
def mfma(d, a, b, c): return f"v_mfma_f32_32x32x16_bf16 {d}, {a}, {b}, {c}"

def zh_mfmas(t):
    z, h = Zr(t), Hr(t)
    m = [mfma(z, AO(0), PP(0, t), "0"), mfma(z, AO(1), PP(1, t), z), mfma(z, AE, WC(t), z)]
    for s in range(4):
        m.append(mfma(z, AX(s), WB(s, t), z))
        m.append(mfma(h, AX(s), WV(s, t), "0" if s == 0 else h))
    return m

def agg_mfmas(t):
    return [mfma(AGG(t), AS(0), vr(R.Z[t], 4), AGG(t)), mfma(AGG(t), AS(1), vr(R.Z[t] + 8, 4), AGG(t))]

def sig_stream(t):
    z, h = R.Z[t], R.H[t]
    st = []
    for m in range(4):
        rs = [4 * m + i for i in range(4)]
        if not Opt.FOLD:
            for r in rs: st.append((f"v_mul_f32 v{z+r}, s{S_C}, v{z+r}", 4))
        for r in rs: st.append((f"v_exp_f32 v{z+r}, v{z+r}", 8))
        for r in rs: st.append((f"v_add_f32 v{z+r}, 1.0, v{z+r}", 4))
        for r in rs: st.append((f"v_rcp_f32 v{z+r}, v{z+r}", 8))
        for r in rs: st.append((f"v_mul_f32 v{z+r}, v{z+r}, v{h+r}", 4))
        d = 8 * (m // 2) + 2 * (m % 2)
        st.append((f"v_cvt_pk_bf16_f32 v{z+d}, v{z+4*m}, v{z+4*m+1}", 4))
        st.append((f"v_cvt_pk_bf16_f32 v{z+d+1}, v{z+4*m+2}, v{z+4*m+3}", 4))
    return st

def dma_issue(bufoff, w0, w1):
    nte = " nt" if Opt.NT_E else ""
    seq = [f"s_add_u32 m0, s{S_STG}, {bufoff}"]
    for t in range(4):
        seq.append(f"v_xad_u32 v{w0+t}, v{R.dmab}, {16*t}, v{w0+t}")
        seq.append(f"buffer_load_dwordx4 v{w0+t}, s[{SX}:{SX+3}], 0 offen lds")
        seq.append("s_add_u32 m0, m0, 0x400")
    seq.append(f"v_and_or_b32 v{w1}, v{w1}, s{S_MSKE}, v{R.eh16}")
    seq.append(f"buffer_load_dwordx4 v{w1}, s[{SE}:{SE+3}], 0 offen{nte} lds")
    return seq

def nl_addr():
    return [f"v_and_b32 v{R.w1n}, 31, v{R.w1n}",
            f"v_mad_u32_u24 v{R.aoa}, v{R.w1n}, s{S_80}, v{R.aoc}",
            f"v_mad_u32_u24 v{R.sa}, v{R.w1n}, s{S_80}, v{R.sc}"]

def interleave(valu, mfmas, after, pre=None):
    pre = pre or {}
    def keep(x):
        if Opt.NODMA and (x.startswith("buffer_load") or "vmcnt" in x): return False
        if Opt.NOLDS and (x.startswith("ds_") or "lgkmcnt" in x): return False
        return True
    total = sum(c for _, c in valu)
    n = len(mfmas)
    tail = 48 if not Opt.FOLD else 56
    spacing = (total - tail) / (n - 1)
    k = 0; cum = 0
    for ins, c in valu:
        while k < n and cum >= k * spacing - 1e-9:
            for x in pre.get(k, []):
                if keep(x): emit(x)
            emit(mfmas[k])
            for x in after.get(k, []):
                if keep(x): emit(x)
            k += 1
        emit(ins); cum += c
    assert k == n, (k, n)

def group_body(par, lo):
    nb = BUF * (1 - par)
    m = agg_mfmas(1) + zh_mfmas(1)
    after = {
        0: [f"ds_read_b32 v{R.w1n}, v{R.l1a} offset:{lo+128}"],
        1: [f"ds_write_b16 v{R.sa}, v{R.one}",
            f"ds_read_b128 {AS(0)}, v{R.sr}",
            f"ds_read_b128 {AS(1)}, v{R.sr} offset:32",
            f"ds_write_b16 v{R.sa}, v{R.zero}"],
        3: ["s_waitcnt lgkmcnt(4)"] + nl_addr() +
           [f"ds_read_b128 {AO(0)}, v{R.aoa}", f"ds_read_b128 {AO(1)}, v{R.aoa} offset:32"],
        4: ["s_waitcnt vmcnt(5)", f"ds_read_b128 {AE}, v{R.rde} offset:{nb}"],
        6: [f"ds_read_b128 {AX(0)}, v{R.rd} offset:{nb}"],
        8: [f"ds_read_b128 {AX(1)}, v{R.rd+1} offset:{nb}"],
        10: [f"ds_read_b128 {AX(2)}, v{R.rd+2} offset:{nb}",
             f"ds_read_b128 {vr(R.w0,4)}, v{R.l0a} offset:{lo+384}",
             f"ds_read_b32 v{R.w1d}, v{R.l1b} offset:{lo+384}"],
        12: [f"ds_read_b128 {AX(3)}, v{R.rd+3} offset:{nb}"],
    }
    interleave(sig_stream(0), m, after)
    m = agg_mfmas(0) + zh_mfmas(0)
    d = dma_issue(nb, R.w0, R.w1d)
    pre = {0: ["s_waitcnt lgkmcnt(1)"]}
    after = {1: ["s_waitcnt lgkmcnt(0)"] + d[0:4], 2: d[4:7], 3: d[7:10], 4: d[10:13], 5: d[13:15]}
    interleave(sig_stream(1), m, after, pre)

def gtrace():
    if not Opt.STAMP: return
    emit("s_memtime s[100:101]")
    emit("s_waitcnt lgkmcnt(0)")
    emit(f"s_mov_b32 m0, s{S_G}")
    emit("s_nop 0")
    emit(f"v_writelane_b32 v254, s100, m0")

def prio_check(tag):
    if not Opt.PRIO: return
    emit(f"s_cmp_lg_u32 s{S_G}, s{S_GP}")
    emit(f"s_cbranch_scc1 K2_np{tag}")
    emit("s_setprio 0")
    label(f"K2_np{tag}")

def frag_reads(younger=0):
    emit(f"s_waitcnt vmcnt({younger})")
    emit("s_barrier")
    emit(f"v_add_u32 v{R.t0}, {WFL}, v{R.lane16}")
    for sx in range(4):
        for t in range(2):
            emit(f"ds_read_b128 {vr([R.Z[1],R.H[1]][t]+4*sx,4)}, v{R.t0} offset:{(26+2*sx+t)*1024}")
    for sx in range(4):
        for t in range(2):
            emit(f"ds_read_b128 {vr([R.Z[0],R.H[0]][t]+4*sx,4)}, v{R.t0} offset:{(2*sx+t)*1024}")
    for f in range(8):
        emit(f"ds_read_b128 {vr(R.WB+4*f,4)}, v{R.t0} offset:{(8+f)*1024}")
    for f in range(2):
        emit(f"ds_read_b128 {vr(R.WC+4*f,4)}, v{R.t0} offset:{(16+f)*1024}")
    for f in range(8):
        emit(f"ds_read_b128 {vr(R.WV+4*f,4)}, v{R.t0} offset:{(18+f)*1024}")
    emit("s_waitcnt lgkmcnt(0)")
    emit("s_barrier")

def pu_block():
    aw = [R.Z[0], R.H[0]]; uu = [R.Z[1], R.H[1]]
    for t in range(2):
        for sx in range(4):
            emit(mfma(AGG(t), AX(sx), vr(uu[t] + 4 * sx, 4), "0" if sx == 0 else AGG(t)))
    for t in range(2):
        for sx in range(4):
            emit(mfma(vr(uu[t], 16), AX(sx), vr(aw[t] + 4 * sx, 4), "0" if sx == 0 else vr(uu[t], 16)))
    emit("s_nop 7")
    for t in range(2):
        if t == 1 and not Opt.FOLD: emit("s_nop 3")
        if Opt.FOLD:
            for r in range(16):
                emit(f"v_mul_f32 v{uu[t]+r}, s{S_C}, v{uu[t]+r}")
        for sx in range(2):
            for j in range(4):
                emit(f"v_cvt_pk_bf16_f32 v{R.P+(sx*2+t)*4+j}, v{uu[t]+8*sx+2*j}, v{uu[t]+8*sx+2*j+1}")

def cnt_init(lane):
    emit(f"v_and_b32 v{R.w0+1}, 7, v{lane}")
    emit(f"v_mul_u32_u24 v{R.aoa}, {LST}, v{R.w0+1}")
    emit(f"v_add_u32 v{R.aoa}, {L0}, v{R.aoa}")
    emit(f"v_lshlrev_b32 v{R.w0+1}, 2, v{R.w0+1}")
    emit(f"ds_write_b32 v{R.w0+1}, v{R.aoa} offset:{CNT}")

def gen_k2():
    out.append(".p2align 8")
    out.append(".globl cons_kernel")
    out.append(".type cons_kernel,@function")
    label("cons_kernel")
    emit("s_cmp_ge_u32 s2, 256")
    emit("s_cbranch_scc1 K2_end")
    emit("s_and_b32 s3, s2, 7")
    emit("s_lshl_b32 s3, s3, 5")
    emit("s_lshr_b32 s4, s2, 3")
    emit(f"s_add_u32 s{S_B}, s3, s4")
    emit(f"s_cmp_ge_u32 s{S_B}, {NB}")
    emit("s_cbranch_scc1 K2_end")
    stamp_begin(72); stamp()
    if Opt.STAMP: emit("s_memtime s[98:99]")
    emit("s_load_dwordx2 s[38:39], s[0:1], 72")
    emit("s_load_dwordx4 s[32:35], s[0:1], 0")
    emit("s_load_dwordx2 s[36:37], s[0:1], 56")
    t0, t1 = R.t0, R.t1
    emit(f"v_lshrrev_b32 v{t0}, 6, v0")
    emit(f"v_and_b32 v{t1}, 63, v0")
    emit(f"v_readfirstlane_b32 s{S_WAVE}, v{t0}")
    emit(f"v_lshlrev_b32 v{R.lane16}, 4, v{t1}")
    emit(f"v_lshrrev_b32 v{t0}, 3, v0")
    emit(f"v_lshlrev_b32 v{R.w0}, 4, v{t0}")
    emit(f"s_lshl_b32 s{S_TABO}, s{S_B}, 10")
    emit(f"s_add_u32 s{S_TABO}, s{S_TABO}, {WS_TAB:#x}")
    if Opt.PRIO: emit("s_setprio 1")
    emit("s_waitcnt lgkmcnt(0)")
    srd(SW, 38, WS_SIZE)
    emit(f"buffer_load_dwordx4 {AO(0)}, v{R.w0}, s[{SW}:{SW+3}], s{S_TABO} offen")
    srd(SX, 32, N * 128)
    srd(SE, 34, E * 32)
    srd(SO, 36, N * 128)
    i, h = R.w1n, R.w1d
    emit(f"v_and_b32 v{i}, 31, v{t1}")
    emit(f"v_lshrrev_b32 v{h}, 5, v{t1}")
    emit(f"v_lshlrev_b32 v{R.h16}, 4, v{h}")
    emit(f"s_mul_i32 s{S_STG}, s{S_WAVE}, {BUFW}")
    emit(f"s_add_u32 s{S_STG}, s{S_STG}, {STG0}")
    emit(f"v_and_b32 v{t0}, 7, v{t1}")
    emit(f"v_lshlrev_b32 v{R.dmab}, 2, v{h}")
    emit(f"v_xor_b32 v{R.dmab}, v{R.dmab}, v{t0}")
    emit(f"v_lshlrev_b32 v{R.dmab}, 4, v{R.dmab}")
    emit(f"s_mul_i32 s{S_NODE0}, s{S_B}, 200")
    emit(f"s_mul_i32 s{S_T0}, s{S_WAVE}, {TN}")
    emit(f"s_add_u32 s{S_NODE0}, s{S_NODE0}, s{S_T0}")
    emit(f"s_lshl_b32 s{S_NODE0}, s{S_NODE0}, 7")
    emit(f"v_lshrrev_b32 v{t0}, 3, v{t1}")
    emit(f"v_lshlrev_b32 v{t0}, 9, v{t0}")
    emit(f"s_mov_b32 m0, s{S_STG}")
    emit(f"s_mov_b32 s{S_T0}, s{S_NODE0}")
    for t in range(4):
        emit(f"v_xad_u32 v{R.AE+t}, v{R.dmab}, {16*t}, v{t0}")
        emit(f"buffer_load_dwordx4 v{R.AE+t}, s[{SX}:{SX+3}], s{S_T0} offen lds")
        emit("s_add_u32 m0, m0, 0x400")
        emit(f"s_add_u32 s{S_T0}, s{S_T0}, 128")
    emit(f"s_mov_b32 s{S_MSKE}, 0x1fffffe0")
    emit(f"s_movk_i32 s{S_80}, 80")
    emit(f"s_mov_b32 s{S_C}, {NLOG2E:#x}")
    emit(f"s_mov_b32 s{S_MODE}, 0")
    emit(f"v_mov_b32 v{R.one}, 0x3f80")
    emit(f"v_mov_b32 v{R.zero}, 0")
    a, b = R.aoa, R.sa
    emit(f"v_and_b32 v{t0}, 19, v{i}")
    emit(f"v_and_b32 v{a}, 4, v{i}")
    emit(f"v_lshl_or_b32 v{t0}, v{a}, 1, v{t0}")
    emit(f"v_and_b32 v{a}, 8, v{i}")
    emit(f"v_lshrrev_b32 v{a}, 1, v{a}")
    emit(f"v_or_b32 v{t0}, v{t0}, v{a}")
    emit(f"v_lshlrev_b32 v{t0}, 1, v{t0}")
    emit(f"s_mul_i32 s{S_T0}, s{S_WAVE}, {SM_W}")
    emit(f"s_add_u32 s{S_T0}, s{S_T0}, {SM}")
    emit(f"v_add_u32 v{R.sc}, s{S_T0}, v{t0}")
    emit(f"v_mad_u32_u24 v{a}, v{i}, s{S_80}, v{R.h16}")
    emit(f"v_add_u32 v{R.sr}, s{S_T0}, v{a}")
    emit(f"v_add_u32 v{R.aoc}, {AOT}, v{R.h16}")
    emit(f"v_mov_b32 v{R.w0+2}, 0")
    emit(f"v_mov_b32 v{R.w0+3}, 0")
    emit(f"v_lshlrev_b32 v{b}, 3, v{t1}")
    emit(f"s_cmp_lg_u32 s{S_WAVE}, 0")
    emit("s_cbranch_scc1 K2_noinit")
    cnt_init(t1)
    for k in range(5):
        emit(f"ds_write_b64 v{b}, v[{R.w0+2}:{R.w0+3}] offset:{AOT+512*k}")
    emit(f"v_mad_u32_u24 v{a}, v{i}, s{S_80}, v{t0}")
    emit(f"ds_write_b16 v{a}, v{R.one} offset:{AOT}")
    label("K2_noinit")
    emit(f"v_add_u32 v{a}, s{S_T0}, v{b}")
    for k in range(5):
        emit(f"ds_write_b64 v{a}, v[{R.w0+2}:{R.w0+3}] offset:{512*k}")
    emit(f"v_lshrrev_b32 v{a}, 3, v0")
    emit(f"v_and_b32 v{b}, 7, v0")
    emit(f"v_lshlrev_b32 v{b}, 1, v{b}")
    emit(f"v_mul_u32_u24 v{t0}, {CH}, v{a}")
    emit(f"v_add_u32 v{t0}, v{t0}, v{b}")
    emit(f"v_cmp_gt_u32 vcc, {NCH-3*64}, v{a}")
    emit(f"v_mov_b32 v{R.w0}, 0x7ffffff0")
    emit("s_waitcnt lgkmcnt(0)")
    emit("s_barrier")
    emit("s_waitcnt vmcnt(4)")
    stamp()
    BASE = R.AO; REM = R.AO + 4
    emit(f"v_cndmask_b32 v{BASE+3}, 0, v{BASE+3}, vcc")
    for it in range(4):
        emit(f"v_lshrrev_b32 v{REM+it}, 16, v{BASE+it}")
        emit(f"v_sub_u32 v{REM+it}, v{REM+it}, v{b}")
        emit(f"v_and_b32 v{BASE+it}, 0xffff, v{BASE+it}")
        emit(f"v_add_u32 v{BASE+it}, {it*64*CH}, v{BASE+it}")
        emit(f"v_add_lshl_u32 v{BASE+it}, v{BASE+it}, v{t0}, 3")
    REC = R.Z[0]
    RK = R.Z[1]; TA = R.H[1]
    assert R.H[0] == R.Z[0] + 16
    def msk(k): return f"s[{S_MASK+2*k}:{S_MASK+2*k+1}]"
    def rec_loads():
        for l in range(8):
            it, p = l // 2, l % 2
            emit(f"v_cmp_lt_i32 {msk(2*l)}, {16*p}, v{REM+it}")
        for l in range(8):
            it, p = l // 2, l % 2
            tmp = R.w0 + 1 + (l % 3)
            emit(f"v_cndmask_b32 v{tmp}, v{R.w0}, v{BASE+it}, {msk(2*l)}")
            emit(f"buffer_load_dwordx4 {vr(REC+4*l,4)}, v{tmp}, s[{SW}:{SW+3}], 0 offen offset:{128*p}")
        for l in range(8):
            it, p = l // 2, l % 2
            emit(f"v_cmp_lt_i32 {msk(2*l+1)}, {16*p+1}, v{REM+it}")
    rec_loads()
    NLATE = 0
    if Opt.XPF:
        emit(f"s_lshr_b32 s{S_T0}, s2, 3")
        emit(f"s_lshl_b32 s{S_T0}, s{S_T0}, 3")
        emit(f"s_add_u32 s{S_T0}, s{S_T0}, s{S_WAVE}")
        emit(f"s_mul_i32 s{S_T0}, s{S_T0}, {Opt.XPF*8192}")
        emit(f"v_lshlrev_b32 v{t0}, 7, v{t1}")
        for k in range(Opt.XPF):
            emit(f"buffer_load_dword v{R.AE+k%4}, v{t0}, s[{SX}:{SX+3}], s{S_T0} offen")
            if k < Opt.XPF - 1: emit(f"s_add_u32 s{S_T0}, s{S_T0}, 0x2000")
        NLATE += Opt.XPF
    emit(f"v_and_b32 v{a}, 1, v{t1}")
    emit(f"v_xor_b32 v{a}, v{a}, v{h}")
    emit(f"v_lshlrev_b32 v{R.eh16}, 4, v{a}")
    emit(f"v_lshrrev_b32 v{a}, 4, v{i}")
    emit(f"v_xor_b32 v{a}, v{a}, v{h}")
    emit(f"v_lshlrev_b32 v{a}, 4, v{a}")
    emit(f"v_lshl_add_u32 v{a}, v{i}, 5, v{a}")
    emit(f"v_add_u32 v{R.rde}, s{S_STG}, v{a}")
    emit(f"v_add_u32 v{R.rde}, 0x1000, v{R.rde}")
    emit(f"v_and_b32 v{a}, 3, v{i}")
    emit(f"v_lshrrev_b32 v{b}, 4, v{i}")
    emit(f"v_lshl_add_u32 v{b}, v{b}, 2, v{a}")
    emit(f"v_xor_b32 v{b}, v{b}, v{h}")
    emit(f"v_lshlrev_b32 v{b}, 4, v{b}")
    emit(f"v_lshlrev_b32 v{a}, 10, v{a}")
    emit(f"v_lshrrev_b32 v{t0}, 2, v{i}")
    emit(f"v_lshl_add_u32 v{a}, v{t0}, 7, v{a}")
    emit(f"v_add_u32 v{a}, s{S_STG}, v{a}")
    emit(f"s_movk_i32 s{S_T0}, 96")
    for s in range(4):
        c = ["0", "32", "64", f"s{S_T0}"][s]
        emit(f"v_xad_u32 v{R.rd+s}, v{b}, {c}, v{a}")
    emit(f"s_mul_i32 s{S_T0}, s{S_WAVE}, {LST}")
    emit(f"s_add_u32 s{S_T0}, s{S_T0}, {L0}")
    emit(f"v_lshrrev_b32 v{a}, 3, v{t1}")
    emit(f"v_lshlrev_b32 v{a}, 4, v{a}")
    emit(f"v_add_u32 v{R.l0a}, s{S_T0}, v{a}")
    emit(f"v_lshlrev_b32 v{a}, 2, v{i}")
    emit(f"v_add_u32 v{a}, s{S_T0}, v{a}")
    emit(f"v_add_u32 v{R.l1a}, {L1-L0}, v{a}")
    emit(f"v_lshrrev_b32 v{a}, 1, v{t1}")
    emit(f"v_lshlrev_b32 v{a}, 2, v{a}")
    emit(f"v_add_u32 v{a}, s{S_T0}, v{a}")
    emit(f"v_add_u32 v{R.l1b}, {L1-L0}, v{a}")
    emit(f"v_mov_b32 v{R.t0}, 4")
    emit(f"s_mov_b32 s{S_T3}, {L1-4}")
    stamp()
    def weights_dma():
        emit(f"s_lshl_b32 s{S_T0}, s{S_WAVE}, 10")
        emit(f"s_add_u32 s{S_T1}, s{S_T0}, {WS_WF:#x}")
        emit(f"s_add_u32 m0, s{S_T0}, {WFL}")
        for k in range(5):
            emit("s_nop 0")
            emit(f"buffer_load_dwordx4 v{R.lane16}, s[{SW}:{SW+3}], s{S_T1} offen lds")
            if k < 4:
                emit("s_add_u32 m0, m0, 0x2000")
                emit(f"s_add_u32 s{S_T1}, s{S_T1}, 0x2000")
    def collect(first):
        for l in range(8):
            emit(f"s_waitcnt vmcnt({NLATE+7-l})" if first else ("s_waitcnt vmcnt(0)" if l == 0 else "s_nop 0"))
            if first and l == 0: stamp()
            for r in range(2):
                k = 2 * l + r
                emit(f"v_lshrrev_b32 v{TA+k}, 27, v{REC+4*l+2*r+1}")
            for r in range(2):
                k = 2 * l + r
                emit(f"s_mov_b64 exec, {msk(k)}")
                emit(f"ds_add_rtn_u32 v{RK+k}, v{TA+k}, v{R.t0} offset:{CNT}")
            emit("s_mov_b64 exec, -1")
        if first: weights_dma()
        for it in range(4):
            emit(f"v_subrev_u32 v{REM+it}, 32, v{REM+it}")
            emit(f"v_add_u32 v{BASE+it}, 0x100, v{BASE+it}")
        emit(f"v_max3_i32 v{R.t1}, v{REM}, v{REM+1}, v{REM+2}")
        emit(f"v_max_i32 v{R.t1}, v{R.t1}, v{REM+3}")
        emit(f"v_cmp_lt_i32 vcc, 0, v{R.t1}")
        emit("s_waitcnt lgkmcnt(0)")
        for k in range(16):
            emit(f"v_min_u32 v{RK+k}, s{S_T3}, v{RK+k}")
        for k in range(16):
            emit(f"s_mov_b64 exec, {msk(k)}")
            emit(f"ds_write2st64_b32 v{RK+k}, v{REC+2*k}, v{REC+2*k+1} offset0:0 offset1:{L1OFF}")
        emit("s_mov_b64 exec, -1")
    collect(True)
    emit("s_cbranch_vccz K2_collected")
    label("K2_collect_more")
    emit("s_waitcnt lgkmcnt(0)")
    rec_loads()
    collect(False)
    emit("s_cbranch_vccnz K2_collect_more")
    label("K2_collected")
    for s in range(4): emit(f"ds_read_b128 {AX(s)}, v{R.rd+s}")
    emit("s_waitcnt lgkmcnt(0)")
    emit("s_barrier")
    stamp()
    label("K2_counts")
    emit(f"v_and_b32 v{R.t0}, 7, v0")
    emit(f"v_lshlrev_b32 v{R.t1}, 2, v{R.t0}")
    emit(f"ds_read_b32 v{R.t1}, v{R.t1} offset:{CNT}")
    emit(f"v_mul_u32_u24 v{R.t0}, {LST}, v{R.t0}")
    emit(f"v_add_u32 v{R.t0}, {L0}, v{R.t0}")
    emit("s_waitcnt lgkmcnt(0)")
    emit(f"v_sub_u32 v{R.t1}, v{R.t1}, v{R.t0}")
    emit(f"v_lshrrev_b32 v{R.t1}, 2, v{R.t1}")
    emit(f"v_cmp_lt_u32 vcc, {CAP}, v{R.t1}")
    emit(f"v_cmp_ne_u32 s[{S_MASK}:{S_MASK+1}], 0, v{R.t1}")
    emit(f"v_readlane_b32 s{S_N}, v{R.t1}, s{S_WAVE}")
    emit("s_nop 3")
    emit(f"s_or_b32 s{S_TOT}, s{S_MASK}, s{S_MASK+1}")
    emit("s_cbranch_vccnz K2_slow_init")
    label("K2_main")
    emit(f"s_add_u32 s{S_NG}, s{S_N}, 31")
    emit(f"s_lshr_b32 s{S_NG}, s{S_NG}, 5")
    emit(f"s_cmp_eq_u32 s{S_NG}, 0")
    emit("s_cbranch_scc1 K2_empty")
    emit(f"s_mul_i32 s{S_T0}, s{S_WAVE}, {LST}")
    emit(f"s_lshl_b32 s{S_T1}, s{S_N}, 2")
    emit(f"s_add_u32 s{S_T0}, s{S_T0}, s{S_T1}")
    emit(f"s_add_u32 s{S_T0}, s{S_T0}, {L0}")
    emit(f"v_lshrrev_b32 v{R.t0}, 2, v{R.lane16}")
    emit(f"v_add_u32 v{R.t0}, s{S_T0}, v{R.t0}")
    emit(f"v_mov_b32 v{R.w0}, 0x7fffff80")
    emit(f"v_mov_b32 v{R.w0+1}, {0x1fffffe0 | TN:#x}")
    emit(f"ds_write2st64_b32 v{R.t0}, v{R.w0}, v{R.w0+1} offset0:0 offset1:{L1OFF}")
    emit(f"ds_write2st64_b32 v{R.t0}, v{R.w0}, v{R.w0+1} offset0:1 offset1:{L1OFF+1}")
    emit(f"ds_read_b128 {AO(0)}, v{R.l0a}")
    emit(f"ds_read_b32 v{R.AS}, v{R.l1b}")
    emit(f"ds_read_b128 {AO(1)}, v{R.l0a} offset:128")
    emit(f"ds_read_b32 v{R.AS+1}, v{R.l1b} offset:128")
    emit(f"ds_read_b128 {vr(R.w0,4)}, v{R.l0a} offset:256")
    emit(f"ds_read_b32 v{R.w1d}, v{R.l1b} offset:256")
    emit(f"ds_read_b32 v{R.w1n}, v{R.l1a}")
    emit("s_waitcnt lgkmcnt(5)")
    for x in dma_issue(0, R.AO, R.AS): emit(x)
    emit(f"s_cmp_lg_u32 s{S_MODE}, 0")
    emit("s_cbranch_scc1 K2_fr_done")
    frag_reads(5)
    label("K2_fr_done")
    emit("s_waitcnt lgkmcnt(0)")
    for x in dma_issue(BUF, R.AO + 4, R.AS + 1): emit(x)
    for x in nl_addr(): emit(x)
    emit(f"ds_read_b128 {AO(0)}, v{R.aoa}")
    emit(f"ds_read_b128 {AO(1)}, v{R.aoa} offset:32")
    emit(f"s_cmp_lg_u32 s{S_MODE}, 0")
    emit("s_cbranch_scc1 K2_pu_done")
    pu_block()
    label("K2_pu_done")
    for r in range(8): emit(f"v_mov_b32 v{R.AS+r}, 0")
    for r in (0, 1, 2, 3, 8, 9, 10, 11): emit(f"v_mov_b32 v{R.Z[1]+r}, 0")
    emit(f"s_mov_b32 s{S_G}, 0")
    if Opt.FIXNG: emit(f"s_movk_i32 s{S_NG}, {Opt.FIXNG}")
    if Opt.PRIO:
        emit(f"s_sub_u32 s{S_GP}, s{S_NG}, {Opt.PRIO}")
        emit(f"s_cmp_ge_u32 s{S_WAVE}, 4")
        emit(f"s_cselect_b32 s{S_GP}, -1, s{S_GP}")
    stamp()
    emit("s_waitcnt vmcnt(5)")
    stamp()
    emit(f"ds_read_b128 {AE}, v{R.rde}")
    for s in range(4): emit(f"ds_read_b128 {AX(s)}, v{R.rd+s}")
    emit("s_waitcnt lgkmcnt(0)")
    for x in dma_issue(0, R.w0, R.w1d): emit(x)
    for x in zh_mfmas(0): emit(x)
    emit("s_nop 7")
    emit("s_nop 3")
    stamp(); cstamp()
    label("K2_loop")
    group_body(0, 0)
    gtrace()
    emit(f"s_add_u32 s{S_G}, s{S_G}, 1")
    prio_check(0)
    emit(f"s_cmp_ge_u32 s{S_G}, s{S_NG}")
    emit("s_cbranch_scc1 K2_loop_exit")
    group_body(1, 128)
    gtrace()
    adv = 0 if Opt.FIXNG else 0x100
    emit(f"v_add_u32 v{R.l0a}, {adv:#x}, v{R.l0a}")
    emit(f"v_add_u32 v{R.l1a}, {adv:#x}, v{R.l1a}")
    emit(f"v_add_u32 v{R.l1b}, {adv:#x}, v{R.l1b}")
    emit(f"s_add_u32 s{S_G}, s{S_G}, 1")
    prio_check(1)
    emit(f"s_cmp_lt_u32 s{S_G}, s{S_NG}")
    emit("s_cbranch_scc1 K2_loop")
    label("K2_loop_exit")
    emit("s_nop 1")
    for x in agg_mfmas(1): emit(x)
    emit(f"s_lshr_b32 s{S_T0}, s{S_G}, 1")
    emit(f"s_lshl_b32 s{S_T0}, s{S_T0}, 8")
    emit(f"v_subrev_u32 v{R.l0a}, s{S_T0}, v{R.l0a}")
    emit(f"v_subrev_u32 v{R.l1a}, s{S_T0}, v{R.l1a}")
    emit(f"v_subrev_u32 v{R.l1b}, s{S_T0}, v{R.l1b}")
    label("K2_main_done")
    emit(f"s_cmp_lg_u32 s{S_MODE}, 0")
    emit("s_cbranch_scc1 K2_slow_next")
    label("K2_epi")
    stamp(); cstamp(); vstamp(S_NG)
    emit("s_nop 7")
    emit("s_nop 7")
    emit(f"v_and_b32 v{R.t0}, 31, v0")
    emit(f"v_lshlrev_b32 v{R.t0}, 2, v{R.t0}")
    emit(f"v_lshl_add_u32 v{R.t0}, v{R.h16}, 5, v{R.t0}")
    z = R.Z[0]
    regs = [(t, r) for r in range(13) for t in range(2)]
    def tmp(t, r): return z + 2 * r + t
    for (t, r) in regs: emit(f"v_mul_f32 v{tmp(t,r)}, s{S_C}, v{R.AGG+16*t+r}")
    for (t, r) in regs: emit(f"v_exp_f32 v{tmp(t,r)}, v{tmp(t,r)}")
    for (t, r) in regs: emit(f"v_add_f32 v{tmp(t,r)}, 1.0, v{tmp(t,r)}")
    for (t, r) in regs: emit(f"v_rcp_f32 v{tmp(t,r)}, v{tmp(t,r)}")
    for (t, r) in regs: emit(f"v_mul_f32 v{tmp(t,r)}, v{tmp(t,r)}, v{R.AGG+16*t+r}")
    for r in range(13):
        emit(f"v_cvt_pk_bf16_f32 v{R.Z[1]+r}, v{tmp(0,r)}, v{tmp(1,r)}")
    for r in range(12):
        row = (r // 4) * 8 + r % 4
        emit(f"buffer_store_dword v{R.Z[1]+r}, v{R.t0}, s[{SO}:{SO+3}], s{S_NODE0} offen offset:{row*128}")
    emit("s_mov_b64 exec, 0xffffffff")
    emit(f"buffer_store_dword v{R.Z[1]+12}, v{R.t0}, s[{SO}:{SO+3}], s{S_NODE0} offen offset:{24*128}")
    if Opt.STAMP:
        emit("s_waitcnt vmcnt(0)")
        stamp()
        emit(f"s_lshl_b32 s{S_T0}, s2, 3")
        emit(f"s_add_u32 s{S_T0}, s{S_T0}, s{S_WAVE}")
        assert _st["n"] == 13, _st["n"]; _st["n"] = 14
        emit("s_mov_b64 exec, 0xffffffff")
        emit(f"s_lshl_b32 s{S_T1}, s{S_T0}, 7")
        emit(f"s_add_u32 s{S_T1}, s{S_T1}, {STB + (2 << 20):#x}")
        emit(f"v_lshrrev_b32 v255, 2, v{R.lane16}")
        emit(f"buffer_store_dword v254, v255, s[{SW}:{SW+3}], s{S_T1} offen")
        stamp_flush(1, SW, S_T0, R.w0, S_T1)
    label("K2_end")
    emit("s_endpgm")
    label("K2_empty")
    emit(f"s_cmp_lg_u32 s{S_MODE}, 0")
    emit("s_cbranch_scc1 K2_main_done")
    frag_reads()
    pu_block()
    emit("s_branch K2_main_done")
    label("K2_slow_init")
    frag_reads()
    pu_block()
    emit(f"s_mov_b32 s{S_MODE}, 1")
    emit(f"s_mov_b32 s{S_IT}, 0")
    emit(f"s_mov_b32 s{S_P}, 0")
    emit("s_branch K2_slow_batch")
    label("K2_slow_next")
    emit(f"s_add_u32 s{S_P}, s{S_P}, 1")
    emit(f"s_cmp_lg_u32 s{S_TOT}, 0")
    emit("s_cbranch_scc1 K2_slow_batch")
    emit(f"s_mov_b32 s{S_P}, 0")
    emit(f"s_add_u32 s{S_IT}, s{S_IT}, 1")
    emit(f"s_cmp_ge_u32 s{S_IT}, 4")
    emit("s_cbranch_scc1 K2_epi")
    label("K2_slow_batch")
    emit("s_waitcnt vmcnt(0) lgkmcnt(0)")
    emit("s_barrier")
    emit(f"s_cmp_lg_u32 s{S_WAVE}, 0")
    emit("s_cbranch_scc1 K2_slow_nocnt")
    emit(f"v_and_b32 v{R.w1d}, 63, v0")
    cnt_init(R.w1d)
    label("K2_slow_nocnt")
    emit(f"v_lshrrev_b32 v{a}, 3, v0")
    emit(f"v_and_b32 v{b}, 7, v0")
    emit(f"v_lshlrev_b32 v{R.t0}, 4, v{a}")
    emit(f"s_lshl_b32 s{S_T0}, s{S_IT}, 2")
    emit(f"s_add_u32 s{S_T0}, s{S_T0}, s{S_TABO}")
    emit(f"buffer_load_dword v{R.t1}, v{R.t0}, s[{SW}:{SW+3}], s{S_T0} offen")
    emit(f"s_lshl_b32 s{S_T0}, s{S_IT}, 6")
    emit(f"v_add_u32 v{a}, s{S_T0}, v{a}")
    emit(f"s_lshl_b32 s{S_T1}, s{S_P}, 3")
    emit(f"v_add_u32 v{b}, s{S_T1}, v{b}")
    emit(f"v_cmp_gt_u32 vcc, {NCH}, v{a}")
    emit(f"v_mul_u32_u24 v{a}, {CH}, v{a}")
    emit(f"v_add_u32 v{a}, v{a}, v{b}")
    emit("s_waitcnt vmcnt(0) lgkmcnt(0)")
    emit("s_barrier")
    emit(f"v_cndmask_b32 v{R.t1}, 0, v{R.t1}, vcc")
    emit(f"v_lshrrev_b32 v{R.t0}, 16, v{R.t1}")
    emit(f"v_and_b32 v{R.t1}, 0xffff, v{R.t1}")
    emit(f"v_add_lshl_u32 v{a}, v{a}, v{R.t1}, 3")
    emit(f"v_cmp_lt_u32 vcc, v{b}, v{R.t0}")
    emit(f"v_mov_b32 v{R.w0}, 0x7ffffff0")
    emit("s_nop 1")
    emit(f"v_cndmask_b32 v{a}, v{R.w0}, v{a}, vcc")
    emit(f"buffer_load_dwordx2 v[{R.w0+2}:{R.w0+3}], v{a}, s[{SW}:{SW+3}], 0 offen")
    emit(f"v_mov_b32 v{R.t0}, 4")
    emit("s_waitcnt vmcnt(0)")
    emit(f"v_lshrrev_b32 v{a}, 27, v{R.w0+3}")
    emit("s_mov_b64 exec, vcc")
    emit(f"ds_add_rtn_u32 v{b}, v{a}, v{R.t0} offset:{CNT}")
    emit("s_waitcnt lgkmcnt(0)")
    emit(f"ds_write2st64_b32 v{b}, v{R.w0+2}, v{R.w0+3} offset0:0 offset1:{L1OFF}")
    emit("s_mov_b64 exec, -1")
    emit("s_waitcnt lgkmcnt(0)")
    emit("s_barrier")
    emit("s_branch K2_counts")

def kd(name, vgpr, sgpr):
    acc = (vgpr + 3) // 4 * 4
    out.append(".p2align 6")
    out.append(f".amdhsa_kernel {name}")
    out.append(f"  .amdhsa_next_free_vgpr {vgpr}")
    out.append(f"  .amdhsa_next_free_sgpr {sgpr}")
    out.append(f"  .amdhsa_accum_offset {acc}")
    out.append("  .amdhsa_group_segment_fixed_size 0")
    out.append("  .amdhsa_kernarg_size 80")
    out.append("  .amdhsa_user_sgpr_count 2")
    out.append("  .amdhsa_user_sgpr_kernarg_segment_ptr 1")
    out.append("  .amdhsa_system_sgpr_workgroup_id_x 1")
    out.append(".end_amdhsa_kernel")

hdr = open("standalone__edge_featured_mpnn_egc__graph.s.ref").read().split("\n")
for l in hdr:
    if l.startswith("; Override"): break
    out.append(l)
out.append(f"; @launch kernel=part_kernel grid=(252,1,1) block=({K1_T},1,1) lds={K1_LDS}")
out.append(f"; @launch kernel=cons_kernel grid=(256,1,1) block=(512,1,1) lds={K2_LDS}")
out.append('.amdgcn_target "amdgcn-amd-amdhsa--gfx950"')
out.append(".text")
gen_k1()
gen_k2()
out.append('.section .rodata,"a"')
kd("part_kernel", 64, 64 if Opt.STAMP else 32)
kd("cons_kernel", 256 if Opt.STAMP else K2_VGPR, 102 if Opt.STAMP else K2_SGPR)
print("\n".join(out))
```

```python
import sys

class Opt:
    FOLD = True
    NT_E = True
    NT_IDX = True
    NODMA = False
    NOLDS = False
    FIXNG = 0
    PRIO = 2
    XPF = 0
    STAMP = False
    DBG = False

for a in sys.argv[1:]:
    if '=' in a:
        k, v = a.split('=')
        setattr(Opt, k, type(getattr(Opt, k))(int(v)))

N = 50000; E = 800000
NB = 250; CH = 3200; NCH = 250; TN = 25
WS_REC = 0
WS_TAB = 0x700000
WS_WF = 0x780000
WS_SIZE = 0x10000000
NLOG2E = 0xbfb8aa3b

out = []
def emit(s): out.append("    " + s)
def label(s): out.append(s + ":")
def comment(s): out.append("    ; " + s)

def srd(base, ptr, size):
    emit(f"s_mov_b32 s{base}, s{ptr}")
    emit(f"s_and_b32 s{base+1}, s{ptr+1}, 0xffff")
    emit(f"s_mov_b32 s{base+2}, {size:#x}")
    emit(f"s_mov_b32 s{base+3}, 0x20000")

STB = 0xF000000
_st = {"base": 72, "n": 0}
def stamp_begin(base):
    _st["base"] = base; _st["n"] = 0
def stamp(kind="s_memrealtime"):
    if not Opt.STAMP: return
    b = _st["base"] + 2 * _st["n"]; _st["n"] += 1
    emit(f"{kind} s[{b}:{b+1}]")
def cstamp(): stamp("s_memtime")
def vstamp(sreg):
    if not Opt.STAMP: return
    b = _st["base"] + 2 * _st["n"]; _st["n"] += 1
    emit(f"s_mov_b32 s{b}, s{sreg}")
    emit(f"s_mov_b32 s{b+1}, 0")
def dbg_flush(kidx, sel, va, sa):
    emit(f"s_load_dwordx2 s[{sa+4}:{sa+5}], s[0:1], 64")
    emit("s_waitcnt lgkmcnt(0)")
    if kidx:
        emit(f"s_sub_u32 s{sa+4}, s{sa+4}, {512*kidx}")
        emit(f"s_subb_u32 s{sa+5}, s{sa+5}, 0")
    srd(sa, sa+4, 256)
    emit("s_mov_b64 exec, 1")
    emit(f"v_mov_b32 v{va+2}, 0")
    for (k, slot, kind) in sel:
        b = _st["base"] + 2 * k
        emit(f"v_mov_b32 v{va}, s{b}")
        if kind == 'min': emit(f"v_not_b32 v{va}, v{va}")
        emit(f"buffer_atomic_umax v{va}, v{va+2}, s[{sa}:{sa+3}], 0 offen offset:{4*slot}")
        emit("s_nop 1")

def stamp_flush(kidx, srdn, swave_global, va, tmp_s):
    if not Opt.STAMP: return
    if Opt.DBG:
        emit("s_waitcnt lgkmcnt(0)")
        if kidx == 0: dbg_flush(0, [(0,0,'min'),(0,1,'max'),(1,2,'max'),(4,3,'max')], va, 44)
        else: dbg_flush(1, [(0,4,'min'),(0,5,'max'),(1,6,'max'),(4,7,'min'),(4,8,'max'),(7,9,'min'),(7,10,'max'),(9,11,'min'),(9,12,'max'),(12,13,'max')], va, 32)
        return
    emit("s_waitcnt lgkmcnt(0)")
    emit("s_mov_b64 exec, 1")
    emit(f"s_lshl_b32 s{tmp_s}, s{swave_global}, 7")
    emit(f"s_add_u32 s{tmp_s}, s{tmp_s}, {STB + (kidx << 20):#x}")
    emit(f"v_mov_b32 v{va+2}, 0")
    for k in range(_st["n"]):
        b = _st["base"] + 2 * k
        emit(f"v_mov_b32 v{va}, s{b}")
        emit(f"v_mov_b32 v{va+1}, s{b+1}")
        emit(f"buffer_store_dwordx2 v[{va}:{va+1}], v{va+2}, s[{srdn}:{srdn+3}], s{tmp_s} offen offset:{8*k}")
        emit("s_nop 1")

def vr(b, n): return f"v[{b}:{b+n-1}]"

K1_HIST = 0; K1_START = 1024; K1_SORT = 2048
K1_LDS = 2048 + CH * 8
K1_T = 800

def gen_k1():
    nt = " nt" if Opt.NT_IDX else ""
    out.append(".p2align 8")
    out.append(".globl part_kernel")
    out.append(".type part_kernel,@function")
    label("part_kernel")
    emit("s_cmp_ge_u32 s2, 250")
    emit("s_cbranch_scc1 K1_wprep")
    stamp_begin(32); stamp()
    emit("s_load_dwordx4 s[4:7], s[0:1], 16")
    emit("s_load_dwordx2 s[8:9], s[0:1], 72")
    emit("v_lshlrev_b32 v1, 4, v0")
    emit("s_mul_i32 s3, s2, 12800")
    emit("v_lshlrev_b32 v2, 2, v0")
    emit("v_mov_b32 v3, 0")
    emit("v_cmp_gt_u32 vcc, 0x100, v0")
    emit("s_and_saveexec_b64 s[10:11], vcc")
    emit(f"ds_write_b32 v2, v3 offset:{K1_HIST}")
    emit("s_mov_b64 exec, s[10:11]")
    emit("v_readfirstlane_b32 s25, v0")
    emit("s_waitcnt lgkmcnt(0)")
    srd(16, 6, E * 4)
    emit(f"buffer_load_dwordx4 v[4:7], v1, s[16:19], s3 offen{nt}")
    srd(12, 4, E * 4)
    emit(f"buffer_load_dwordx4 v[8:11], v1, s[12:15], s3 offen{nt}")
    srd(20, 8, WS_SIZE)
    emit("s_mov_b32 s24, 83887")
    emit("s_mul_i32 s26, s2, 102400")
    emit("v_lshlrev_b32 v28, 7, v0")
    emit("v_add_u32 v28, s26, v28")
    emit("v_mov_b32 v29, 1")
    emit("s_movk_i32 s27, 96")
    emit("s_and_b32 s28, s2, 63")
    emit("s_lshl_b32 s28, s28, 2")
    emit("s_lshr_b32 s29, s2, 6")
    emit("s_add_u32 s28, s28, s29")
    emit("s_lshl_b32 s28, s28, 2")
    emit(f"s_add_u32 s28, s28, {WS_TAB:#x}")
    emit("s_mul_i32 s30, s2, 25600")
    emit("s_add_u32 s31, s30, 12800")
    emit("s_barrier")
    emit("s_waitcnt vmcnt(1)")
    stamp()
    for j in range(4): emit(f"v_mul_u32_u24 v{12+j}, s24, v{4+j}")
    for j in range(4): emit(f"v_lshrrev_b32 v{16+j}, 24, v{12+j}")
    for j in range(4): emit(f"v_lshlrev_b32 v{16+j}, 2, v{16+j}")
    for j in range(4): emit(f"ds_add_rtn_u32 v{20+j}, v{16+j}, v29 offset:{K1_HIST}")
    for j in range(4): emit(f"v_lshrrev_b32 v{12+j}, 21, v{12+j}")
    for j in range(4): emit(f"v_mul_u32_u24 v{24+j}, 25, v{12+j}")
    for j in range(4): emit(f"v_sub_u32 v{24+j}, v{4+j}, v{24+j}")
    for j in range(4): emit(f"v_lshl_or_b32 v{24+j}, v{12+j}, 29, v{24+j}")
    for j in range(4):
        c = ["0", "32", "64", "s27"][j]
        emit(f"v_add3_u32 v{33+2*j}, v28, v{24+j}, {c}")
    emit("s_waitcnt lgkmcnt(0)")
    emit("s_barrier")
    emit("s_cmp_lg_u32 s25, 0")
    emit("s_cbranch_scc1 K1_noscan")
    emit(f"ds_read_b128 v[40:43], v1 offset:{K1_HIST}")
    emit("v_lshlrev_b32 v52, 12, v0")
    emit("s_waitcnt lgkmcnt(0)")
    emit("v_add_u32 v44, v40, v41")
    emit("v_add_u32 v45, v44, v42")
    emit("v_add_u32 v46, v45, v43")
    emit("v_mov_b32 v47, v46")
    for sh in (1, 2, 4, 8):
        emit("s_nop 1")
        emit(f"v_add_u32_dpp v47, v47, v47 row_shr:{sh} row_mask:0xf bank_mask:0xf")
    emit("s_nop 1")
    emit("v_add_u32_dpp v47, v47, v47 row_bcast:15 row_mask:0xa bank_mask:0xf")
    emit("s_nop 1")
    emit("v_add_u32_dpp v47, v47, v47 row_bcast:31 row_mask:0xc bank_mask:0xf")
    emit("v_sub_u32 v48, v47, v46")
    emit("v_add_u32 v49, v48, v40")
    emit("v_add_u32 v50, v48, v44")
    emit("v_add_u32 v51, v48, v45")
    emit(f"ds_write_b128 v1, v[48:51] offset:{K1_START}")
    for j in range(4): emit(f"v_lshl_or_b32 v{56+j}, v{40+j}, 16, v{48+j}")
    for j in range(4): emit(f"buffer_store_dword v{56+j}, v52, s[20:23], s28 offen offset:{j*1024}")
    emit("s_waitcnt vmcnt(4) lgkmcnt(0)")
    emit("s_branch K1_scanned")
    label("K1_noscan")
    emit("s_waitcnt vmcnt(0)")
    label("K1_scanned")
    for j in range(4): emit(f"v_lshlrev_b32 v{32+2*j}, 7, v{8+j}")
    emit("s_barrier")
    stamp()
    for j in range(4): emit(f"ds_read_b32 v{24+j}, v{16+j} offset:{K1_START}")
    for j in range(4):
        emit(f"s_waitcnt lgkmcnt({3-j})" if j == 0 else "s_waitcnt lgkmcnt(3)")
        emit(f"v_add_lshl_u32 v{24+j}, v{24+j}, v{20+j}, 3")
        emit(f"ds_write_b64 v{24+j}, v[{32+2*j}:{33+2*j}] offset:{K1_SORT}")
    emit("s_waitcnt lgkmcnt(0)")
    emit("s_barrier")
    emit(f"ds_read_b128 v[4:7], v1 offset:{K1_SORT}")
    emit(f"ds_read_b128 v[8:11], v1 offset:{K1_SORT+12800}")
    emit("s_waitcnt lgkmcnt(1)")
    emit("buffer_store_dwordx4 v[4:7], v1, s[20:23], s30 offen")
    emit("s_waitcnt lgkmcnt(0)")
    emit("buffer_store_dwordx4 v[8:11], v1, s[20:23], s31 offen")
    stamp()
    if Opt.STAMP:
        emit("s_waitcnt vmcnt(0)")
        stamp()
        emit("s_lshr_b32 s25, s25, 6")
        emit("s_mul_i32 s26, s2, 13")
        emit("s_add_u32 s25, s25, s26")
        stamp_flush(0, 20, 25, 12, 26)
    emit("s_endpgm")
    label("K1_wprep")
    emit("s_cmp_ge_u32 s2, 252")
    emit("s_cbranch_scc1 K1_end")
    emit("v_readfirstlane_b32 s25, v0")
    emit("s_sub_u32 s3, s2, 250")
    emit("s_mul_i32 s3, s3, 9")
    emit("s_nop 1")
    emit("s_lshr_b32 s25, s25, 6")
    emit("s_cmp_ge_u32 s25, 9")
    emit("s_cbranch_scc1 K1_end")
    emit("s_add_u32 s3, s3, s25")
    emit("s_cmp_ge_u32 s3, 17")
    emit("s_cbranch_scc1 K1_end")
    emit("s_load_dwordx4 s[4:7], s[0:1], 32")
    emit("s_load_dwordx2 s[8:9], s[0:1], 48")
    emit("s_load_dwordx2 s[10:11], s[0:1], 72")
    emit("v_and_b32 v0, 63, v0")
    emit("v_and_b32 v1, 31, v0")
    emit("v_lshlrev_b32 v1, 2, v1")
    emit("v_lshrrev_b32 v2, 5, v0")
    emit("v_lshl_add_u32 v1, v2, 10, v1")
    emit("v_lshlrev_b32 v2, 4, v0")
    emit("s_waitcnt lgkmcnt(0)")
    emit("s_cmp_lt_u32 s3, 13")
    emit("s_cselect_b32 s12, s6, s4")
    emit("s_cselect_b32 s13, s7, s5")
    emit("s_cselect_b32 s26, 9, 13")
    emit("s_cmp_lt_u32 s3, 9")
    emit("s_cselect_b32 s12, s8, s12")
    emit("s_cselect_b32 s13, s9, s13")
    emit("s_cselect_b32 s26, 0, s26")
    emit("s_movk_i32 s27, 0x2000")
    emit("s_cselect_b32 s14, 0x4800, s27")
    emit("s_and_b32 s13, s13, 0xffff")
    emit("s_mov_b32 s15, 0x20000")
    srd(20, 10, WS_SIZE)
    emit("s_sub_u32 s26, s3, s26")
    emit("s_lshl_b32 s26, s26, 11")
    for q in range(8):
        emit(f"buffer_load_dword v{4+q}, v1, s[12:15], s26 offen offset:{q*128}")
    emit("s_lshl_b32 s27, s3, 11")
    emit(f"s_add_u32 s27, s27, {WS_WF:#x}")
    emit("s_mov_b32 s28, 0x05040100")
    emit("s_mov_b32 s29, 0x07060302")
    emit("s_waitcnt vmcnt(0)")
    if Opt.FOLD:
        emit("s_sub_u32 s30, s3, 4")
        emit("s_cmp_lt_u32 s30, 5")
        emit("s_cbranch_scc0 K1_wplain")
        emit(f"s_mov_b32 s30, {NLOG2E:#x}")
        for q in range(8):
            emit(f"v_lshlrev_b32 v{12+q}, 16, v{4+q}")
            emit(f"v_and_b32 v{20+q}, 0xffff0000, v{4+q}")
        for q in range(16):
            emit(f"v_mul_f32 v{12+q}, s30, v{12+q}")
        for j in range(4):
            emit(f"v_cvt_pk_bf16_f32 v{28+j}, v{12+2*j}, v{13+2*j}")
            emit(f"v_cvt_pk_bf16_f32 v{32+j}, v{20+2*j}, v{21+2*j}")
        emit("s_branch K1_wstore")
        label("K1_wplain")
    for j in range(4):
        emit(f"v_perm_b32 v{28+j}, v{5+2*j}, v{4+2*j}, s28")
        emit(f"v_perm_b32 v{32+j}, v{5+2*j}, v{4+2*j}, s29")
    label("K1_wstore")
    emit("buffer_store_dwordx4 v[28:31], v2, s[20:23], s27 offen")
    emit("buffer_store_dwordx4 v[32:35], v2, s[20:23], s27 offen offset:1024")
    label("K1_end")
    emit("s_endpgm")

CNT = 0
AOT = 64
SM = AOT + 2560; SM_W = 2560
STG0 = SM + 8 * SM_W
assert STG0 % 16 == 0
BUFW = 5120
BUF = 8 * BUFW
WFL = STG0 + BUF
L0 = STG0 + 2 * BUF
CAP = 576; CAPT = 704
LST = CAPT * 4
L1 = L0 + 8 * LST
K2_LDS = L1 + 8 * LST
L1OFF = (L1 - L0) // 256
assert (L1 - L0) % 256 == 0 and K2_LDS <= 163840 and L0 % 16 == 0

class R: pass
_next = [1]
def alloc(n, align=1):
    b = _next[0]
    b = (b + align - 1) // align * align
    _next[0] = b + n
    return b
R.lane16 = alloc(1); R.dmab = alloc(1); R.rde = alloc(1)
R.rd = alloc(4)
R.l0a = alloc(1); R.l1a = alloc(1); R.h16 = alloc(1); R.aoc = alloc(1); R.sc = alloc(1); R.sr = alloc(1)
R.one = alloc(1); R.zero = alloc(1); R.eh16 = alloc(1); R.l1b = alloc(1)
R.w1d = alloc(1); R.w1n = alloc(1); R.aoa = alloc(1); R.sa = alloc(1); R.t0 = alloc(1); R.t1 = alloc(1)
R.w0 = alloc(4, 4)
R.WB = alloc(32, 4); R.WC = alloc(8, 4); R.WV = alloc(32, 4); R.P = alloc(16, 4)
R.AGG = alloc(32, 4)
R.Z = [alloc(16, 4), 0]; R.H = [alloc(16, 4), 0]
R.Z[1] = alloc(16, 4); R.H[1] = alloc(16, 4)
R.AX = alloc(16, 4); R.AE = alloc(4, 4); R.AO = alloc(8, 4); R.AS = alloc(8, 4)
K2_VGPR = _next[0]
assert K2_VGPR <= 256, K2_VGPR

SX = 8; SE = 12; SO = 16; SW = 20
S_B = 3; S_WAVE = 4; S_NG = 5; S_G = 6; S_MODE = 7
S_STG = 24; S_MSKE = 25; S_80 = 26; S_N = 27; S_IT = 28; S_P = 29; S_TOT = 30; S_T0 = 31
S_MASK = 32
S_T1 = 64; S_T2 = 65; S_C = 66; S_TABO = 67; S_NODE0 = 68; S_T3 = 69; S_GP = 70; S_TILE = 71
K2_SGPR = 72

def WB(s, t): return vr(R.WB + (s * 2 + t) * 4, 4)
def WV(s, t): return vr(R.WV + (s * 2 + t) * 4, 4)
def WC(t): return vr(R.WC + t * 4, 4)
def PP(s, t): return vr(R.P + (s * 2 + t) * 4, 4)
def AX(s): return vr(R.AX + s * 4, 4)
def AO(s): return vr(R.AO + s * 4, 4)
def AS(s): return vr(R.AS + s * 4, 4)
AE = vr(R.AE, 4)
def AGG(t): return vr(R.AGG + t * 16, 16)
def Zr(t): return vr(R.Z[t], 16)
def Hr(t): return vr(R.H[t], 16)
def mfma(d, a, b, c): return f"v_mfma_f32_32x32x16_bf16 {d}, {a}, {b}, {c}"

def zh_mfmas(t):
    z, h = Zr(t), Hr(t)
    m = [mfma(z, AO(0), PP(0, t), "0"), mfma(z, AO(1), PP(1, t), z), mfma(z, AE, WC(t), z)]
    for s in range(4):
        m.append(mfma(z, AX(s), WB(s, t), z))
        m.append(mfma(h, AX(s), WV(s, t), "0" if s == 0 else h))
    return m

def agg_mfmas(t):
    return [mfma(AGG(t), AS(0), vr(R.Z[t], 4), AGG(t)), mfma(AGG(t), AS(1), vr(R.Z[t] + 8, 4), AGG(t))]

def sig_stream(t):
    z, h = R.Z[t], R.H[t]
    st = []
    for m in range(4):
        rs = [4 * m + i for i in range(4)]
        if not Opt.FOLD:
            for r in rs: st.append((f"v_mul_f32 v{z+r}, s{S_C}, v{z+r}", 4))
        for r in rs: st.append((f"v_exp_f32 v{z+r}, v{z+r}", 8))
        for r in rs: st.append((f"v_add_f32 v{z+r}, 1.0, v{z+r}", 4))
        for r in rs: st.append((f"v_rcp_f32 v{z+r}, v{z+r}", 8))
        for r in rs: st.append((f"v_mul_f32 v{z+r}, v{z+r}, v{h+r}", 4))
        d = 8 * (m // 2) + 2 * (m % 2)
        st.append((f"v_cvt_pk_bf16_f32 v{z+d}, v{z+4*m}, v{z+4*m+1}", 4))
        st.append((f"v_cvt_pk_bf16_f32 v{z+d+1}, v{z+4*m+2}, v{z+4*m+3}", 4))
    return st

def dma_issue(bufoff, w0, w1):
    nte = " nt" if Opt.NT_E else ""
    seq = [f"s_add_u32 m0, s{S_STG}, {bufoff}"]
    for t in range(4):
        seq.append(f"v_xad_u32 v{w0+t}, v{R.dmab}, {16*t}, v{w0+t}")
        seq.append(f"buffer_load_dwordx4 v{w0+t}, s[{SX}:{SX+3}], 0 offen lds")
        seq.append("s_add_u32 m0, m0, 0x400")
    seq.append(f"v_and_or_b32 v{w1}, v{w1}, s{S_MSKE}, v{R.eh16}")
    seq.append(f"buffer_load_dwordx4 v{w1}, s[{SE}:{SE+3}], 0 offen{nte} lds")
    return seq

def nl_addr():
    return [f"v_and_b32 v{R.w1n}, 31, v{R.w1n}",
            f"v_mad_u32_u24 v{R.aoa}, v{R.w1n}, s{S_80}, v{R.aoc}",
            f"v_mad_u32_u24 v{R.sa}, v{R.w1n}, s{S_80}, v{R.sc}"]

def interleave(valu, mfmas, after, pre=None):
    pre = pre or {}
    def keep(x):
        if Opt.NODMA and (x.startswith("buffer_load") or "vmcnt" in x): return False
        if Opt.NOLDS and (x.startswith("ds_") or "lgkmcnt" in x): return False
        return True
    total = sum(c for _, c in valu)
    n = len(mfmas)
    tail = 48 if not Opt.FOLD else 56
    spacing = (total - tail) / (n - 1)
    k = 0; cum = 0
    for ins, c in valu:
        while k < n and cum >= k * spacing - 1e-9:
            for x in pre.get(k, []):
                if keep(x): emit(x)
            emit(mfmas[k])
            for x in after.get(k, []):
                if keep(x): emit(x)
            k += 1
        emit(ins); cum += c
    assert k == n, (k, n)

def group_body(par, lo):
    nb = BUF * (1 - par)
    m = agg_mfmas(1) + zh_mfmas(1)
    after = {
        0: [f"ds_read_b32 v{R.w1n}, v{R.l1a} offset:{lo+128}"],
        1: [f"ds_write_b16 v{R.sa}, v{R.one}",
            f"ds_read_b128 {AS(0)}, v{R.sr}",
            f"ds_read_b128 {AS(1)}, v{R.sr} offset:32",
            f"ds_write_b16 v{R.sa}, v{R.zero}"],
        3: ["s_waitcnt lgkmcnt(4)"] + nl_addr() +
           [f"ds_read_b128 {AO(0)}, v{R.aoa}", f"ds_read_b128 {AO(1)}, v{R.aoa} offset:32"],
        4: ["s_waitcnt vmcnt(5)", f"ds_read_b128 {AE}, v{R.rde} offset:{nb}"],
        6: [f"ds_read_b128 {AX(0)}, v{R.rd} offset:{nb}"],
        8: [f"ds_read_b128 {AX(1)}, v{R.rd+1} offset:{nb}"],
        10: [f"ds_read_b128 {AX(2)}, v{R.rd+2} offset:{nb}",
             f"ds_read_b128 {vr(R.w0,4)}, v{R.l0a} offset:{lo+384}",
             f"ds_read_b32 v{R.w1d}, v{R.l1b} offset:{lo+384}"],
        12: [f"ds_read_b128 {AX(3)}, v{R.rd+3} offset:{nb}"],
    }
    interleave(sig_stream(0), m, after)
    m = agg_mfmas(0) + zh_mfmas(0)
    d = dma_issue(nb, R.w0, R.w1d)
    pre = {0: ["s_waitcnt lgkmcnt(1)"]}
    after = {1: ["s_waitcnt lgkmcnt(0)"] + d[0:4], 2: d[4:7], 3: d[7:10], 4: d[10:13], 5: d[13:15]}
    interleave(sig_stream(1), m, after, pre)

def gtrace():
    if not Opt.STAMP: return
    emit("s_memtime s[100:101]")
    emit("s_waitcnt lgkmcnt(0)")
    emit(f"s_mov_b32 m0, s{S_G}")
    emit("s_nop 0")
    emit(f"v_writelane_b32 v254, s100, m0")

def prio_check(tag):
    if not Opt.PRIO: return
    emit(f"s_cmp_lg_u32 s{S_G}, s{S_GP}")
    emit(f"s_cbranch_scc1 K2_np{tag}")
    emit("s_setprio 0")
    label(f"K2_np{tag}")

def frag_reads(younger=0):
    emit(f"s_waitcnt vmcnt({younger})")
    emit("s_barrier")
    emit(f"v_add_u32 v{R.t0}, {WFL}, v{R.lane16}")
    for sx in range(4):
        for t in range(2):
            emit(f"ds_read_b128 {vr([R.Z[1],R.H[1]][t]+4*sx,4)}, v{R.t0} offset:{(26+2*sx+t)*1024}")
    for sx in range(4):
        for t in range(2):
            emit(f"ds_read_b128 {vr([R.Z[0],R.H[0]][t]+4*sx,4)}, v{R.t0} offset:{(2*sx+t)*1024}")
    for f in range(8):
        emit(f"ds_read_b128 {vr(R.WB+4*f,4)}, v{R.t0} offset:{(8+f)*1024}")
    for f in range(2):
        emit(f"ds_read_b128 {vr(R.WC+4*f,4)}, v{R.t0} offset:{(16+f)*1024}")
    for f in range(8):
        emit(f"ds_read_b128 {vr(R.WV+4*f,4)}, v{R.t0} offset:{(18+f)*1024}")
    emit("s_waitcnt lgkmcnt(0)")
    emit("s_barrier")

def pu_block():
    aw = [R.Z[0], R.H[0]]; uu = [R.Z[1], R.H[1]]
    for t in range(2):
        for sx in range(4):
            emit(mfma(AGG(t), AX(sx), vr(uu[t] + 4 * sx, 4), "0" if sx == 0 else AGG(t)))
    for t in range(2):
        for sx in range(4):
            emit(mfma(vr(uu[t], 16), AX(sx), vr(aw[t] + 4 * sx, 4), "0" if sx == 0 else vr(uu[t], 16)))
    emit("s_nop 7")
    for t in range(2):
        if t == 1 and not Opt.FOLD: emit("s_nop 3")
        if Opt.FOLD:
            for r in range(16):
                emit(f"v_mul_f32 v{uu[t]+r}, s{S_C}, v{uu[t]+r}")
        for sx in range(2):
            for j in range(4):
                emit(f"v_cvt_pk_bf16_f32 v{R.P+(sx*2+t)*4+j}, v{uu[t]+8*sx+2*j}, v{uu[t]+8*sx+2*j+1}")

def cnt_init(lane):
    emit(f"v_and_b32 v{R.w0+1}, 7, v{lane}")
    emit(f"v_mul_u32_u24 v{R.aoa}, {LST}, v{R.w0+1}")
    emit(f"v_add_u32 v{R.aoa}, {L0}, v{R.aoa}")
    emit(f"v_lshlrev_b32 v{R.w0+1}, 2, v{R.w0+1}")
    emit(f"ds_write_b32 v{R.w0+1}, v{R.aoa} offset:{CNT}")

def gen_k2():
    out.append(".p2align 8")
    out.append(".globl cons_kernel")
    out.append(".type cons_kernel,@function")
    label("cons_kernel")
    emit("s_cmp_ge_u32 s2, 256")
    emit("s_cbranch_scc1 K2_end")
    emit("s_and_b32 s3, s2, 7")
    emit("s_lshl_b32 s3, s3, 5")
    emit("s_lshr_b32 s4, s2, 3")
    emit(f"s_add_u32 s{S_B}, s3, s4")
    emit(f"s_cmp_ge_u32 s{S_B}, {NB}")
    emit("s_cbranch_scc1 K2_end")
    stamp_begin(72); stamp()
    if Opt.STAMP: emit("s_memtime s[98:99]")
    emit("s_load_dwordx2 s[38:39], s[0:1], 72")
    emit("s_load_dwordx4 s[32:35], s[0:1], 0")
    emit("s_load_dwordx2 s[36:37], s[0:1], 56")
    t0, t1 = R.t0, R.t1
    emit(f"v_lshrrev_b32 v{t0}, 6, v0")
    emit(f"v_and_b32 v{t1}, 63, v0")
    emit(f"v_readfirstlane_b32 s{S_WAVE}, v{t0}")
    emit(f"v_lshlrev_b32 v{R.lane16}, 4, v{t1}")
    emit(f"v_lshrrev_b32 v{t0}, 3, v0")
    emit(f"v_lshlrev_b32 v{R.w0}, 4, v{t0}")
    emit(f"s_lshl_b32 s{S_TABO}, s{S_B}, 10")
    emit(f"s_add_u32 s{S_TABO}, s{S_TABO}, {WS_TAB:#x}")
    if Opt.PRIO: emit("s_setprio 1")
    emit("s_waitcnt lgkmcnt(0)")
    srd(SW, 38, WS_SIZE)
    emit(f"buffer_load_dwordx4 {AO(0)}, v{R.w0}, s[{SW}:{SW+3}], s{S_TABO} offen")
    srd(SX, 32, N * 128)
    srd(SE, 34, E * 32)
    srd(SO, 36, N * 128)
    i, h = R.w1n, R.w1d
    emit(f"v_and_b32 v{i}, 31, v{t1}")
    emit(f"v_lshrrev_b32 v{h}, 5, v{t1}")
    emit(f"v_lshlrev_b32 v{R.h16}, 4, v{h}")
    emit(f"s_mul_i32 s{S_STG}, s{S_WAVE}, {BUFW}")
    emit(f"s_add_u32 s{S_STG}, s{S_STG}, {STG0}")
    emit(f"v_and_b32 v{t0}, 7, v{t1}")
    emit(f"v_lshlrev_b32 v{R.dmab}, 2, v{h}")
    emit(f"v_xor_b32 v{R.dmab}, v{R.dmab}, v{t0}")
    emit(f"v_lshlrev_b32 v{R.dmab}, 4, v{R.dmab}")
    emit(f"s_mul_i32 s{S_NODE0}, s{S_B}, 200")
    emit(f"s_mul_i32 s{S_T0}, s{S_WAVE}, {TN}")
    emit(f"s_add_u32 s{S_NODE0}, s{S_NODE0}, s{S_T0}")
    emit(f"s_lshl_b32 s{S_NODE0}, s{S_NODE0}, 7")
    emit(f"v_lshrrev_b32 v{t0}, 3, v{t1}")
    emit(f"v_lshlrev_b32 v{t0}, 9, v{t0}")
    emit(f"s_mov_b32 m0, s{S_STG}")
    emit(f"s_mov_b32 s{S_T0}, s{S_NODE0}")
    for t in range(4):
        emit(f"v_xad_u32 v{R.AE+t}, v{R.dmab}, {16*t}, v{t0}")
        emit(f"buffer_load_dwordx4 v{R.AE+t}, s[{SX}:{SX+3}], s{S_T0} offen lds")
        emit("s_add_u32 m0, m0, 0x400")
        emit(f"s_add_u32 s{S_T0}, s{S_T0}, 128")
    emit(f"s_mov_b32 s{S_MSKE}, 0x1fffffe0")
    emit(f"s_movk_i32 s{S_80}, 80")
    emit(f"s_mov_b32 s{S_C}, {NLOG2E:#x}")
    emit(f"s_mov_b32 s{S_MODE}, 0")
    emit(f"v_mov_b32 v{R.one}, 0x3f80")
    emit(f"v_mov_b32 v{R.zero}, 0")
    a, b = R.aoa, R.sa
    emit(f"v_and_b32 v{t0}, 19, v{i}")
    emit(f"v_and_b32 v{a}, 4, v{i}")
    emit(f"v_lshl_or_b32 v{t0}, v{a}, 1, v{t0}")
    emit(f"v_and_b32 v{a}, 8, v{i}")
    emit(f"v_lshrrev_b32 v{a}, 1, v{a}")
    emit(f"v_or_b32 v{t0}, v{t0}, v{a}")
    emit(f"v_lshlrev_b32 v{t0}, 1, v{t0}")
    emit(f"s_mul_i32 s{S_T0}, s{S_WAVE}, {SM_W}")
    emit(f"s_add_u32 s{S_T0}, s{S_T0}, {SM}")
    emit(f"v_add_u32 v{R.sc}, s{S_T0}, v{t0}")
    emit(f"v_mad_u32_u24 v{a}, v{i}, s{S_80}, v{R.h16}")
    emit(f"v_add_u32 v{R.sr}, s{S_T0}, v{a}")
    emit(f"v_add_u32 v{R.aoc}, {AOT}, v{R.h16}")
    emit(f"v_mov_b32 v{R.w0+2}, 0")
    emit(f"v_mov_b32 v{R.w0+3}, 0")
    emit(f"v_lshlrev_b32 v{b}, 3, v{t1}")
    emit(f"s_cmp_lg_u32 s{S_WAVE}, 0")
    emit("s_cbranch_scc1 K2_noinit")
    cnt_init(t1)
    for k in range(5):
        emit(f"ds_write_b64 v{b}, v[{R.w0+2}:{R.w0+3}] offset:{AOT+512*k}")
    emit(f"v_mad_u32_u24 v{a}, v{i}, s{S_80}, v{t0}")
    emit(f"ds_write_b16 v{a}, v{R.one} offset:{AOT}")
    label("K2_noinit")
    emit(f"v_add_u32 v{a}, s{S_T0}, v{b}")
    for k in range(5):
        emit(f"ds_write_b64 v{a}, v[{R.w0+2}:{R.w0+3}] offset:{512*k}")
    emit(f"v_lshrrev_b32 v{a}, 3, v0")
    emit(f"v_and_b32 v{b}, 7, v0")
    emit(f"v_lshlrev_b32 v{b}, 1, v{b}")
    emit(f"v_mul_u32_u24 v{t0}, {CH}, v{a}")
    emit(f"v_add_u32 v{t0}, v{t0}, v{b}")
    emit(f"v_cmp_gt_u32 vcc, {NCH-3*64}, v{a}")
    emit(f"v_mov_b32 v{R.w0}, 0x7ffffff0")
    emit("s_waitcnt lgkmcnt(0)")
    emit("s_barrier")
    emit("s_waitcnt vmcnt(4)")
    stamp()
    BASE = R.AO; REM = R.AO + 4
    emit(f"v_cndmask_b32 v{BASE+3}, 0, v{BASE+3}, vcc")
    for it in range(4):
        emit(f"v_lshrrev_b32 v{REM+it}, 16, v{BASE+it}")
        emit(f"v_sub_u32 v{REM+it}, v{REM+it}, v{b}")
        emit(f"v_and_b32 v{BASE+it}, 0xffff, v{BASE+it}")
        emit(f"v_add_u32 v{BASE+it}, {it*64*CH}, v{BASE+it}")
        emit(f"v_add_lshl_u32 v{BASE+it}, v{BASE+it}, v{t0}, 3")
    REC = R.Z[0]
    RK = R.Z[1]; TA = R.H[1]
    assert R.H[0] == R.Z[0] + 16
    def msk(k): return f"s[{S_MASK+2*k}:{S_MASK+2*k+1}]"
    def rec_loads():
        for l in range(8):
            it, p = l // 2, l % 2
            emit(f"v_cmp_lt_i32 {msk(2*l)}, {16*p}, v{REM+it}")
        for l in range(8):
            it, p = l // 2, l % 2
            tmp = R.w0 + 1 + (l % 3)
            emit(f"v_cndmask_b32 v{tmp}, v{R.w0}, v{BASE+it}, {msk(2*l)}")
            emit(f"buffer_load_dwordx4 {vr(REC+4*l,4)}, v{tmp}, s[{SW}:{SW+3}], 0 offen offset:{128*p}")
        for l in range(8):
            it, p = l // 2, l % 2
            emit(f"v_cmp_lt_i32 {msk(2*l+1)}, {16*p+1}, v{REM+it}")
    rec_loads()
    NLATE = 0
    if Opt.XPF:
        emit(f"s_lshr_b32 s{S_T0}, s2, 3")
        emit(f"s_lshl_b32 s{S_T0}, s{S_T0}, 3")
        emit(f"s_add_u32 s{S_T0}, s{S_T0}, s{S_WAVE}")
        emit(f"s_mul_i32 s{S_T0}, s{S_T0}, {Opt.XPF*8192}")
        emit(f"v_lshlrev_b32 v{t0}, 7, v{t1}")
        for k in range(Opt.XPF):
            emit(f"buffer_load_dword v{R.AE+k%4}, v{t0}, s[{SX}:{SX+3}], s{S_T0} offen")
            if k < Opt.XPF - 1: emit(f"s_add_u32 s{S_T0}, s{S_T0}, 0x2000")
        NLATE += Opt.XPF
    emit(f"v_and_b32 v{a}, 1, v{t1}")
    emit(f"v_xor_b32 v{a}, v{a}, v{h}")
    emit(f"v_lshlrev_b32 v{R.eh16}, 4, v{a}")
    emit(f"v_lshrrev_b32 v{a}, 4, v{i}")
    emit(f"v_xor_b32 v{a}, v{a}, v{h}")
    emit(f"v_lshlrev_b32 v{a}, 4, v{a}")
    emit(f"v_lshl_add_u32 v{a}, v{i}, 5, v{a}")
    emit(f"v_add_u32 v{R.rde}, s{S_STG}, v{a}")
    emit(f"v_add_u32 v{R.rde}, 0x1000, v{R.rde}")
    emit(f"v_and_b32 v{a}, 3, v{i}")
    emit(f"v_lshrrev_b32 v{b}, 4, v{i}")
    emit(f"v_lshl_add_u32 v{b}, v{b}, 2, v{a}")
    emit(f"v_xor_b32 v{b}, v{b}, v{h}")
    emit(f"v_lshlrev_b32 v{b}, 4, v{b}")
    emit(f"v_lshlrev_b32 v{a}, 10, v{a}")
    emit(f"v_lshrrev_b32 v{t0}, 2, v{i}")
    emit(f"v_lshl_add_u32 v{a}, v{t0}, 7, v{a}")
    emit(f"v_add_u32 v{a}, s{S_STG}, v{a}")
    emit(f"s_movk_i32 s{S_T0}, 96")
    for s in range(4):
        c = ["0", "32", "64", f"s{S_T0}"][s]
        emit(f"v_xad_u32 v{R.rd+s}, v{b}, {c}, v{a}")
    emit(f"s_mul_i32 s{S_T0}, s{S_WAVE}, {LST}")
    emit(f"s_add_u32 s{S_T0}, s{S_T0}, {L0}")
    emit(f"v_lshrrev_b32 v{a}, 3, v{t1}")
    emit(f"v_lshlrev_b32 v{a}, 4, v{a}")
    emit(f"v_add_u32 v{R.l0a}, s{S_T0}, v{a}")
    emit(f"v_lshlrev_b32 v{a}, 2, v{i}")
    emit(f"v_add_u32 v{a}, s{S_T0}, v{a}")
    emit(f"v_add_u32 v{R.l1a}, {L1-L0}, v{a}")
    emit(f"v_lshrrev_b32 v{a}, 1, v{t1}")
    emit(f"v_lshlrev_b32 v{a}, 2, v{a}")
    emit(f"v_add_u32 v{a}, s{S_T0}, v{a}")
    emit(f"v_add_u32 v{R.l1b}, {L1-L0}, v{a}")
    emit(f"v_mov_b32 v{R.t0}, 4")
    emit(f"s_mov_b32 s{S_T3}, {L1-4}")
    stamp()
    def weights_dma():
        emit(f"s_lshl_b32 s{S_T0}, s{S_WAVE}, 10")
        emit(f"s_add_u32 s{S_T1}, s{S_T0}, {WS_WF:#x}")
        emit(f"s_add_u32 m0, s{S_T0}, {WFL}")
        for k in range(5):
            emit("s_nop 0")
            emit(f"buffer_load_dwordx4 v{R.lane16}, s[{SW}:{SW+3}], s{S_T1} offen lds")
            if k < 4:
                emit("s_add_u32 m0, m0, 0x2000")
                emit(f"s_add_u32 s{S_T1}, s{S_T1}, 0x2000")
    def collect(first):
        for l in range(8):
            emit(f"s_waitcnt vmcnt({NLATE+7-l})" if first else ("s_waitcnt vmcnt(0)" if l == 0 else "s_nop 0"))
            if first and l == 0: stamp()
            for r in range(2):
                k = 2 * l + r
                emit(f"v_lshrrev_b32 v{TA+k}, 27, v{REC+4*l+2*r+1}")
            for r in range(2):
                k = 2 * l + r
                emit(f"s_mov_b64 exec, {msk(k)}")
                emit(f"ds_add_rtn_u32 v{RK+k}, v{TA+k}, v{R.t0} offset:{CNT}")
            emit("s_mov_b64 exec, -1")
        if first: weights_dma()
        for it in range(4):
            emit(f"v_subrev_u32 v{REM+it}, 32, v{REM+it}")
            emit(f"v_add_u32 v{BASE+it}, 0x100, v{BASE+it}")
        emit(f"v_max3_i32 v{R.t1}, v{REM}, v{REM+1}, v{REM+2}")
        emit(f"v_max_i32 v{R.t1}, v{R.t1}, v{REM+3}")
        emit(f"v_cmp_lt_i32 vcc, 0, v{R.t1}")
        emit("s_waitcnt lgkmcnt(0)")
        for k in range(16):
            emit(f"v_min_u32 v{RK+k}, s{S_T3}, v{RK+k}")
        for k in range(16):
            emit(f"s_mov_b64 exec, {msk(k)}")
            emit(f"ds_write2st64_b32 v{RK+k}, v{REC+2*k}, v{REC+2*k+1} offset0:0 offset1:{L1OFF}")
        emit("s_mov_b64 exec, -1")
    collect(True)
    emit("s_cbranch_vccz K2_collected")
    label("K2_collect_more")
    emit("s_waitcnt lgkmcnt(0)")
    rec_loads()
    collect(False)
    emit("s_cbranch_vccnz K2_collect_more")
    label("K2_collected")
    for s in range(4): emit(f"ds_read_b128 {AX(s)}, v{R.rd+s}")
    emit("s_waitcnt lgkmcnt(0)")
    emit("s_barrier")
    stamp()
    label("K2_counts")
    emit(f"v_and_b32 v{R.t0}, 7, v0")
    emit(f"v_lshlrev_b32 v{R.t1}, 2, v{R.t0}")
    emit(f"ds_read_b32 v{R.t1}, v{R.t1} offset:{CNT}")
    emit(f"v_mul_u32_u24 v{R.t0}, {LST}, v{R.t0}")
    emit(f"v_add_u32 v{R.t0}, {L0}, v{R.t0}")
    emit("s_waitcnt lgkmcnt(0)")
    emit(f"v_sub_u32 v{R.t1}, v{R.t1}, v{R.t0}")
    emit(f"v_lshrrev_b32 v{R.t1}, 2, v{R.t1}")
    emit(f"v_cmp_lt_u32 vcc, {CAP}, v{R.t1}")
    emit(f"v_cmp_ne_u32 s[{S_MASK}:{S_MASK+1}], 0, v{R.t1}")
    emit(f"v_readlane_b32 s{S_N}, v{R.t1}, s{S_WAVE}")
    emit("s_nop 3")
    emit(f"s_or_b32 s{S_TOT}, s{S_MASK}, s{S_MASK+1}")
    emit("s_cbranch_vccnz K2_slow_init")
    label("K2_main")
    emit(f"s_add_u32 s{S_NG}, s{S_N}, 31")
    emit(f"s_lshr_b32 s{S_NG}, s{S_NG}, 5")
    emit(f"s_cmp_eq_u32 s{S_NG}, 0")
    emit("s_cbranch_scc1 K2_empty")
    emit(f"s_mul_i32 s{S_T0}, s{S_WAVE}, {LST}")
    emit(f"s_lshl_b32 s{S_T1}, s{S_N}, 2")
    emit(f"s_add_u32 s{S_T0}, s{S_T0}, s{S_T1}")
    emit(f"s_add_u32 s{S_T0}, s{S_T0}, {L0}")
    emit(f"v_lshrrev_b32 v{R.t0}, 2, v{R.lane16}")
    emit(f"v_add_u32 v{R.t0}, s{S_T0}, v{R.t0}")
    emit(f"v_mov_b32 v{R.w0}, 0x7fffff80")
    emit(f"v_mov_b32 v{R.w0+1}, {0x1fffffe0 | TN:#x}")
    emit(f"ds_write2st64_b32 v{R.t0}, v{R.w0}, v{R.w0+1} offset0:0 offset1:{L1OFF}")
    emit(f"ds_write2st64_b32 v{R.t0}, v{R.w0}, v{R.w0+1} offset0:1 offset1:{L1OFF+1}")
    emit(f"ds_read_b128 {AO(0)}, v{R.l0a}")
    emit(f"ds_read_b32 v{R.AS}, v{R.l1b}")
    emit(f"ds_read_b128 {AO(1)}, v{R.l0a} offset:128")
    emit(f"ds_read_b32 v{R.AS+1}, v{R.l1b} offset:128")
    emit(f"ds_read_b128 {vr(R.w0,4)}, v{R.l0a} offset:256")
    emit(f"ds_read_b32 v{R.w1d}, v{R.l1b} offset:256")
    emit(f"ds_read_b32 v{R.w1n}, v{R.l1a}")
    emit("s_waitcnt lgkmcnt(5)")
    for x in dma_issue(0, R.AO, R.AS): emit(x)
    emit(f"s_cmp_lg_u32 s{S_MODE}, 0")
    emit("s_cbranch_scc1 K2_fr_done")
    frag_reads(5)
    label("K2_fr_done")
    emit("s_waitcnt lgkmcnt(0)")
    for x in dma_issue(BUF, R.AO + 4, R.AS + 1): emit(x)
    for x in nl_addr(): emit(x)
    emit(f"ds_read_b128 {AO(0)}, v{R.aoa}")
    emit(f"ds_read_b128 {AO(1)}, v{R.aoa} offset:32")
    emit(f"s_cmp_lg_u32 s{S_MODE}, 0")
    emit("s_cbranch_scc1 K2_pu_done")
    pu_block()
    label("K2_pu_done")
    for r in range(8): emit(f"v_mov_b32 v{R.AS+r}, 0")
    for r in (0, 1, 2, 3, 8, 9, 10, 11): emit(f"v_mov_b32 v{R.Z[1]+r}, 0")
    emit(f"s_mov_b32 s{S_G}, 0")
    if Opt.FIXNG: emit(f"s_movk_i32 s{S_NG}, {Opt.FIXNG}")
    if Opt.PRIO:
        emit(f"s_sub_u32 s{S_GP}, s{S_NG}, {Opt.PRIO}")
        emit(f"s_cmp_ge_u32 s{S_WAVE}, 4")
        emit(f"s_cselect_b32 s{S_GP}, -1, s{S_GP}")
    stamp()
    emit("s_waitcnt vmcnt(5)")
    stamp()
    emit(f"ds_read_b128 {AE}, v{R.rde}")
    for s in range(4): emit(f"ds_read_b128 {AX(s)}, v{R.rd+s}")
    emit("s_waitcnt lgkmcnt(0)")
    for x in dma_issue(0, R.w0, R.w1d): emit(x)
    for x in zh_mfmas(0): emit(x)
    emit("s_nop 7")
    emit("s_nop 3")
    stamp(); cstamp()
    label("K2_loop")
    group_body(0, 0)
    gtrace()
    emit(f"s_add_u32 s{S_G}, s{S_G}, 1")
    prio_check(0)
    emit(f"s_cmp_ge_u32 s{S_G}, s{S_NG}")
    emit("s_cbranch_scc1 K2_loop_exit")
    group_body(1, 128)
    gtrace()
    adv = 0 if Opt.FIXNG else 0x100
    emit(f"v_add_u32 v{R.l0a}, {adv:#x}, v{R.l0a}")
    emit(f"v_add_u32 v{R.l1a}, {adv:#x}, v{R.l1a}")
    emit(f"v_add_u32 v{R.l1b}, {adv:#x}, v{R.l1b}")
    emit(f"s_add_u32 s{S_G}, s{S_G}, 1")
    prio_check(1)
    emit(f"s_cmp_lt_u32 s{S_G}, s{S_NG}")
    emit("s_cbranch_scc1 K2_loop")
    label("K2_loop_exit")
    emit("s_nop 1")
    for x in agg_mfmas(1): emit(x)
    emit(f"s_lshr_b32 s{S_T0}, s{S_G}, 1")
    emit(f"s_lshl_b32 s{S_T0}, s{S_T0}, 8")
    emit(f"v_subrev_u32 v{R.l0a}, s{S_T0}, v{R.l0a}")
    emit(f"v_subrev_u32 v{R.l1a}, s{S_T0}, v{R.l1a}")
    emit(f"v_subrev_u32 v{R.l1b}, s{S_T0}, v{R.l1b}")
    label("K2_main_done")
    emit(f"s_cmp_lg_u32 s{S_MODE}, 0")
    emit("s_cbranch_scc1 K2_slow_next")
    label("K2_epi")
    stamp(); cstamp(); vstamp(S_NG)
    emit("s_nop 7")
    emit("s_nop 7")
    emit(f"v_and_b32 v{R.t0}, 31, v0")
    emit(f"v_lshlrev_b32 v{R.t0}, 2, v{R.t0}")
    emit(f"v_lshl_add_u32 v{R.t0}, v{R.h16}, 5, v{R.t0}")
    z = R.Z[0]
    regs = [(t, r) for r in range(13) for t in range(2)]
    def tmp(t, r): return z + 2 * r + t
    for (t, r) in regs: emit(f"v_mul_f32 v{tmp(t,r)}, s{S_C}, v{R.AGG+16*t+r}")
    for (t, r) in regs: emit(f"v_exp_f32 v{tmp(t,r)}, v{tmp(t,r)}")
    for (t, r) in regs: emit(f"v_add_f32 v{tmp(t,r)}, 1.0, v{tmp(t,r)}")
    for (t, r) in regs: emit(f"v_rcp_f32 v{tmp(t,r)}, v{tmp(t,r)}")
    for (t, r) in regs: emit(f"v_mul_f32 v{tmp(t,r)}, v{tmp(t,r)}, v{R.AGG+16*t+r}")
    for r in range(13):
        emit(f"v_cvt_pk_bf16_f32 v{R.Z[1]+r}, v{tmp(0,r)}, v{tmp(1,r)}")
    for r in range(12):
        row = (r // 4) * 8 + r % 4
        emit(f"buffer_store_dword v{R.Z[1]+r}, v{R.t0}, s[{SO}:{SO+3}], s{S_NODE0} offen offset:{row*128}")
    emit("s_mov_b64 exec, 0xffffffff")
    emit(f"buffer_store_dword v{R.Z[1]+12}, v{R.t0}, s[{SO}:{SO+3}], s{S_NODE0} offen offset:{24*128}")
    if Opt.STAMP:
        emit("s_waitcnt vmcnt(0)")
        stamp()
        emit(f"s_lshl_b32 s{S_T0}, s2, 3")
        emit(f"s_add_u32 s{S_T0}, s{S_T0}, s{S_WAVE}")
        assert _st["n"] == 13, _st["n"]; _st["n"] = 14
        emit("s_mov_b64 exec, 0xffffffff")
        emit(f"s_lshl_b32 s{S_T1}, s{S_T0}, 7")
        emit(f"s_add_u32 s{S_T1}, s{S_T1}, {STB + (2 << 20):#x}")
        emit(f"v_lshrrev_b32 v255, 2, v{R.lane16}")
        emit(f"buffer_store_dword v254, v255, s[{SW}:{SW+3}], s{S_T1} offen")
        stamp_flush(1, SW, S_T0, R.w0, S_T1)
    label("K2_end")
    emit("s_endpgm")
    label("K2_empty")
    emit(f"s_cmp_lg_u32 s{S_MODE}, 0")
    emit("s_cbranch_scc1 K2_main_done")
    frag_reads()
    pu_block()
    emit("s_branch K2_main_done")
    label("K2_slow_init")
    frag_reads()
    pu_block()
    emit(f"s_mov_b32 s{S_MODE}, 1")
    emit(f"s_mov_b32 s{S_IT}, 0")
    emit(f"s_mov_b32 s{S_P}, 0")
    emit("s_branch K2_slow_batch")
    label("K2_slow_next")
    emit(f"s_add_u32 s{S_P}, s{S_P}, 1")
    emit(f"s_cmp_lg_u32 s{S_TOT}, 0")
    emit("s_cbranch_scc1 K2_slow_batch")
    emit(f"s_mov_b32 s{S_P}, 0")
    emit(f"s_add_u32 s{S_IT}, s{S_IT}, 1")
    emit(f"s_cmp_ge_u32 s{S_IT}, 4")
    emit("s_cbranch_scc1 K2_epi")
    label("K2_slow_batch")
    emit("s_waitcnt vmcnt(0) lgkmcnt(0)")
    emit("s_barrier")
    emit(f"s_cmp_lg_u32 s{S_WAVE}, 0")
    emit("s_cbranch_scc1 K2_slow_nocnt")
    emit(f"v_and_b32 v{R.w1d}, 63, v0")
    cnt_init(R.w1d)
    label("K2_slow_nocnt")
    emit(f"v_lshrrev_b32 v{a}, 3, v0")
    emit(f"v_and_b32 v{b}, 7, v0")
    emit(f"v_lshlrev_b32 v{R.t0}, 4, v{a}")
    emit(f"s_lshl_b32 s{S_T0}, s{S_IT}, 2")
    emit(f"s_add_u32 s{S_T0}, s{S_T0}, s{S_TABO}")
    emit(f"buffer_load_dword v{R.t1}, v{R.t0}, s[{SW}:{SW+3}], s{S_T0} offen")
    emit(f"s_lshl_b32 s{S_T0}, s{S_IT}, 6")
    emit(f"v_add_u32 v{a}, s{S_T0}, v{a}")
    emit(f"s_lshl_b32 s{S_T1}, s{S_P}, 3")
    emit(f"v_add_u32 v{b}, s{S_T1}, v{b}")
    emit(f"v_cmp_gt_u32 vcc, {NCH}, v{a}")
    emit(f"v_mul_u32_u24 v{a}, {CH}, v{a}")
    emit(f"v_add_u32 v{a}, v{a}, v{b}")
    emit("s_waitcnt vmcnt(0) lgkmcnt(0)")
    emit("s_barrier")
    emit(f"v_cndmask_b32 v{R.t1}, 0, v{R.t1}, vcc")
    emit(f"v_lshrrev_b32 v{R.t0}, 16, v{R.t1}")
    emit(f"v_and_b32 v{R.t1}, 0xffff, v{R.t1}")
    emit(f"v_add_lshl_u32 v{a}, v{a}, v{R.t1}, 3")
    emit(f"v_cmp_lt_u32 vcc, v{b}, v{R.t0}")
    emit(f"v_mov_b32 v{R.w0}, 0x7ffffff0")
    emit("s_nop 1")
    emit(f"v_cndmask_b32 v{a}, v{R.w0}, v{a}, vcc")
    emit(f"buffer_load_dwordx2 v[{R.w0+2}:{R.w0+3}], v{a}, s[{SW}:{SW+3}], 0 offen")
    emit(f"v_mov_b32 v{R.t0}, 4")
    emit("s_waitcnt vmcnt(0)")
    emit(f"v_lshrrev_b32 v{a}, 27, v{R.w0+3}")
    emit("s_mov_b64 exec, vcc")
    emit(f"ds_add_rtn_u32 v{b}, v{a}, v{R.t0} offset:{CNT}")
    emit("s_waitcnt lgkmcnt(0)")
    emit(f"ds_write2st64_b32 v{b}, v{R.w0+2}, v{R.w0+3} offset0:0 offset1:{L1OFF}")
    emit("s_mov_b64 exec, -1")
    emit("s_waitcnt lgkmcnt(0)")
    emit("s_barrier")
    emit("s_branch K2_counts")

def kd(name, vgpr, sgpr):
    acc = (vgpr + 3) // 4 * 4
    out.append(".p2align 6")
    out.append(f".amdhsa_kernel {name}")
    out.append(f"  .amdhsa_next_free_vgpr {vgpr}")
    out.append(f"  .amdhsa_next_free_sgpr {sgpr}")
    out.append(f"  .amdhsa_accum_offset {acc}")
    out.append("  .amdhsa_group_segment_fixed_size 0")
    out.append("  .amdhsa_kernarg_size 80")
    out.append("  .amdhsa_user_sgpr_count 2")
    out.append("  .amdhsa_user_sgpr_kernarg_segment_ptr 1")
    out.append("  .amdhsa_system_sgpr_workgroup_id_x 1")
    out.append(".end_amdhsa_kernel")

hdr = open("standalone__edge_featured_mpnn_egc__graph.s.ref").read().split("\n")
for l in hdr:
    if l.startswith("; Override"): break
    out.append(l)
out.append(f"; @launch kernel=part_kernel grid=(252,1,1) block=({K1_T},1,1) lds={K1_LDS}")
out.append(f"; @launch kernel=cons_kernel grid=(256,1,1) block=(512,1,1) lds={K2_LDS}")
out.append('.amdgcn_target "amdgcn-amd-amdhsa--gfx950"')
out.append(".text")
gen_k1()
gen_k2()
out.append('.section .rodata,"a"')
kd("part_kernel", 64, 64 if Opt.STAMP else 32)
kd("cons_kernel", 256 if Opt.STAMP else K2_VGPR, 102 if Opt.STAMP else K2_SGPR)
print("\n".join(out))
```

```python
import sys

class Opt:
    FOLD = True
    NT_E = True
    NT_IDX = True
    NODMA = False
    NOLDS = False
    FIXNG = 0
    PRIO = 2
    XPF = 0
    STAMP = False
    DBG = False

for a in sys.argv[1:]:
    if '=' in a:
        k, v = a.split('=')
        setattr(Opt, k, type(getattr(Opt, k))(int(v)))

N = 50000; E = 800000
NB = 250; CH = 3200; NCH = 250; TN = 25
WS_REC = 0
WS_TAB = 0x700000
WS_WF = 0x780000
WS_SIZE = 0x10000000
NLOG2E = 0xbfb8aa3b

out = []
def emit(s): out.append("    " + s)
def label(s): out.append(s + ":")
def comment(s): out.append("    ; " + s)

def srd(base, ptr, size):
    emit(f"s_mov_b32 s{base}, s{ptr}")
    emit(f"s_and_b32 s{base+1}, s{ptr+1}, 0xffff")
    emit(f"s_mov_b32 s{base+2}, {size:#x}")
    emit(f"s_mov_b32 s{base+3}, 0x20000")

STB = 0xF000000
_st = {"base": 72, "n": 0}
def stamp_begin(base):
    _st["base"] = base; _st["n"] = 0
def stamp(kind="s_memrealtime"):
    if not Opt.STAMP: return
    b = _st["base"] + 2 * _st["n"]; _st["n"] += 1
    emit(f"{kind} s[{b}:{b+1}]")
def cstamp(): stamp("s_memtime")
def vstamp(sreg):
    if not Opt.STAMP: return
    b = _st["base"] + 2 * _st["n"]; _st["n"] += 1
    emit(f"s_mov_b32 s{b}, s{sreg}")
    emit(f"s_mov_b32 s{b+1}, 0")
def dbg_flush(kidx, sel, va, sa):
    emit(f"s_load_dwordx2 s[{sa+4}:{sa+5}], s[0:1], 64")
    emit("s_waitcnt lgkmcnt(0)")
    if kidx == 0:
        emit(f"s_add_u32 s{sa+4}, s{sa+4}, 512")
        emit(f"s_addc_u32 s{sa+5}, s{sa+5}, 0")
    srd(sa, sa+4, 256)
    emit("s_mov_b64 exec, 1")
    emit(f"v_mov_b32 v{va+2}, 0")
    for (k, slot, kind) in sel:
        b = _st["base"] + 2 * k
        emit(f"v_mov_b32 v{va}, s{b}")
        if kind == 'min': emit(f"v_not_b32 v{va}, v{va}")
        emit(f"buffer_atomic_umax v{va}, v{va+2}, s[{sa}:{sa+3}], 0 offen offset:{4*slot}")
        emit("s_nop 1")

def stamp_flush(kidx, srdn, swave_global, va, tmp_s):
    if not Opt.STAMP: return
    if Opt.DBG:
        emit("s_waitcnt lgkmcnt(0)")
        emit(f"s_and_b32 s{tmp_s}, s{swave_global}, {0x7b if kidx else 0x1ff}")
        emit(f"s_cmp_lg_u32 s{tmp_s}, 0")
        emit(f"s_cbranch_scc1 {'K2_end' if kidx else 'K1_end'}")
        if kidx == 0: dbg_flush(0, [(0,0,'min'),(0,1,'max'),(1,2,'max'),(4,3,'max')], va, 44)
        else: dbg_flush(1, [(0,4,'min'),(0,5,'max'),(1,6,'max'),(4,7,'min'),(4,8,'max'),(7,9,'min'),(7,10,'max'),(9,11,'min'),(9,12,'max'),(12,13,'max')], va, 32)
        return
    emit("s_waitcnt lgkmcnt(0)")
    emit("s_mov_b64 exec, 1")
    emit(f"s_lshl_b32 s{tmp_s}, s{swave_global}, 7")
    emit(f"s_add_u32 s{tmp_s}, s{tmp_s}, {STB + (kidx << 20):#x}")
    emit(f"v_mov_b32 v{va+2}, 0")
    for k in range(_st["n"]):
        b = _st["base"] + 2 * k
        emit(f"v_mov_b32 v{va}, s{b}")
        emit(f"v_mov_b32 v{va+1}, s{b+1}")
        emit(f"buffer_store_dwordx2 v[{va}:{va+1}], v{va+2}, s[{srdn}:{srdn+3}], s{tmp_s} offen offset:{8*k}")
        emit("s_nop 1")

def vr(b, n): return f"v[{b}:{b+n-1}]"

K1_HIST = 0; K1_START = 1024; K1_SORT = 2048
K1_LDS = 2048 + CH * 8
K1_T = 800

def gen_k1():
    nt = " nt" if Opt.NT_IDX else ""
    out.append(".p2align 8")
    out.append(".globl part_kernel")
    out.append(".type part_kernel,@function")
    label("part_kernel")
    emit("s_cmp_ge_u32 s2, 250")
    emit("s_cbranch_scc1 K1_wprep")
    stamp_begin(32); stamp()
    emit("s_load_dwordx4 s[4:7], s[0:1], 16")
    emit("s_load_dwordx2 s[8:9], s[0:1], 72")
    emit("v_lshlrev_b32 v1, 4, v0")
    emit("s_mul_i32 s3, s2, 12800")
    emit("v_lshlrev_b32 v2, 2, v0")
    emit("v_mov_b32 v3, 0")
    emit("v_cmp_gt_u32 vcc, 0x100, v0")
    emit("s_and_saveexec_b64 s[10:11], vcc")
    emit(f"ds_write_b32 v2, v3 offset:{K1_HIST}")
    emit("s_mov_b64 exec, s[10:11]")
    emit("v_readfirstlane_b32 s25, v0")
    emit("s_waitcnt lgkmcnt(0)")
    srd(16, 6, E * 4)
    emit(f"buffer_load_dwordx4 v[4:7], v1, s[16:19], s3 offen{nt}")
    srd(12, 4, E * 4)
    emit(f"buffer_load_dwordx4 v[8:11], v1, s[12:15], s3 offen{nt}")
    srd(20, 8, WS_SIZE)
    emit("s_mov_b32 s24, 83887")
    emit("s_mul_i32 s26, s2, 102400")
    emit("v_lshlrev_b32 v28, 7, v0")
    emit("v_add_u32 v28, s26, v28")
    emit("v_mov_b32 v29, 1")
    emit("s_movk_i32 s27, 96")
    emit("s_and_b32 s28, s2, 63")
    emit("s_lshl_b32 s28, s28, 2")
    emit("s_lshr_b32 s29, s2, 6")
    emit("s_add_u32 s28, s28, s29")
    emit("s_lshl_b32 s28, s28, 2")
    emit(f"s_add_u32 s28, s28, {WS_TAB:#x}")
    emit("s_mul_i32 s30, s2, 25600")
    emit("s_add_u32 s31, s30, 12800")
    emit("s_barrier")
    emit("s_waitcnt vmcnt(1)")
    stamp()
    for j in range(4): emit(f"v_mul_u32_u24 v{12+j}, s24, v{4+j}")
    for j in range(4): emit(f"v_lshrrev_b32 v{16+j}, 24, v{12+j}")
    for j in range(4): emit(f"v_lshlrev_b32 v{16+j}, 2, v{16+j}")
    for j in range(4): emit(f"ds_add_rtn_u32 v{20+j}, v{16+j}, v29 offset:{K1_HIST}")
    for j in range(4): emit(f"v_lshrrev_b32 v{12+j}, 21, v{12+j}")
    for j in range(4): emit(f"v_mul_u32_u24 v{24+j}, 25, v{12+j}")
    for j in range(4): emit(f"v_sub_u32 v{24+j}, v{4+j}, v{24+j}")
    for j in range(4): emit(f"v_lshl_or_b32 v{24+j}, v{12+j}, 29, v{24+j}")
    for j in range(4):
        c = ["0", "32", "64", "s27"][j]
        emit(f"v_add3_u32 v{33+2*j}, v28, v{24+j}, {c}")
    emit("s_waitcnt lgkmcnt(0)")
    emit("s_barrier")
    emit("s_cmp_lg_u32 s25, 0")
    emit("s_cbranch_scc1 K1_noscan")
    emit(f"ds_read_b128 v[40:43], v1 offset:{K1_HIST}")
    emit("v_lshlrev_b32 v52, 12, v0")
    emit("s_waitcnt lgkmcnt(0)")
    emit("v_add_u32 v44, v40, v41")
    emit("v_add_u32 v45, v44, v42")
    emit("v_add_u32 v46, v45, v43")
    emit("v_mov_b32 v47, v46")
    for sh in (1, 2, 4, 8):
        emit("s_nop 1")
        emit(f"v_add_u32_dpp v47, v47, v47 row_shr:{sh} row_mask:0xf bank_mask:0xf")
    emit("s_nop 1")
    emit("v_add_u32_dpp v47, v47, v47 row_bcast:15 row_mask:0xa bank_mask:0xf")
    emit("s_nop 1")
    emit("v_add_u32_dpp v47, v47, v47 row_bcast:31 row_mask:0xc bank_mask:0xf")
    emit("v_sub_u32 v48, v47, v46")
    emit("v_add_u32 v49, v48, v40")
    emit("v_add_u32 v50, v48, v44")
    emit("v_add_u32 v51, v48, v45")
    emit(f"ds_write_b128 v1, v[48:51] offset:{K1_START}")
    for j in range(4): emit(f"v_lshl_or_b32 v{56+j}, v{40+j}, 16, v{48+j}")
    for j in range(4): emit(f"buffer_store_dword v{56+j}, v52, s[20:23], s28 offen offset:{j*1024}")
    emit("s_waitcnt vmcnt(4) lgkmcnt(0)")
    emit("s_branch K1_scanned")
    label("K1_noscan")
    emit("s_waitcnt vmcnt(0)")
    label("K1_scanned")
    for j in range(4): emit(f"v_lshlrev_b32 v{32+2*j}, 7, v{8+j}")
    emit("s_barrier")
    stamp()
    for j in range(4): emit(f"ds_read_b32 v{24+j}, v{16+j} offset:{K1_START}")
    for j in range(4):
        emit(f"s_waitcnt lgkmcnt({3-j})" if j == 0 else "s_waitcnt lgkmcnt(3)")
        emit(f"v_add_lshl_u32 v{24+j}, v{24+j}, v{20+j}, 3")
        emit(f"ds_write_b64 v{24+j}, v[{32+2*j}:{33+2*j}] offset:{K1_SORT}")
    emit("s_waitcnt lgkmcnt(0)")
    emit("s_barrier")
    emit(f"ds_read_b128 v[4:7], v1 offset:{K1_SORT}")
    emit(f"ds_read_b128 v[8:11], v1 offset:{K1_SORT+12800}")
    emit("s_waitcnt lgkmcnt(1)")
    emit("buffer_store_dwordx4 v[4:7], v1, s[20:23], s30 offen")
    emit("s_waitcnt lgkmcnt(0)")
    emit("buffer_store_dwordx4 v[8:11], v1, s[20:23], s31 offen")
    stamp()
    if Opt.STAMP:
        emit("s_waitcnt vmcnt(0)")
        stamp()
        emit("s_lshr_b32 s25, s25, 6")
        emit("s_mul_i32 s26, s2, 13")
        emit("s_add_u32 s25, s25, s26")
        stamp_flush(0, 20, 25, 12, 26)
    emit("s_endpgm")
    label("K1_wprep")
    emit("s_cmp_ge_u32 s2, 252")
    emit("s_cbranch_scc1 K1_end")
    emit("v_readfirstlane_b32 s25, v0")
    emit("s_sub_u32 s3, s2, 250")
    emit("s_mul_i32 s3, s3, 9")
    emit("s_nop 1")
    emit("s_lshr_b32 s25, s25, 6")
    emit("s_cmp_ge_u32 s25, 9")
    emit("s_cbranch_scc1 K1_end")
    emit("s_add_u32 s3, s3, s25")
    emit("s_cmp_ge_u32 s3, 17")
    emit("s_cbranch_scc1 K1_end")
    emit("s_load_dwordx4 s[4:7], s[0:1], 32")
    emit("s_load_dwordx2 s[8:9], s[0:1], 48")
    emit("s_load_dwordx2 s[10:11], s[0:1], 72")
    emit("v_and_b32 v0, 63, v0")
    emit("v_and_b32 v1, 31, v0")
    emit("v_lshlrev_b32 v1, 2, v1")
    emit("v_lshrrev_b32 v2, 5, v0")
    emit("v_lshl_add_u32 v1, v2, 10, v1")
    emit("v_lshlrev_b32 v2, 4, v0")
    emit("s_waitcnt lgkmcnt(0)")
    emit("s_cmp_lt_u32 s3, 13")
    emit("s_cselect_b32 s12, s6, s4")
    emit("s_cselect_b32 s13, s7, s5")
    emit("s_cselect_b32 s26, 9, 13")
    emit("s_cmp_lt_u32 s3, 9")
    emit("s_cselect_b32 s12, s8, s12")
    emit("s_cselect_b32 s13, s9, s13")
    emit("s_cselect_b32 s26, 0, s26")
    emit("s_movk_i32 s27, 0x2000")
    emit("s_cselect_b32 s14, 0x4800, s27")
    emit("s_and_b32 s13, s13, 0xffff")
    emit("s_mov_b32 s15, 0x20000")
    srd(20, 10, WS_SIZE)
    emit("s_sub_u32 s26, s3, s26")
    emit("s_lshl_b32 s26, s26, 11")
    for q in range(8):
        emit(f"buffer_load_dword v{4+q}, v1, s[12:15], s26 offen offset:{q*128}")
    emit("s_lshl_b32 s27, s3, 11")
    emit(f"s_add_u32 s27, s27, {WS_WF:#x}")
    emit("s_mov_b32 s28, 0x05040100")
    emit("s_mov_b32 s29, 0x07060302")
    emit("s_waitcnt vmcnt(0)")
    if Opt.FOLD:
        emit("s_sub_u32 s30, s3, 4")
        emit("s_cmp_lt_u32 s30, 5")
        emit("s_cbranch_scc0 K1_wplain")
        emit(f"s_mov_b32 s30, {NLOG2E:#x}")
        for q in range(8):
            emit(f"v_lshlrev_b32 v{12+q}, 16, v{4+q}")
            emit(f"v_and_b32 v{20+q}, 0xffff0000, v{4+q}")
        for q in range(16):
            emit(f"v_mul_f32 v{12+q}, s30, v{12+q}")
        for j in range(4):
            emit(f"v_cvt_pk_bf16_f32 v{28+j}, v{12+2*j}, v{13+2*j}")
            emit(f"v_cvt_pk_bf16_f32 v{32+j}, v{20+2*j}, v{21+2*j}")
        emit("s_branch K1_wstore")
        label("K1_wplain")
    for j in range(4):
        emit(f"v_perm_b32 v{28+j}, v{5+2*j}, v{4+2*j}, s28")
        emit(f"v_perm_b32 v{32+j}, v{5+2*j}, v{4+2*j}, s29")
    label("K1_wstore")
    emit("buffer_store_dwordx4 v[28:31], v2, s[20:23], s27 offen")
    emit("buffer_store_dwordx4 v[32:35], v2, s[20:23], s27 offen offset:1024")
    label("K1_end")
    emit("s_endpgm")

CNT = 0
AOT = 64
SM = AOT + 2560; SM_W = 2560
STG0 = SM + 8 * SM_W
assert STG0 % 16 == 0
BUFW = 5120
BUF = 8 * BUFW
WFL = STG0 + BUF
L0 = STG0 + 2 * BUF
CAP = 576; CAPT = 704
LST = CAPT * 4
L1 = L0 + 8 * LST
K2_LDS = L1 + 8 * LST
L1OFF = (L1 - L0) // 256
assert (L1 - L0) % 256 == 0 and K2_LDS <= 163840 and L0 % 16 == 0

class R: pass
_next = [1]
def alloc(n, align=1):
    b = _next[0]
    b = (b + align - 1) // align * align
    _next[0] = b + n
    return b
R.lane16 = alloc(1); R.dmab = alloc(1); R.rde = alloc(1)
R.rd = alloc(4)
R.l0a = alloc(1); R.l1a = alloc(1); R.h16 = alloc(1); R.aoc = alloc(1); R.sc = alloc(1); R.sr = alloc(1)
R.one = alloc(1); R.zero = alloc(1); R.eh16 = alloc(1); R.l1b = alloc(1)
R.w1d = alloc(1); R.w1n = alloc(1); R.aoa = alloc(1); R.sa = alloc(1); R.t0 = alloc(1); R.t1 = alloc(1)
R.w0 = alloc(4, 4)
R.WB = alloc(32, 4); R.WC = alloc(8, 4); R.WV = alloc(32, 4); R.P = alloc(16, 4)
R.AGG = alloc(32, 4)
R.Z = [alloc(16, 4), 0]; R.H = [alloc(16, 4), 0]
R.Z[1] = alloc(16, 4); R.H[1] = alloc(16, 4)
R.AX = alloc(16, 4); R.AE = alloc(4, 4); R.AO = alloc(8, 4); R.AS = alloc(8, 4)
K2_VGPR = _next[0]
assert K2_VGPR <= 256, K2_VGPR

SX = 8; SE = 12; SO = 16; SW = 20
S_B = 3; S_WAVE = 4; S_NG = 5; S_G = 6; S_MODE = 7
S_STG = 24; S_MSKE = 25; S_80 = 26; S_N = 27; S_IT = 28; S_P = 29; S_TOT = 30; S_T0 = 31
S_MASK = 32
S_T1 = 64; S_T2 = 65; S_C = 66; S_TABO = 67; S_NODE0 = 68; S_T3 = 69; S_GP = 70; S_TILE = 71
K2_SGPR = 72

def WB(s, t): return vr(R.WB + (s * 2 + t) * 4, 4)
def WV(s, t): return vr(R.WV + (s * 2 + t) * 4, 4)
def WC(t): return vr(R.WC + t * 4, 4)
def PP(s, t): return vr(R.P + (s * 2 + t) * 4, 4)
def AX(s): return vr(R.AX + s * 4, 4)
def AO(s): return vr(R.AO + s * 4, 4)
def AS(s): return vr(R.AS + s * 4, 4)
AE = vr(R.AE, 4)
def AGG(t): return vr(R.AGG + t * 16, 16)
def Zr(t): return vr(R.Z[t], 16)
def Hr(t): return vr(R.H[t], 16)
def mfma(d, a, b, c): return f"v_mfma_f32_32x32x16_bf16 {d}, {a}, {b}, {c}"

def zh_mfmas(t):
    z, h = Zr(t), Hr(t)
    m = [mfma(z, AO(0), PP(0, t), "0"), mfma(z, AO(1), PP(1, t), z), mfma(z, AE, WC(t), z)]
    for s in range(4):
        m.append(mfma(z, AX(s), WB(s, t), z))
        m.append(mfma(h, AX(s), WV(s, t), "0" if s == 0 else h))
    return m

def agg_mfmas(t):
    return [mfma(AGG(t), AS(0), vr(R.Z[t], 4), AGG(t)), mfma(AGG(t), AS(1), vr(R.Z[t] + 8, 4), AGG(t))]

def sig_stream(t):
    z, h = R.Z[t], R.H[t]
    st = []
    for m in range(4):
        rs = [4 * m + i for i in range(4)]
        if not Opt.FOLD:
            for r in rs: st.append((f"v_mul_f32 v{z+r}, s{S_C}, v{z+r}", 4))
        for r in rs: st.append((f"v_exp_f32 v{z+r}, v{z+r}", 8))
        for r in rs: st.append((f"v_add_f32 v{z+r}, 1.0, v{z+r}", 4))
        for r in rs: st.append((f"v_rcp_f32 v{z+r}, v{z+r}", 8))
        for r in rs: st.append((f"v_mul_f32 v{z+r}, v{z+r}, v{h+r}", 4))
        d = 8 * (m // 2) + 2 * (m % 2)
        st.append((f"v_cvt_pk_bf16_f32 v{z+d}, v{z+4*m}, v{z+4*m+1}", 4))
        st.append((f"v_cvt_pk_bf16_f32 v{z+d+1}, v{z+4*m+2}, v{z+4*m+3}", 4))
    return st

def dma_issue(bufoff, w0, w1):
    nte = " nt" if Opt.NT_E else ""
    seq = [f"s_add_u32 m0, s{S_STG}, {bufoff}"]
    for t in range(4):
        seq.append(f"v_xad_u32 v{w0+t}, v{R.dmab}, {16*t}, v{w0+t}")
        seq.append(f"buffer_load_dwordx4 v{w0+t}, s[{SX}:{SX+3}], 0 offen lds")
        seq.append("s_add_u32 m0, m0, 0x400")
    seq.append(f"v_and_or_b32 v{w1}, v{w1}, s{S_MSKE}, v{R.eh16}")
    seq.append(f"buffer_load_dwordx4 v{w1}, s[{SE}:{SE+3}], 0 offen{nte} lds")
    return seq

def nl_addr():
    return [f"v_and_b32 v{R.w1n}, 31, v{R.w1n}",
            f"v_mad_u32_u24 v{R.aoa}, v{R.w1n}, s{S_80}, v{R.aoc}",
            f"v_mad_u32_u24 v{R.sa}, v{R.w1n}, s{S_80}, v{R.sc}"]

def interleave(valu, mfmas, after, pre=None):
    pre = pre or {}
    def keep(x):
        if Opt.NODMA and (x.startswith("buffer_load") or "vmcnt" in x): return False
        if Opt.NOLDS and (x.startswith("ds_") or "lgkmcnt" in x): return False
        return True
    total = sum(c for _, c in valu)
    n = len(mfmas)
    tail = 48 if not Opt.FOLD else 56
    spacing = (total - tail) / (n - 1)
    k = 0; cum = 0
    for ins, c in valu:
        while k < n and cum >= k * spacing - 1e-9:
            for x in pre.get(k, []):
                if keep(x): emit(x)
            emit(mfmas[k])
            for x in after.get(k, []):
                if keep(x): emit(x)
            k += 1
        emit(ins); cum += c
    assert k == n, (k, n)

def group_body(par, lo):
    nb = BUF * (1 - par)
    m = agg_mfmas(1) + zh_mfmas(1)
    after = {
        0: [f"ds_read_b32 v{R.w1n}, v{R.l1a} offset:{lo+128}"],
        1: [f"ds_write_b16 v{R.sa}, v{R.one}",
            f"ds_read_b128 {AS(0)}, v{R.sr}",
            f"ds_read_b128 {AS(1)}, v{R.sr} offset:32",
            f"ds_write_b16 v{R.sa}, v{R.zero}"],
        3: ["s_waitcnt lgkmcnt(4)"] + nl_addr() +
           [f"ds_read_b128 {AO(0)}, v{R.aoa}", f"ds_read_b128 {AO(1)}, v{R.aoa} offset:32"],
        4: ["s_waitcnt vmcnt(5)", f"ds_read_b128 {AE}, v{R.rde} offset:{nb}"],
        6: [f"ds_read_b128 {AX(0)}, v{R.rd} offset:{nb}"],
        8: [f"ds_read_b128 {AX(1)}, v{R.rd+1} offset:{nb}"],
        10: [f"ds_read_b128 {AX(2)}, v{R.rd+2} offset:{nb}",
             f"ds_read_b128 {vr(R.w0,4)}, v{R.l0a} offset:{lo+384}",
             f"ds_read_b32 v{R.w1d}, v{R.l1b} offset:{lo+384}"],
        12: [f"ds_read_b128 {AX(3)}, v{R.rd+3} offset:{nb}"],
    }
    interleave(sig_stream(0), m, after)
    m = agg_mfmas(0) + zh_mfmas(0)
    d = dma_issue(nb, R.w0, R.w1d)
    pre = {0: ["s_waitcnt lgkmcnt(1)"]}
    after = {1: ["s_waitcnt lgkmcnt(0)"] + d[0:4], 2: d[4:7], 3: d[7:10], 4: d[10:13], 5: d[13:15]}
    interleave(sig_stream(1), m, after, pre)

def gtrace():
    if not Opt.STAMP: return
    emit("s_memtime s[100:101]")
    emit("s_waitcnt lgkmcnt(0)")
    emit(f"s_mov_b32 m0, s{S_G}")
    emit("s_nop 0")
    emit(f"v_writelane_b32 v254, s100, m0")

def prio_check(tag):
    if not Opt.PRIO: return
    emit(f"s_cmp_lg_u32 s{S_G}, s{S_GP}")
    emit(f"s_cbranch_scc1 K2_np{tag}")
    emit("s_setprio 0")
    label(f"K2_np{tag}")

def frag_reads(younger=0):
    emit(f"s_waitcnt vmcnt({younger})")
    emit("s_barrier")
    emit(f"v_add_u32 v{R.t0}, {WFL}, v{R.lane16}")
    for sx in range(4):
        for t in range(2):
            emit(f"ds_read_b128 {vr([R.Z[1],R.H[1]][t]+4*sx,4)}, v{R.t0} offset:{(26+2*sx+t)*1024}")
    for sx in range(4):
        for t in range(2):
            emit(f"ds_read_b128 {vr([R.Z[0],R.H[0]][t]+4*sx,4)}, v{R.t0} offset:{(2*sx+t)*1024}")
    for f in range(8):
        emit(f"ds_read_b128 {vr(R.WB+4*f,4)}, v{R.t0} offset:{(8+f)*1024}")
    for f in range(2):
        emit(f"ds_read_b128 {vr(R.WC+4*f,4)}, v{R.t0} offset:{(16+f)*1024}")
    for f in range(8):
        emit(f"ds_read_b128 {vr(R.WV+4*f,4)}, v{R.t0} offset:{(18+f)*1024}")
    emit("s_waitcnt lgkmcnt(0)")
    emit("s_barrier")

def pu_block():
    aw = [R.Z[0], R.H[0]]; uu = [R.Z[1], R.H[1]]
    for t in range(2):
        for sx in range(4):
            emit(mfma(AGG(t), AX(sx), vr(uu[t] + 4 * sx, 4), "0" if sx == 0 else AGG(t)))
    for t in range(2):
        for sx in range(4):
            emit(mfma(vr(uu[t], 16), AX(sx), vr(aw[t] + 4 * sx, 4), "0" if sx == 0 else vr(uu[t], 16)))
    emit("s_nop 7")
    for t in range(2):
        if t == 1 and not Opt.FOLD: emit("s_nop 3")
        if Opt.FOLD:
            for r in range(16):
                emit(f"v_mul_f32 v{uu[t]+r}, s{S_C}, v{uu[t]+r}")
        for sx in range(2):
            for j in range(4):
                emit(f"v_cvt_pk_bf16_f32 v{R.P+(sx*2+t)*4+j}, v{uu[t]+8*sx+2*j}, v{uu[t]+8*sx+2*j+1}")

def cnt_init(lane):
    emit(f"v_and_b32 v{R.w0+1}, 7, v{lane}")
    emit(f"v_mul_u32_u24 v{R.aoa}, {LST}, v{R.w0+1}")
    emit(f"v_add_u32 v{R.aoa}, {L0}, v{R.aoa}")
    emit(f"v_lshlrev_b32 v{R.w0+1}, 2, v{R.w0+1}")
    emit(f"ds_write_b32 v{R.w0+1}, v{R.aoa} offset:{CNT}")

def gen_k2():
    out.append(".p2align 8")
    out.append(".globl cons_kernel")
    out.append(".type cons_kernel,@function")
    label("cons_kernel")
    emit("s_cmp_ge_u32 s2, 256")
    emit("s_cbranch_scc1 K2_end")
    emit("s_and_b32 s3, s2, 7")
    emit("s_lshl_b32 s3, s3, 5")
    emit("s_lshr_b32 s4, s2, 3")
    emit(f"s_add_u32 s{S_B}, s3, s4")
    emit(f"s_cmp_ge_u32 s{S_B}, {NB}")
    emit("s_cbranch_scc1 K2_end")
    stamp_begin(72); stamp()
    if Opt.STAMP: emit("s_memtime s[98:99]")
    emit("s_load_dwordx2 s[38:39], s[0:1], 72")
    emit("s_load_dwordx4 s[32:35], s[0:1], 0")
    emit("s_load_dwordx2 s[36:37], s[0:1], 56")
    t0, t1 = R.t0, R.t1
    emit(f"v_lshrrev_b32 v{t0}, 6, v0")
    emit(f"v_and_b32 v{t1}, 63, v0")
    emit(f"v_readfirstlane_b32 s{S_WAVE}, v{t0}")
    emit(f"v_lshlrev_b32 v{R.lane16}, 4, v{t1}")
    emit(f"v_lshrrev_b32 v{t0}, 3, v0")
    emit(f"v_lshlrev_b32 v{R.w0}, 4, v{t0}")
    emit(f"s_lshl_b32 s{S_TABO}, s{S_B}, 10")
    emit(f"s_add_u32 s{S_TABO}, s{S_TABO}, {WS_TAB:#x}")
    if Opt.PRIO: emit("s_setprio 1")
    emit("s_waitcnt lgkmcnt(0)")
    srd(SW, 38, WS_SIZE)
    emit(f"buffer_load_dwordx4 {AO(0)}, v{R.w0}, s[{SW}:{SW+3}], s{S_TABO} offen")
    srd(SX, 32, N * 128)
    srd(SE, 34, E * 32)
    srd(SO, 36, N * 128)
    i, h = R.w1n, R.w1d
    emit(f"v_and_b32 v{i}, 31, v{t1}")
    emit(f"v_lshrrev_b32 v{h}, 5, v{t1}")
    emit(f"v_lshlrev_b32 v{R.h16}, 4, v{h}")
    emit(f"s_mul_i32 s{S_STG}, s{S_WAVE}, {BUFW}")
    emit(f"s_add_u32 s{S_STG}, s{S_STG}, {STG0}")
    emit(f"v_and_b32 v{t0}, 7, v{t1}")
    emit(f"v_lshlrev_b32 v{R.dmab}, 2, v{h}")
    emit(f"v_xor_b32 v{R.dmab}, v{R.dmab}, v{t0}")
    emit(f"v_lshlrev_b32 v{R.dmab}, 4, v{R.dmab}")
    emit(f"s_mul_i32 s{S_NODE0}, s{S_B}, 200")
    emit(f"s_mul_i32 s{S_T0}, s{S_WAVE}, {TN}")
    emit(f"s_add_u32 s{S_NODE0}, s{S_NODE0}, s{S_T0}")
    emit(f"s_lshl_b32 s{S_NODE0}, s{S_NODE0}, 7")
    emit(f"v_lshrrev_b32 v{t0}, 3, v{t1}")
    emit(f"v_lshlrev_b32 v{t0}, 9, v{t0}")
    emit(f"s_mov_b32 m0, s{S_STG}")
    emit(f"s_mov_b32 s{S_T0}, s{S_NODE0}")
    for t in range(4):
        emit(f"v_xad_u32 v{R.AE+t}, v{R.dmab}, {16*t}, v{t0}")
        emit(f"buffer_load_dwordx4 v{R.AE+t}, s[{SX}:{SX+3}], s{S_T0} offen lds")
        emit("s_add_u32 m0, m0, 0x400")
        emit(f"s_add_u32 s{S_T0}, s{S_T0}, 128")
    emit(f"s_mov_b32 s{S_MSKE}, 0x1fffffe0")
    emit(f"s_movk_i32 s{S_80}, 80")
    emit(f"s_mov_b32 s{S_C}, {NLOG2E:#x}")
    emit(f"s_mov_b32 s{S_MODE}, 0")
    emit(f"v_mov_b32 v{R.one}, 0x3f80")
    emit(f"v_mov_b32 v{R.zero}, 0")
    a, b = R.aoa, R.sa
    emit(f"v_and_b32 v{t0}, 19, v{i}")
    emit(f"v_and_b32 v{a}, 4, v{i}")
    emit(f"v_lshl_or_b32 v{t0}, v{a}, 1, v{t0}")
    emit(f"v_and_b32 v{a}, 8, v{i}")
    emit(f"v_lshrrev_b32 v{a}, 1, v{a}")
    emit(f"v_or_b32 v{t0}, v{t0}, v{a}")
    emit(f"v_lshlrev_b32 v{t0}, 1, v{t0}")
    emit(f"s_mul_i32 s{S_T0}, s{S_WAVE}, {SM_W}")
    emit(f"s_add_u32 s{S_T0}, s{S_T0}, {SM}")
    emit(f"v_add_u32 v{R.sc}, s{S_T0}, v{t0}")
    emit(f"v_mad_u32_u24 v{a}, v{i}, s{S_80}, v{R.h16}")
    emit(f"v_add_u32 v{R.sr}, s{S_T0}, v{a}")
    emit(f"v_add_u32 v{R.aoc}, {AOT}, v{R.h16}")
    emit(f"v_mov_b32 v{R.w0+2}, 0")
    emit(f"v_mov_b32 v{R.w0+3}, 0")
    emit(f"v_lshlrev_b32 v{b}, 3, v{t1}")
    emit(f"s_cmp_lg_u32 s{S_WAVE}, 0")
    emit("s_cbranch_scc1 K2_noinit")
    cnt_init(t1)
    for k in range(5):
        emit(f"ds_write_b64 v{b}, v[{R.w0+2}:{R.w0+3}] offset:{AOT+512*k}")
    emit(f"v_mad_u32_u24 v{a}, v{i}, s{S_80}, v{t0}")
    emit(f"ds_write_b16 v{a}, v{R.one} offset:{AOT}")
    label("K2_noinit")
    emit(f"v_add_u32 v{a}, s{S_T0}, v{b}")
    for k in range(5):
        emit(f"ds_write_b64 v{a}, v[{R.w0+2}:{R.w0+3}] offset:{512*k}")
    emit(f"v_lshrrev_b32 v{a}, 3, v0")
    emit(f"v_and_b32 v{b}, 7, v0")
    emit(f"v_lshlrev_b32 v{b}, 1, v{b}")
    emit(f"v_mul_u32_u24 v{t0}, {CH}, v{a}")
    emit(f"v_add_u32 v{t0}, v{t0}, v{b}")
    emit(f"v_cmp_gt_u32 vcc, {NCH-3*64}, v{a}")
    emit(f"v_mov_b32 v{R.w0}, 0x7ffffff0")
    emit("s_waitcnt lgkmcnt(0)")
    emit("s_barrier")
    emit("s_waitcnt vmcnt(4)")
    stamp()
    BASE = R.AO; REM = R.AO + 4
    emit(f"v_cndmask_b32 v{BASE+3}, 0, v{BASE+3}, vcc")
    for it in range(4):
        emit(f"v_lshrrev_b32 v{REM+it}, 16, v{BASE+it}")
        emit(f"v_sub_u32 v{REM+it}, v{REM+it}, v{b}")
        emit(f"v_and_b32 v{BASE+it}, 0xffff, v{BASE+it}")
        emit(f"v_add_u32 v{BASE+it}, {it*64*CH}, v{BASE+it}")
        emit(f"v_add_lshl_u32 v{BASE+it}, v{BASE+it}, v{t0}, 3")
    REC = R.Z[0]
    RK = R.Z[1]; TA = R.H[1]
    assert R.H[0] == R.Z[0] + 16
    def msk(k): return f"s[{S_MASK+2*k}:{S_MASK+2*k+1}]"
    def rec_loads():
        for l in range(8):
            it, p = l // 2, l % 2
            emit(f"v_cmp_lt_i32 {msk(2*l)}, {16*p}, v{REM+it}")
        for l in range(8):
            it, p = l // 2, l % 2
            tmp = R.w0 + 1 + (l % 3)
            emit(f"v_cndmask_b32 v{tmp}, v{R.w0}, v{BASE+it}, {msk(2*l)}")
            emit(f"buffer_load_dwordx4 {vr(REC+4*l,4)}, v{tmp}, s[{SW}:{SW+3}], 0 offen offset:{128*p}")
        for l in range(8):
            it, p = l // 2, l % 2
            emit(f"v_cmp_lt_i32 {msk(2*l+1)}, {16*p+1}, v{REM+it}")
    rec_loads()
    NLATE = 0
    if Opt.XPF:
        emit(f"s_lshr_b32 s{S_T0}, s2, 3")
        emit(f"s_lshl_b32 s{S_T0}, s{S_T0}, 3")
        emit(f"s_add_u32 s{S_T0}, s{S_T0}, s{S_WAVE}")
        emit(f"s_mul_i32 s{S_T0}, s{S_T0}, {Opt.XPF*8192}")
        emit(f"v_lshlrev_b32 v{t0}, 7, v{t1}")
        for k in range(Opt.XPF):
            emit(f"buffer_load_dword v{R.AE+k%4}, v{t0}, s[{SX}:{SX+3}], s{S_T0} offen")
            if k < Opt.XPF - 1: emit(f"s_add_u32 s{S_T0}, s{S_T0}, 0x2000")
        NLATE += Opt.XPF
    emit(f"v_and_b32 v{a}, 1, v{t1}")
    emit(f"v_xor_b32 v{a}, v{a}, v{h}")
    emit(f"v_lshlrev_b32 v{R.eh16}, 4, v{a}")
    emit(f"v_lshrrev_b32 v{a}, 4, v{i}")
    emit(f"v_xor_b32 v{a}, v{a}, v{h}")
    emit(f"v_lshlrev_b32 v{a}, 4, v{a}")
    emit(f"v_lshl_add_u32 v{a}, v{i}, 5, v{a}")
    emit(f"v_add_u32 v{R.rde}, s{S_STG}, v{a}")
    emit(f"v_add_u32 v{R.rde}, 0x1000, v{R.rde}")
    emit(f"v_and_b32 v{a}, 3, v{i}")
    emit(f"v_lshrrev_b32 v{b}, 4, v{i}")
    emit(f"v_lshl_add_u32 v{b}, v{b}, 2, v{a}")
    emit(f"v_xor_b32 v{b}, v{b}, v{h}")
    emit(f"v_lshlrev_b32 v{b}, 4, v{b}")
    emit(f"v_lshlrev_b32 v{a}, 10, v{a}")
    emit(f"v_lshrrev_b32 v{t0}, 2, v{i}")
    emit(f"v_lshl_add_u32 v{a}, v{t0}, 7, v{a}")
    emit(f"v_add_u32 v{a}, s{S_STG}, v{a}")
    emit(f"s_movk_i32 s{S_T0}, 96")
    for s in range(4):
        c = ["0", "32", "64", f"s{S_T0}"][s]
        emit(f"v_xad_u32 v{R.rd+s}, v{b}, {c}, v{a}")
    emit(f"s_mul_i32 s{S_T0}, s{S_WAVE}, {LST}")
    emit(f"s_add_u32 s{S_T0}, s{S_T0}, {L0}")
    emit(f"v_lshrrev_b32 v{a}, 3, v{t1}")
    emit(f"v_lshlrev_b32 v{a}, 4, v{a}")
    emit(f"v_add_u32 v{R.l0a}, s{S_T0}, v{a}")
    emit(f"v_lshlrev_b32 v{a}, 2, v{i}")
    emit(f"v_add_u32 v{a}, s{S_T0}, v{a}")
    emit(f"v_add_u32 v{R.l1a}, {L1-L0}, v{a}")
    emit(f"v_lshrrev_b32 v{a}, 1, v{t1}")
    emit(f"v_lshlrev_b32 v{a}, 2, v{a}")
    emit(f"v_add_u32 v{a}, s{S_T0}, v{a}")
    emit(f"v_add_u32 v{R.l1b}, {L1-L0}, v{a}")
    emit(f"v_mov_b32 v{R.t0}, 4")
    emit(f"s_mov_b32 s{S_T3}, {L1-4}")
    stamp()
    def weights_dma():
        emit(f"s_lshl_b32 s{S_T0}, s{S_WAVE}, 10")
        emit(f"s_add_u32 s{S_T1}, s{S_T0}, {WS_WF:#x}")
        emit(f"s_add_u32 m0, s{S_T0}, {WFL}")
        for k in range(5):
            emit("s_nop 0")
            emit(f"buffer_load_dwordx4 v{R.lane16}, s[{SW}:{SW+3}], s{S_T1} offen lds")
            if k < 4:
                emit("s_add_u32 m0, m0, 0x2000")
                emit(f"s_add_u32 s{S_T1}, s{S_T1}, 0x2000")
    def collect(first):
        for l in range(8):
            emit(f"s_waitcnt vmcnt({NLATE+7-l})" if first else ("s_waitcnt vmcnt(0)" if l == 0 else "s_nop 0"))
            if first and l == 0: stamp()
            for r in range(2):
                k = 2 * l + r
                emit(f"v_lshrrev_b32 v{TA+k}, 27, v{REC+4*l+2*r+1}")
            for r in range(2):
                k = 2 * l + r
                emit(f"s_mov_b64 exec, {msk(k)}")
                emit(f"ds_add_rtn_u32 v{RK+k}, v{TA+k}, v{R.t0} offset:{CNT}")
            emit("s_mov_b64 exec, -1")
        if first: weights_dma()
        for it in range(4):
            emit(f"v_subrev_u32 v{REM+it}, 32, v{REM+it}")
            emit(f"v_add_u32 v{BASE+it}, 0x100, v{BASE+it}")
        emit(f"v_max3_i32 v{R.t1}, v{REM}, v{REM+1}, v{REM+2}")
        emit(f"v_max_i32 v{R.t1}, v{R.t1}, v{REM+3}")
        emit(f"v_cmp_lt_i32 vcc, 0, v{R.t1}")
        emit("s_waitcnt lgkmcnt(0)")
        for k in range(16):
            emit(f"v_min_u32 v{RK+k}, s{S_T3}, v{RK+k}")
        for k in range(16):
            emit(f"s_mov_b64 exec, {msk(k)}")
            emit(f"ds_write2st64_b32 v{RK+k}, v{REC+2*k}, v{REC+2*k+1} offset0:0 offset1:{L1OFF}")
        emit("s_mov_b64 exec, -1")
    collect(True)
    emit("s_cbranch_vccz K2_collected")
    label("K2_collect_more")
    emit("s_waitcnt lgkmcnt(0)")
    rec_loads()
    collect(False)
    emit("s_cbranch_vccnz K2_collect_more")
    label("K2_collected")
    for s in range(4): emit(f"ds_read_b128 {AX(s)}, v{R.rd+s}")
    emit("s_waitcnt lgkmcnt(0)")
    emit("s_barrier")
    stamp()
    label("K2_counts")
    emit(f"v_and_b32 v{R.t0}, 7, v0")
    emit(f"v_lshlrev_b32 v{R.t1}, 2, v{R.t0}")
    emit(f"ds_read_b32 v{R.t1}, v{R.t1} offset:{CNT}")
    emit(f"v_mul_u32_u24 v{R.t0}, {LST}, v{R.t0}")
    emit(f"v_add_u32 v{R.t0}, {L0}, v{R.t0}")
    emit("s_waitcnt lgkmcnt(0)")
    emit(f"v_sub_u32 v{R.t1}, v{R.t1}, v{R.t0}")
    emit(f"v_lshrrev_b32 v{R.t1}, 2, v{R.t1}")
    emit(f"v_cmp_lt_u32 vcc, {CAP}, v{R.t1}")
    emit(f"v_cmp_ne_u32 s[{S_MASK}:{S_MASK+1}], 0, v{R.t1}")
    emit(f"v_readlane_b32 s{S_N}, v{R.t1}, s{S_WAVE}")
    emit("s_nop 3")
    emit(f"s_or_b32 s{S_TOT}, s{S_MASK}, s{S_MASK+1}")
    emit("s_cbranch_vccnz K2_slow_init")
    label("K2_main")
    emit(f"s_add_u32 s{S_NG}, s{S_N}, 31")
    emit(f"s_lshr_b32 s{S_NG}, s{S_NG}, 5")
    emit(f"s_cmp_eq_u32 s{S_NG}, 0")
    emit("s_cbranch_scc1 K2_empty")
    emit(f"s_mul_i32 s{S_T0}, s{S_WAVE}, {LST}")
    emit(f"s_lshl_b32 s{S_T1}, s{S_N}, 2")
    emit(f"s_add_u32 s{S_T0}, s{S_T0}, s{S_T1}")
    emit(f"s_add_u32 s{S_T0}, s{S_T0}, {L0}")
    emit(f"v_lshrrev_b32 v{R.t0}, 2, v{R.lane16}")
    emit(f"v_add_u32 v{R.t0}, s{S_T0}, v{R.t0}")
    emit(f"v_mov_b32 v{R.w0}, 0x7fffff80")
    emit(f"v_mov_b32 v{R.w0+1}, {0x1fffffe0 | TN:#x}")
    emit(f"ds_write2st64_b32 v{R.t0}, v{R.w0}, v{R.w0+1} offset0:0 offset1:{L1OFF}")
    emit(f"ds_write2st64_b32 v{R.t0}, v{R.w0}, v{R.w0+1} offset0:1 offset1:{L1OFF+1}")
    emit(f"ds_read_b128 {AO(0)}, v{R.l0a}")
    emit(f"ds_read_b32 v{R.AS}, v{R.l1b}")
    emit(f"ds_read_b128 {AO(1)}, v{R.l0a} offset:128")
    emit(f"ds_read_b32 v{R.AS+1}, v{R.l1b} offset:128")
    emit(f"ds_read_b128 {vr(R.w0,4)}, v{R.l0a} offset:256")
    emit(f"ds_read_b32 v{R.w1d}, v{R.l1b} offset:256")
    emit(f"ds_read_b32 v{R.w1n}, v{R.l1a}")
    emit("s_waitcnt lgkmcnt(5)")
    for x in dma_issue(0, R.AO, R.AS): emit(x)
    emit(f"s_cmp_lg_u32 s{S_MODE}, 0")
    emit("s_cbranch_scc1 K2_fr_done")
    frag_reads(5)
    label("K2_fr_done")
    emit("s_waitcnt lgkmcnt(0)")
    for x in dma_issue(BUF, R.AO + 4, R.AS + 1): emit(x)
    for x in nl_addr(): emit(x)
    emit(f"ds_read_b128 {AO(0)}, v{R.aoa}")
    emit(f"ds_read_b128 {AO(1)}, v{R.aoa} offset:32")
    emit(f"s_cmp_lg_u32 s{S_MODE}, 0")
    emit("s_cbranch_scc1 K2_pu_done")
    pu_block()
    label("K2_pu_done")
    for r in range(8): emit(f"v_mov_b32 v{R.AS+r}, 0")
    for r in (0, 1, 2, 3, 8, 9, 10, 11): emit(f"v_mov_b32 v{R.Z[1]+r}, 0")
    emit(f"s_mov_b32 s{S_G}, 0")
    if Opt.FIXNG: emit(f"s_movk_i32 s{S_NG}, {Opt.FIXNG}")
    if Opt.PRIO:
        emit(f"s_sub_u32 s{S_GP}, s{S_NG}, {Opt.PRIO}")
        emit(f"s_cmp_ge_u32 s{S_WAVE}, 4")
        emit(f"s_cselect_b32 s{S_GP}, -1, s{S_GP}")
    stamp()
    emit("s_waitcnt vmcnt(5)")
    stamp()
    emit(f"ds_read_b128 {AE}, v{R.rde}")
    for s in range(4): emit(f"ds_read_b128 {AX(s)}, v{R.rd+s}")
    emit("s_waitcnt lgkmcnt(0)")
    for x in dma_issue(0, R.w0, R.w1d): emit(x)
    for x in zh_mfmas(0): emit(x)
    emit("s_nop 7")
    emit("s_nop 3")
    stamp(); cstamp()
    label("K2_loop")
    group_body(0, 0)
    gtrace()
    emit(f"s_add_u32 s{S_G}, s{S_G}, 1")
    prio_check(0)
    emit(f"s_cmp_ge_u32 s{S_G}, s{S_NG}")
    emit("s_cbranch_scc1 K2_loop_exit")
    group_body(1, 128)
    gtrace()
    adv = 0 if Opt.FIXNG else 0x100
    emit(f"v_add_u32 v{R.l0a}, {adv:#x}, v{R.l0a}")
    emit(f"v_add_u32 v{R.l1a}, {adv:#x}, v{R.l1a}")
    emit(f"v_add_u32 v{R.l1b}, {adv:#x}, v{R.l1b}")
    emit(f"s_add_u32 s{S_G}, s{S_G}, 1")
    prio_check(1)
    emit(f"s_cmp_lt_u32 s{S_G}, s{S_NG}")
    emit("s_cbranch_scc1 K2_loop")
    label("K2_loop_exit")
    emit("s_nop 1")
    for x in agg_mfmas(1): emit(x)
    emit(f"s_lshr_b32 s{S_T0}, s{S_G}, 1")
    emit(f"s_lshl_b32 s{S_T0}, s{S_T0}, 8")
    emit(f"v_subrev_u32 v{R.l0a}, s{S_T0}, v{R.l0a}")
    emit(f"v_subrev_u32 v{R.l1a}, s{S_T0}, v{R.l1a}")
    emit(f"v_subrev_u32 v{R.l1b}, s{S_T0}, v{R.l1b}")
    label("K2_main_done")
    emit(f"s_cmp_lg_u32 s{S_MODE}, 0")
    emit("s_cbranch_scc1 K2_slow_next")
    label("K2_epi")
    stamp(); cstamp(); vstamp(S_NG)
    emit("s_nop 7")
    emit("s_nop 7")
    emit(f"v_and_b32 v{R.t0}, 31, v0")
    emit(f"v_lshlrev_b32 v{R.t0}, 2, v{R.t0}")
    emit(f"v_lshl_add_u32 v{R.t0}, v{R.h16}, 5, v{R.t0}")
    z = R.Z[0]
    regs = [(t, r) for r in range(13) for t in range(2)]
    def tmp(t, r): return z + 2 * r + t
    for (t, r) in regs: emit(f"v_mul_f32 v{tmp(t,r)}, s{S_C}, v{R.AGG+16*t+r}")
    for (t, r) in regs: emit(f"v_exp_f32 v{tmp(t,r)}, v{tmp(t,r)}")
    for (t, r) in regs: emit(f"v_add_f32 v{tmp(t,r)}, 1.0, v{tmp(t,r)}")
    for (t, r) in regs: emit(f"v_rcp_f32 v{tmp(t,r)}, v{tmp(t,r)}")
    for (t, r) in regs: emit(f"v_mul_f32 v{tmp(t,r)}, v{tmp(t,r)}, v{R.AGG+16*t+r}")
    for r in range(13):
        emit(f"v_cvt_pk_bf16_f32 v{R.Z[1]+r}, v{tmp(0,r)}, v{tmp(1,r)}")
    for r in range(12):
        row = (r // 4) * 8 + r % 4
        emit(f"buffer_store_dword v{R.Z[1]+r}, v{R.t0}, s[{SO}:{SO+3}], s{S_NODE0} offen offset:{row*128}")
    emit("s_mov_b64 exec, 0xffffffff")
    emit(f"buffer_store_dword v{R.Z[1]+12}, v{R.t0}, s[{SO}:{SO+3}], s{S_NODE0} offen offset:{24*128}")
    if Opt.STAMP:
        emit("s_waitcnt vmcnt(0)")
        stamp()
        emit(f"s_lshl_b32 s{S_T0}, s2, 3")
        emit(f"s_add_u32 s{S_T0}, s{S_T0}, s{S_WAVE}")
        assert _st["n"] == 13, _st["n"]; _st["n"] = 14
        emit("s_mov_b64 exec, 0xffffffff")
        emit(f"s_lshl_b32 s{S_T1}, s{S_T0}, 7")
        emit(f"s_add_u32 s{S_T1}, s{S_T1}, {STB + (2 << 20):#x}")
        emit(f"v_lshrrev_b32 v255, 2, v{R.lane16}")
        emit(f"buffer_store_dword v254, v255, s[{SW}:{SW+3}], s{S_T1} offen")
        stamp_flush(1, SW, S_T0, R.w0, S_T1)
    label("K2_end")
    emit("s_endpgm")
    label("K2_empty")
    emit(f"s_cmp_lg_u32 s{S_MODE}, 0")
    emit("s_cbranch_scc1 K2_main_done")
    frag_reads()
    pu_block()
    emit("s_branch K2_main_done")
    label("K2_slow_init")
    frag_reads()
    pu_block()
    emit(f"s_mov_b32 s{S_MODE}, 1")
    emit(f"s_mov_b32 s{S_IT}, 0")
    emit(f"s_mov_b32 s{S_P}, 0")
    emit("s_branch K2_slow_batch")
    label("K2_slow_next")
    emit(f"s_add_u32 s{S_P}, s{S_P}, 1")
    emit(f"s_cmp_lg_u32 s{S_TOT}, 0")
    emit("s_cbranch_scc1 K2_slow_batch")
    emit(f"s_mov_b32 s{S_P}, 0")
    emit(f"s_add_u32 s{S_IT}, s{S_IT}, 1")
    emit(f"s_cmp_ge_u32 s{S_IT}, 4")
    emit("s_cbranch_scc1 K2_epi")
    label("K2_slow_batch")
    emit("s_waitcnt vmcnt(0) lgkmcnt(0)")
    emit("s_barrier")
    emit(f"s_cmp_lg_u32 s{S_WAVE}, 0")
    emit("s_cbranch_scc1 K2_slow_nocnt")
    emit(f"v_and_b32 v{R.w1d}, 63, v0")
    cnt_init(R.w1d)
    label("K2_slow_nocnt")
    emit(f"v_lshrrev_b32 v{a}, 3, v0")
    emit(f"v_and_b32 v{b}, 7, v0")
    emit(f"v_lshlrev_b32 v{R.t0}, 4, v{a}")
    emit(f"s_lshl_b32 s{S_T0}, s{S_IT}, 2")
    emit(f"s_add_u32 s{S_T0}, s{S_T0}, s{S_TABO}")
    emit(f"buffer_load_dword v{R.t1}, v{R.t0}, s[{SW}:{SW+3}], s{S_T0} offen")
    emit(f"s_lshl_b32 s{S_T0}, s{S_IT}, 6")
    emit(f"v_add_u32 v{a}, s{S_T0}, v{a}")
    emit(f"s_lshl_b32 s{S_T1}, s{S_P}, 3")
    emit(f"v_add_u32 v{b}, s{S_T1}, v{b}")
    emit(f"v_cmp_gt_u32 vcc, {NCH}, v{a}")
    emit(f"v_mul_u32_u24 v{a}, {CH}, v{a}")
    emit(f"v_add_u32 v{a}, v{a}, v{b}")
    emit("s_waitcnt vmcnt(0) lgkmcnt(0)")
    emit("s_barrier")
    emit(f"v_cndmask_b32 v{R.t1}, 0, v{R.t1}, vcc")
    emit(f"v_lshrrev_b32 v{R.t0}, 16, v{R.t1}")
    emit(f"v_and_b32 v{R.t1}, 0xffff, v{R.t1}")
    emit(f"v_add_lshl_u32 v{a}, v{a}, v{R.t1}, 3")
    emit(f"v_cmp_lt_u32 vcc, v{b}, v{R.t0}")
    emit(f"v_mov_b32 v{R.w0}, 0x7ffffff0")
    emit("s_nop 1")
    emit(f"v_cndmask_b32 v{a}, v{R.w0}, v{a}, vcc")
    emit(f"buffer_load_dwordx2 v[{R.w0+2}:{R.w0+3}], v{a}, s[{SW}:{SW+3}], 0 offen")
    emit(f"v_mov_b32 v{R.t0}, 4")
    emit("s_waitcnt vmcnt(0)")
    emit(f"v_lshrrev_b32 v{a}, 27, v{R.w0+3}")
    emit("s_mov_b64 exec, vcc")
    emit(f"ds_add_rtn_u32 v{b}, v{a}, v{R.t0} offset:{CNT}")
    emit("s_waitcnt lgkmcnt(0)")
    emit(f"ds_write2st64_b32 v{b}, v{R.w0+2}, v{R.w0+3} offset0:0 offset1:{L1OFF}")
    emit("s_mov_b64 exec, -1")
    emit("s_waitcnt lgkmcnt(0)")
    emit("s_barrier")
    emit("s_branch K2_counts")

def kd(name, vgpr, sgpr):
    acc = (vgpr + 3) // 4 * 4
    out.append(".p2align 6")
    out.append(f".amdhsa_kernel {name}")
    out.append(f"  .amdhsa_next_free_vgpr {vgpr}")
    out.append(f"  .amdhsa_next_free_sgpr {sgpr}")
    out.append(f"  .amdhsa_accum_offset {acc}")
    out.append("  .amdhsa_group_segment_fixed_size 0")
    out.append("  .amdhsa_kernarg_size 80")
    out.append("  .amdhsa_user_sgpr_count 2")
    out.append("  .amdhsa_user_sgpr_kernarg_segment_ptr 1")
    out.append("  .amdhsa_system_sgpr_workgroup_id_x 1")
    out.append(".end_amdhsa_kernel")

hdr = open("standalone__edge_featured_mpnn_egc__graph.s.ref").read().split("\n")
for l in hdr:
    if l.startswith("; Override"): break
    out.append(l)
out.append(f"; @launch kernel=part_kernel grid=(252,1,1) block=({K1_T},1,1) lds={K1_LDS}")
out.append(f"; @launch kernel=cons_kernel grid=(256,1,1) block=(512,1,1) lds={K2_LDS}")
out.append('.amdgcn_target "amdgcn-amd-amdhsa--gfx950"')
out.append(".text")
gen_k1()
gen_k2()
out.append('.section .rodata,"a"')
kd("part_kernel", 64, 64 if Opt.STAMP else 32)
kd("cons_kernel", 256 if Opt.STAMP else K2_VGPR, 102 if Opt.STAMP else K2_SGPR)
print("\n".join(out))
```

```python
import sys

class Opt:
    FOLD = True
    NT_E = True
    NT_IDX = True
    NODMA = False
    NOLDS = False
    XZERO = False
    EZERO = False
    FIXNG = 0
    PRIO = 3
    PFB = 0
    PFC = 0
    PFD = 0x00
    PFE = 0x00
    OUTPOL = 0
    NT_XT = True
    NT_X = False
    STAMP = False
    DBG = False

for a in sys.argv[1:]:
    if '=' in a:
        k, v = a.split('=')
        setattr(Opt, k, type(getattr(Opt, k))(int(v)))

N = 50000; E = 800000
NB = 250; CH = 3200; NCH = 250; TN = 25
CHS = 3216
WS_REC = 0
WS_TAB = 0x700000
WS_WF = 0x780000
WS_SIZE = 0x10000000
NLOG2E = 0xbfb8aa3b

out = []
def emit(s): out.append("    " + s)
def label(s): out.append(s + ":")
def comment(s): out.append("    ; " + s)

def srd(base, ptr, size):
    emit(f"s_mov_b32 s{base}, s{ptr}")
    emit(f"s_and_b32 s{base+1}, s{ptr+1}, 0xffff")
    emit(f"s_mov_b32 s{base+2}, {size:#x}")
    emit(f"s_mov_b32 s{base+3}, 0x20000")

STB = 0xF000000
_st = {"base": 72, "n": 0}
def stamp_begin(base):
    _st["base"] = base; _st["n"] = 0
def stamp(kind="s_memrealtime"):
    if not Opt.STAMP: return
    b = _st["base"] + 2 * _st["n"]; _st["n"] += 1
    emit(f"{kind} s[{b}:{b+1}]")
def cstamp(): stamp("s_memtime")
def vstamp(sreg):
    if not Opt.STAMP: return
    b = _st["base"] + 2 * _st["n"]; _st["n"] += 1
    emit(f"s_mov_b32 s{b}, s{sreg}")
    emit(f"s_mov_b32 s{b+1}, 0")
def dbg_flush(kidx, sel, va, sa):
    emit(f"s_load_dwordx2 s[{sa+4}:{sa+5}], s[0:1], 64")
    emit("s_waitcnt lgkmcnt(0)")
    if kidx == 0:
        emit(f"s_add_u32 s{sa+4}, s{sa+4}, 512")
        emit(f"s_addc_u32 s{sa+5}, s{sa+5}, 0")
    srd(sa, sa+4, 256)
    emit("s_mov_b64 exec, 1")
    emit(f"v_mov_b32 v{va+2}, 0")
    for (k, slot, kind) in sel:
        b = _st["base"] + 2 * k
        emit(f"v_mov_b32 v{va}, s{b}")
        if kind == 'min': emit(f"v_not_b32 v{va}, v{va}")
        emit(f"buffer_atomic_umax v{va}, v{va+2}, s[{sa}:{sa+3}], 0 offen offset:{4*slot}")
        emit("s_nop 1")

def stamp_flush(kidx, srdn, swave_global, va, tmp_s):
    if not Opt.STAMP: return
    if Opt.DBG:
        emit("s_waitcnt lgkmcnt(0)")
        emit(f"s_and_b32 s{tmp_s}, s{swave_global}, {0x7b if kidx else 0x1ff}")
        emit(f"s_cmp_lg_u32 s{tmp_s}, 0")
        emit(f"s_cbranch_scc1 {'K2_end' if kidx else 'K1_end'}")
        if kidx == 0: dbg_flush(0, [(0,0,'min'),(0,1,'max'),(1,2,'max'),(4,3,'max')], va, 44)
        else: dbg_flush(1, [(0,4,'min'),(0,5,'max'),(1,6,'max'),(4,7,'min'),(4,8,'max'),(7,9,'min'),(7,10,'max'),(9,11,'min'),(9,12,'max'),(12,13,'max')], va, 32)
        return
    emit("s_waitcnt lgkmcnt(0)")
    emit("s_mov_b64 exec, 1")
    emit(f"s_lshl_b32 s{tmp_s}, s{swave_global}, 7")
    emit(f"s_add_u32 s{tmp_s}, s{tmp_s}, {STB + (kidx << 20):#x}")
    emit(f"v_mov_b32 v{va+2}, 0")
    for k in range(_st["n"]):
        b = _st["base"] + 2 * k
        emit(f"v_mov_b32 v{va}, s{b}")
        emit(f"v_mov_b32 v{va+1}, s{b+1}")
        emit(f"buffer_store_dwordx2 v[{va}:{va+1}], v{va+2}, s[{srdn}:{srdn+3}], s{tmp_s} offen offset:{8*k}")
        emit("s_nop 1")

def vr(b, n): return f"v[{b}:{b+n-1}]"

CNT = 0
AOT = 64
SM = AOT + 2560; SM_W = 2560
STG0 = SM + 8 * SM_W
assert STG0 % 16 == 0
BUFW = 5120
BUF = 8 * BUFW
WFL = STG0 + BUF
L0 = STG0 + 2 * BUF
CAP = 576; CAPT = 704
LST = CAPT * 4
L1 = L0 + 8 * LST
K2_LDS = L1 + 8 * LST
L1OFF = (L1 - L0) // 256
assert (L1 - L0) % 256 == 0 and K2_LDS <= 163840 and L0 % 16 == 0

class R: pass
_next = [1]
def alloc(n, align=1):
    b = _next[0]
    b = (b + align - 1) // align * align
    _next[0] = b + n
    return b
R.lane16 = alloc(1); R.dmab = alloc(1); R.rde = alloc(1)
R.rd = alloc(4)
R.l0a = alloc(1); R.l1a = alloc(1); R.h16 = alloc(1); R.aoc = alloc(1); R.sc = alloc(1); R.sr = alloc(1)
R.one = alloc(1); R.zero = alloc(1); R.eh16 = alloc(1); R.l1b = alloc(1)
R.w1d = alloc(1); R.w1n = alloc(1); R.aoa = alloc(1); R.sa = alloc(1); R.t0 = alloc(1); R.t1 = alloc(1)
R.pf = alloc(1); R.pfo = alloc(1)
R.w0 = alloc(4, 4)
R.WB = alloc(32, 4); R.WC = alloc(8, 4); R.WV = alloc(32, 4); R.P = alloc(16, 4)
R.AGG = alloc(32, 4)
R.Z = [alloc(16, 4), 0]; R.H = [alloc(16, 4), 0]
R.Z[1] = alloc(16, 4); R.H[1] = alloc(16, 4)
R.AX = alloc(16, 4); R.AE = alloc(4, 4); R.AO = alloc(8, 4); R.AS = alloc(8, 4)
K2_VGPR = _next[0]
assert K2_VGPR <= 256, K2_VGPR

SX = 8; SE = 12; SO = 16; SW = 20
S_B = 3; S_WAVE = 4; S_NG = 5; S_G = 6; S_MODE = 7
S_STG = 24; S_MSKE = 25; S_80 = 26; S_N = 27; S_IT = 28; S_P = 29; S_TOT = 30; S_T0 = 31
S_MASK = 32
S_T1 = 64; S_T2 = 65; S_C = 66; S_TABO = 67; S_NODE0 = 68; S_T3 = 69; S_GP = 70; S_TILE = 71
K2_SGPR = 72

def WB(s, t): return vr(R.WB + (s * 2 + t) * 4, 4)
def WV(s, t): return vr(R.WV + (s * 2 + t) * 4, 4)
def WC(t): return vr(R.WC + t * 4, 4)
def PP(s, t): return vr(R.P + (s * 2 + t) * 4, 4)
def AX(s): return vr(R.AX + s * 4, 4)
def AO(s): return vr(R.AO + s * 4, 4)
def AS(s): return vr(R.AS + s * 4, 4)
AE = vr(R.AE, 4)
def AGG(t): return vr(R.AGG + t * 16, 16)
def Zr(t): return vr(R.Z[t], 16)
def Hr(t): return vr(R.H[t], 16)
def mfma(d, a, b, c): return f"v_mfma_f32_32x32x16_bf16 {d}, {a}, {b}, {c}"

def zh_mfmas(t):
    z, h = Zr(t), Hr(t)
    m = [mfma(z, AO(0), PP(0, t), "0"), mfma(z, AO(1), PP(1, t), z), mfma(z, AE, WC(t), z)]
    for s in range(4):
        m.append(mfma(z, AX(s), WB(s, t), z))
        m.append(mfma(h, AX(s), WV(s, t), "0" if s == 0 else h))
    return m

def agg_mfmas(t):
    return [mfma(AGG(t), AS(0), vr(R.Z[t], 4), AGG(t)), mfma(AGG(t), AS(1), vr(R.Z[t] + 8, 4), AGG(t))]

def sig_stream(t):
    z, h = R.Z[t], R.H[t]
    st = []
    for m in range(4):
        rs = [4 * m + i for i in range(4)]
        if not Opt.FOLD:
            for r in rs: st.append((f"v_mul_f32 v{z+r}, s{S_C}, v{z+r}", 4))
        for r in rs: st.append((f"v_exp_f32 v{z+r}, v{z+r}", 8))
        for r in rs: st.append((f"v_add_f32 v{z+r}, 1.0, v{z+r}", 4))
        for r in rs: st.append((f"v_rcp_f32 v{z+r}, v{z+r}", 8))
        for r in rs: st.append((f"v_mul_f32 v{z+r}, v{z+r}, v{h+r}", 4))
        d = 8 * (m // 2) + 2 * (m % 2)
        st.append((f"v_cvt_pk_bf16_f32 v{z+d}, v{z+4*m}, v{z+4*m+1}", 4))
        st.append((f"v_cvt_pk_bf16_f32 v{z+d+1}, v{z+4*m+2}, v{z+4*m+3}", 4))
    return st

def dma_issue(bufoff, w0, w1):
    nte = " nt" if Opt.NT_E else ""
    seq = [f"s_add_u32 m0, s{S_STG}, {bufoff}"]
    for t in range(4):
        if Opt.XZERO: seq.append(f"v_and_or_b32 v{w0+t}, v{w0+t}, s71, v{R.dmab}")
        else: seq.append(f"v_xad_u32 v{w0+t}, v{R.dmab}, {16*t}, v{w0+t}")
        seq.append(f"buffer_load_dwordx4 v{w0+t}, s[{SX}:{SX+3}], 0 offen{' nt' if Opt.NT_X else ''} lds")
        seq.append("s_add_u32 m0, m0, 0x400")
    seq.append(f"v_and_or_b32 v{w1}, v{w1}, s{S_MSKE}, v{R.eh16}")
    seq.append(f"buffer_load_dwordx4 v{w1}, s[{SE}:{SE+3}], 0 offen{nte} lds")
    return seq

def nl_addr():
    return [f"v_and_b32 v{R.w1n}, 31, v{R.w1n}",
            f"v_mad_u32_u24 v{R.aoa}, v{R.w1n}, s{S_80}, v{R.aoc}",
            f"v_mad_u32_u24 v{R.sa}, v{R.w1n}, s{S_80}, v{R.sc}"]

def interleave(valu, mfmas, after, pre=None):
    pre = pre or {}
    def keep(x):
        if Opt.NODMA and (x.startswith("buffer_load") or "vmcnt" in x): return False
        if Opt.NOLDS and (x.startswith("ds_") or "lgkmcnt" in x): return False
        return True
    total = sum(c for _, c in valu)
    n = len(mfmas)
    tail = 48 if not Opt.FOLD else 56
    spacing = (total - tail) / (n - 1)
    k = 0; cum = 0
    for ins, c in valu:
        while k < n and cum >= k * spacing - 1e-9:
            for x in pre.get(k, []):
                if keep(x): emit(x)
            emit(mfmas[k])
            for x in after.get(k, []):
                if keep(x): emit(x)
            k += 1
        emit(ins); cum += c
    assert k == n, (k, n)

def group_body(par, lo):
    nb = BUF * (1 - par)
    m = agg_mfmas(1) + zh_mfmas(1)
    after = {
        0: [f"ds_read_b32 v{R.w1n}, v{R.l1a} offset:{lo+128}"],
        1: [f"ds_write_b16 v{R.sa}, v{R.one}",
            f"ds_read_b128 {AS(0)}, v{R.sr}",
            f"ds_read_b128 {AS(1)}, v{R.sr} offset:32",
            f"ds_write_b16 v{R.sa}, v{R.zero}"],
        3: ["s_waitcnt lgkmcnt(4)"] + nl_addr() +
           [f"ds_read_b128 {AO(0)}, v{R.aoa}", f"ds_read_b128 {AO(1)}, v{R.aoa} offset:32"],
        4: ["s_waitcnt vmcnt(5)", f"ds_read_b128 {AE}, v{R.rde} offset:{nb}"],
        6: [f"ds_read_b128 {AX(0)}, v{R.rd} offset:{nb}"],
        8: [f"ds_read_b128 {AX(1)}, v{R.rd+1} offset:{nb}"],
        10: [f"ds_read_b128 {AX(2)}, v{R.rd+2} offset:{nb}",
             f"ds_read_b128 {vr(R.w0,4)}, v{R.l0a} offset:{lo+384}",
             f"ds_read_b32 v{R.w1d}, v{R.l1b} offset:{lo+384}"],
        12: [f"ds_read_b128 {AX(3)}, v{R.rd+3} offset:{nb}"],
    }
    interleave(sig_stream(0), m, after)
    m = agg_mfmas(0) + zh_mfmas(0)
    d = dma_issue(nb, R.w0, R.w1d)
    pre = {0: ["s_waitcnt lgkmcnt(1)"]}
    after = {1: ["s_waitcnt lgkmcnt(0)"] + d[0:4], 2: d[4:7], 3: d[7:10], 4: d[10:13], 5: d[13:15]}
    interleave(sig_stream(1), m, after, pre)

def gtrace():
    if not Opt.STAMP: return
    emit("s_memtime s[100:101]")
    emit("s_waitcnt lgkmcnt(0)")
    emit(f"s_mov_b32 m0, s{S_G}")
    emit("s_nop 0")
    emit(f"v_writelane_b32 v254, s100, m0")

def prio_check(tag):
    if not Opt.PRIO: return
    emit(f"s_cmp_lg_u32 s{S_G}, s{S_GP}")
    emit(f"s_cbranch_scc1 K2_np{tag}")
    emit("s_setprio 0")
    label(f"K2_np{tag}")

def pu_block():
    aw = [R.Z[0], R.H[0]]; uu = [R.Z[1], R.H[1]]
    for t in range(2):
        for sx in range(4):
            emit(mfma(AGG(t), AX(sx), vr(uu[t] + 4 * sx, 4), "0" if sx == 0 else AGG(t)))
    for t in range(2):
        for sx in range(4):
            emit(mfma(vr(uu[t], 16), AX(sx), vr(aw[t] + 4 * sx, 4), "0" if sx == 0 else vr(uu[t], 16)))
    emit("s_nop 7")
    for t in range(2):
        if t == 1 and not Opt.FOLD: emit("s_nop 3")
        if Opt.FOLD:
            for r in range(16):
                emit(f"v_mul_f32 v{uu[t]+r}, s{S_C}, v{uu[t]+r}")
        for sx in range(2):
            for j in range(4):
                emit(f"v_cvt_pk_bf16_f32 v{R.P+(sx*2+t)*4+j}, v{uu[t]+8*sx+2*j}, v{uu[t]+8*sx+2*j+1}")

def cnt_init(lane):
    emit(f"v_and_b32 v{R.w0+1}, 7, v{lane}")
    emit(f"v_mul_u32_u24 v{R.aoa}, {LST}, v{R.w0+1}")
    emit(f"v_add_u32 v{R.aoa}, {L0}, v{R.aoa}")
    emit(f"v_lshlrev_b32 v{R.w0+1}, 2, v{R.w0+1}")
    emit(f"ds_write_b32 v{R.w0+1}, v{R.aoa} offset:{CNT}")

KNAME = "standalone__edge_featured_mpnn_egc__graph_kernel"
P1_HIST = L0; P1_START = L0 + 1024; P1_SORT = L0 + 2048
OP = {0: "", 1: " nt", 2: " sc1", 3: " sc0 sc1"}[Opt.OUTPOL]
SPIN_MAX = 1 << 20

_pf = [0]
def prefetch(mask):
    if not mask: return 0
    npop = bin(mask).count("1")
    emit(f"s_lshl_b32 s{S_T0}, 1, s{S_WAVE}")
    emit(f"s_sub_u32 s{S_T1}, s{S_T0}, 1")
    emit(f"s_and_b32 s{S_T1}, s{S_T1}, {mask:#x}")
    emit(f"s_bcnt1_i32_b32 s{S_T1}, s{S_T1}")
    emit(f"s_add_u32 s{S_T1}, s{S_T1}, {_pf[0]}")
    emit(f"s_lshl_b32 s{S_T1}, s{S_T1}, 18")
    emit(f"s_and_b32 s{S_T0}, s{S_T0}, {mask:#x}")
    emit(f"s_cselect_b32 s{S_T1}, s{S_T1}, 0x7f000000")
    emit(f"buffer_load_dword v{R.pf}, v{R.pfo}, s[{SX}:{SX+3}], s{S_T1} offen")
    _pf[0] += npop
    return 1

def list_prefill():
    z = R.H[1]
    for r in range(4):
        emit(f"v_mov_b32 v{z+r}, 0x7fffff80")
        emit(f"v_mov_b32 v{z+4+r}, {0x1fffffe0 | TN:#x}")
    emit(f"v_lshlrev_b32 v{z+8}, 4, v0")
    emit(f"v_add_u32 v{z+9}, 0x4000, v{z+8}")
    emit(f"v_min_u32 v{z+9}, {8*LST-16}, v{z+9}")
    emit(f"v_add_u32 v{z+8}, {L0}, v{z+8}")
    emit(f"v_add_u32 v{z+9}, {L0}, v{z+9}")
    for (arr, off) in ((z, 0), (z + 4, L1 - L0)):
        emit(f"ds_write_b128 v{z+8}, {vr(arr,4)} offset:{off}")
        emit(f"ds_write_b128 v{z+8}, {vr(arr,4)} offset:{off+8192}")
        emit(f"ds_write_b128 v{z+9}, {vr(arr,4)} offset:{off}")

def gen_fused():
    nt = " nt" if Opt.NT_IDX else ""
    out.append(".p2align 8")
    out.append(f".globl {KNAME}")
    out.append(f".type {KNAME},@function")
    label(KNAME)
    emit("s_cmp_ge_u32 s2, 256")
    emit("s_cbranch_scc1 K2_end")
    emit("s_and_b32 s3, s2, 7")
    emit("s_lshl_b32 s3, s3, 5")
    emit("s_lshr_b32 s4, s2, 3")
    emit(f"s_add_u32 s{S_B}, s3, s4")
    emit(f"s_cmp_ge_u32 s{S_B}, {NB}")
    emit("s_cbranch_scc1 K2_end")
    stamp_begin(72); stamp()
    if Opt.STAMP: emit("s_memtime s[98:99]")
    emit("s_load_dwordx16 s[40:55], s[0:1], 0")
    emit("s_load_dwordx4 s[56:59], s[0:1], 64")
    emit("s_memrealtime s[60:61]")
    t0, t1 = R.t0, R.t1
    D = R.WB; S = R.WB + 8; GT = R.WB + 16; BA = R.WB + 24; RKS = R.WC; W = R.WV; TM = R.WV + 16
    emit(f"v_lshrrev_b32 v{t0}, 6, v0")
    emit(f"v_and_b32 v{t1}, 63, v0")
    emit(f"v_readfirstlane_b32 s{S_WAVE}, v{t0}")
    emit(f"v_lshlrev_b32 v{R.lane16}, 4, v{t1}")
    emit(f"v_lshlrev_b32 v{TM}, 4, v0")
    emit(f"v_cmp_gt_u32 s[{S_IT}:{S_IT+1}], 0x120, v0" if False else f"v_cmp_gt_u32 vcc, 0x120, v0")
    emit(f"v_mov_b32 v{R.w0}, 0x7ffffff0")
    emit(f"v_add_u32 v{TM+1}, 0x2000, v{TM}")
    emit(f"s_mul_i32 s{S_T0}, s{S_B}, 12800")
    emit(f"v_cndmask_b32 v{TM+1}, v{R.w0}, v{TM+1}, vcc")
    emit(f"s_mov_b64 s[{S_IT}:{S_IT+1}], vcc")
    if Opt.PRIO: emit("s_setprio 1")
    emit("s_waitcnt lgkmcnt(0)")
    srd(32, 46, E * 4)
    emit(f"buffer_load_dwordx4 {vr(D,4)}, v{TM}, s[32:35], s{S_T0} offen{nt}")
    emit(f"buffer_load_dwordx4 {vr(D+4,4)}, v{TM+1}, s[32:35], s{S_T0} offen{nt}")
    srd(36, 44, E * 4)
    emit(f"buffer_load_dwordx4 {vr(S,4)}, v{TM}, s[36:39], s{S_T0} offen{nt}")
    emit(f"buffer_load_dwordx4 {vr(S+4,4)}, v{TM+1}, s[36:39], s{S_T0} offen{nt}")
    srd(SX, 40, N * 128)
    srd(SE, 42, E * 32)
    srd(SO, 54, N * 128)
    srd(SW, 58, WS_SIZE)
    srd(40, 56, 256)
    i, h = R.w1n, R.w1d
    a, b = R.aoa, R.sa
    emit(f"v_and_b32 v{i}, 31, v{t1}")
    emit(f"v_lshrrev_b32 v{h}, 5, v{t1}")
    emit(f"v_lshlrev_b32 v{R.h16}, 4, v{h}")
    emit(f"v_mov_b32 v{R.zero}, 0")
    emit(f"s_or_b32 s{S_T0}, s{S_B}, s{S_WAVE}")
    emit(f"s_cmp_lg_u32 s{S_T0}, 0")
    emit("s_cbranch_scc1 F_notag")
    emit("s_and_b32 s61, s61, 0xff")
    emit("s_or_b32 s61, s61, 0x100")
    emit(f"v_mov_b32 v{R.w0+2}, s60")
    emit(f"v_mov_b32 v{R.w0+3}, s61")
    emit("s_mov_b64 exec, 1")
    emit(f"buffer_store_dwordx2 v[{R.w0+2}:{R.w0+3}], v{R.zero}, s[40:43], 0 offen sc1")
    emit("s_mov_b64 exec, -1")
    label("F_notag")
    RW = R.Z[0]
    emit(f"s_mul_i32 s{S_STG}, s{S_WAVE}, {BUFW}")
    emit(f"s_add_u32 s{S_STG}, s{S_STG}, {STG0}")
    emit(f"v_and_b32 v{t0}, 7, v{t1}")
    emit(f"v_lshlrev_b32 v{R.dmab}, 2, v{h}")
    emit(f"v_xor_b32 v{R.dmab}, v{R.dmab}, v{t0}")
    emit(f"v_lshlrev_b32 v{R.dmab}, 4, v{R.dmab}")
    emit(f"s_mul_i32 s{S_NODE0}, s{S_B}, 200")
    emit(f"s_mul_i32 s{S_T0}, s{S_WAVE}, {TN}")
    emit(f"s_add_u32 s{S_NODE0}, s{S_NODE0}, s{S_T0}")
    emit(f"s_lshl_b32 s{S_NODE0}, s{S_NODE0}, 7")
    emit(f"s_mov_b32 s{S_MSKE}, {0xffe0 if Opt.EZERO else 0x1fffffe0:#x}")
    if Opt.XZERO: emit("s_mov_b32 s71, 0xff80")
    emit(f"s_movk_i32 s{S_80}, 80")
    emit(f"s_mov_b32 s{S_C}, {NLOG2E:#x}")
    emit(f"s_mov_b32 s{S_MODE}, 0")
    emit(f"v_mov_b32 v{R.one}, 0x3f80")
    emit(f"v_and_b32 v{t0}, 19, v{i}")
    emit(f"v_and_b32 v{a}, 4, v{i}")
    emit(f"v_lshl_or_b32 v{t0}, v{a}, 1, v{t0}")
    emit(f"v_and_b32 v{a}, 8, v{i}")
    emit(f"v_lshrrev_b32 v{a}, 1, v{a}")
    emit(f"v_or_b32 v{t0}, v{t0}, v{a}")
    emit(f"v_lshlrev_b32 v{t0}, 1, v{t0}")
    emit(f"s_mul_i32 s{S_T0}, s{S_WAVE}, {SM_W}")
    emit(f"s_add_u32 s{S_T0}, s{S_T0}, {SM}")
    emit(f"v_add_u32 v{R.sc}, s{S_T0}, v{t0}")
    emit(f"v_mad_u32_u24 v{a}, v{i}, s{S_80}, v{R.h16}")
    emit(f"v_add_u32 v{R.sr}, s{S_T0}, v{a}")
    emit(f"v_add_u32 v{R.aoc}, {AOT}, v{R.h16}")
    emit(f"v_mov_b32 v{R.w0+2}, 0")
    emit(f"v_mov_b32 v{R.w0+3}, 0")
    emit(f"v_lshlrev_b32 v{b}, 3, v{t1}")
    emit(f"s_cmp_lg_u32 s{S_WAVE}, 7")
    emit("s_cbranch_scc1 F_noinit")
    emit(f"v_add_u32 v{a}, {P1_HIST}, v{b}")
    emit(f"ds_write_b64 v{a}, v[{R.w0+2}:{R.w0+3}]")
    emit(f"ds_write_b64 v{a}, v[{R.w0+2}:{R.w0+3}] offset:512")
    cnt_init(t1)
    for k in range(5):
        emit(f"ds_write_b64 v{b}, v[{R.w0+2}:{R.w0+3}] offset:{AOT+512*k}")
    emit(f"v_mad_u32_u24 v{a}, v{i}, s{S_80}, v{t0}")
    emit(f"ds_write_b16 v{a}, v{R.one} offset:{AOT}")
    label("F_noinit")
    emit(f"v_add_u32 v{a}, s{S_T0}, v{b}")
    for k in range(5):
        emit(f"ds_write_b64 v{a}, v[{R.w0+2}:{R.w0+3}] offset:{512*k}")
    emit(f"v_and_b32 v{a}, 1, v{t1}")
    emit(f"v_xor_b32 v{a}, v{a}, v{h}")
    emit(f"v_lshlrev_b32 v{R.eh16}, 4, v{a}")
    emit(f"v_lshrrev_b32 v{a}, 4, v{i}")
    emit(f"v_xor_b32 v{a}, v{a}, v{h}")
    emit(f"v_lshlrev_b32 v{a}, 4, v{a}")
    emit(f"v_lshl_add_u32 v{a}, v{i}, 5, v{a}")
    emit(f"v_add_u32 v{R.rde}, s{S_STG}, v{a}")
    emit(f"v_add_u32 v{R.rde}, 0x1000, v{R.rde}")
    emit(f"v_and_b32 v{a}, 3, v{i}")
    emit(f"v_lshrrev_b32 v{b}, 4, v{i}")
    emit(f"v_lshl_add_u32 v{b}, v{b}, 2, v{a}")
    emit(f"v_xor_b32 v{b}, v{b}, v{h}")
    emit(f"v_lshlrev_b32 v{b}, 4, v{b}")
    emit(f"v_lshlrev_b32 v{a}, 10, v{a}")
    emit(f"v_lshrrev_b32 v{t0}, 2, v{i}")
    emit(f"v_lshl_add_u32 v{a}, v{t0}, 7, v{a}")
    emit(f"v_add_u32 v{a}, s{S_STG}, v{a}")
    emit(f"s_movk_i32 s{S_T2}, 96")
    for s in range(4):
        c = ["0", "32", "64", f"s{S_T2}"][s]
        emit(f"v_xad_u32 v{R.rd+s}, v{b}, {c}, v{a}")
    emit(f"s_mul_i32 s{S_T0}, s{S_WAVE}, {LST}")
    emit(f"s_add_u32 s{S_T0}, s{S_T0}, {L0}")
    emit(f"v_lshrrev_b32 v{a}, 3, v{t1}")
    emit(f"v_lshlrev_b32 v{a}, 4, v{a}")
    emit(f"v_add_u32 v{R.l0a}, s{S_T0}, v{a}")
    emit(f"v_lshlrev_b32 v{a}, 2, v{i}")
    emit(f"v_add_u32 v{a}, s{S_T0}, v{a}")
    emit(f"v_add_u32 v{R.l1a}, {L1-L0}, v{a}")
    emit(f"v_lshrrev_b32 v{a}, 1, v{t1}")
    emit(f"v_lshlrev_b32 v{a}, 2, v{a}")
    emit(f"v_add_u32 v{a}, s{S_T0}, v{a}")
    emit(f"v_add_u32 v{R.l1b}, {L1-L0}, v{a}")
    emit(f"s_lshr_b32 s{S_T0}, s2, 3")
    emit(f"s_lshl_b32 s{S_T0}, s{S_T0}, 13")
    emit(f"v_lshlrev_b32 v{R.pfo}, 7, v{t1}")
    emit(f"v_add_u32 v{R.pfo}, s{S_T0}, v{R.pfo}")
    emit(f"s_mov_b32 s{S_T3}, 83887")
    emit(f"s_mul_i32 s{S_T0}, s{S_B}, 102400")
    emit(f"v_lshlrev_b32 v{TM+2}, 7, v0")
    emit(f"v_add_u32 v{TM+2}, s{S_T0}, v{TM+2}")
    emit(f"v_add_u32 v{TM+3}, 0x10000, v{TM+2}")
    emit(f"v_mov_b32 v{TM+4}, 1")
    emit("s_waitcnt lgkmcnt(0)")
    emit("s_barrier")
    emit(f"v_lshrrev_b32 v{t0}, 3, v{t1}")
    emit(f"v_lshlrev_b32 v{t0}, 9, v{t0}")
    emit(f"s_mov_b32 m0, s{S_STG}")
    emit(f"s_mov_b32 s{S_T0}, s{S_NODE0}")
    for t in range(4):
        emit(f"v_xad_u32 v{R.AE+t}, v{R.dmab}, {16*t}, v{t0}")
        emit(f"buffer_load_dwordx4 v{R.AE+t}, s[{SX}:{SX+3}], s{S_T0} offen{' nt' if Opt.NT_XT else ''} lds")
        emit("s_add_u32 m0, m0, 0x400")
        emit(f"s_add_u32 s{S_T0}, s{S_T0}, 128")
    emit("s_waitcnt vmcnt(6)")
    stamp()
    for j in range(8): emit(f"v_mul_u32_u24 v{GT+j}, s{S_T3}, v{D+j}")
    for j in range(8): emit(f"v_lshrrev_b32 v{BA+j}, 24, v{GT+j}")
    for j in range(8): emit(f"v_lshlrev_b32 v{BA+j}, 2, v{BA+j}")
    for j in range(8): emit(f"v_add_u32 v{BA+j}, {P1_HIST}, v{BA+j}")
    for j in range(4): emit(f"ds_add_rtn_u32 v{RKS+j}, v{BA+j}, v{TM+4}")
    emit(f"s_mov_b64 exec, s[{S_IT}:{S_IT+1}]")
    for j in range(4, 8): emit(f"ds_add_rtn_u32 v{RKS+j}, v{BA+j}, v{TM+4}")
    emit("s_mov_b64 exec, -1")
    emit(f"v_lshlrev_b32 v{a}, 2, v{i}")
    emit(f"v_lshl_add_u32 v{a}, v{h}, 10, v{a}")
    def wsel(ks_reg):
        emit(f"s_cmp_lt_u32 s{ks_reg}, 13")
        emit("s_cselect_b32 s60, s50, s48")
        emit("s_cselect_b32 s61, s51, s49")
        emit(f"s_cselect_b32 s{S_T1}, 9, 13")
        emit(f"s_cmp_lt_u32 s{ks_reg}, 9")
        emit("s_cselect_b32 s60, s52, s60")
        emit("s_cselect_b32 s61, s53, s61")
        emit(f"s_cselect_b32 s{S_T1}, 0, s{S_T1}")
        emit(f"s_movk_i32 s{S_T2}, 0x2000")
        emit(f"s_cselect_b32 s62, 0x4800, s{S_T2}")
        emit("s_and_b32 s61, s61, 0xffff")
        emit("s_mov_b32 s63, 0x20000")
        emit(f"s_sub_u32 s{S_T1}, s{ks_reg}, s{S_T1}")
        emit(f"s_lshl_b32 s{S_T1}, s{S_T1}, 11")
    for rnd in range(2):
        emit(f"s_add_u32 s{S_T0}, s{S_WAVE}, {8*rnd}")
        wsel(S_T0)
        for q in range(8):
            emit(f"buffer_load_dword v{RW+8*rnd+q}, v{a}, s[60:63], s{S_T1} offen offset:{q*128}")
    emit(f"s_cmp_lg_u32 s{S_WAVE}, 0")
    emit("s_cbranch_scc1 F_now3")
    emit(f"s_mov_b32 s{S_T0}, 16")
    wsel(S_T0)
    for q in range(8):
        emit(f"buffer_load_dword v{RW+16+q}, v{a}, s[60:63], s{S_T1} offen offset:{q*128}")
    label("F_now3")
    emit(f"s_movk_i32 s{S_T2}, 96")
    for j in range(8): emit(f"v_lshrrev_b32 v{GT+j}, 21, v{GT+j}")
    for j in range(8): emit(f"v_mul_u32_u24 v{TM+8+j}, 25, v{GT+j}")
    for j in range(8): emit(f"v_sub_u32 v{D+j}, v{D+j}, v{TM+8+j}")
    for j in range(8): emit(f"v_lshl_or_b32 v{D+j}, v{GT+j}, 29, v{D+j}")
    for j in range(8):
        c = ["0", "32", "64", f"s{S_T2}"][j % 4]
        emit(f"v_add3_u32 v{W+2*j+1}, v{TM+2+j//4}, v{D+j}, {c}")
    emit("s_waitcnt lgkmcnt(0)")
    emit("s_barrier")
    TV = R.AO
    emit(f"s_cmp_lg_u32 s{S_WAVE}, 0")
    emit("s_cbranch_scc1 F_noscan")
    C0 = R.P
    emit(f"v_add_u32 v{C0+13}, {P1_HIST}, v{R.lane16}")
    emit(f"ds_read_b128 {vr(C0,4)}, v{C0+13}")
    emit("s_waitcnt lgkmcnt(0)")
    emit(f"v_add_u32 v{C0+4}, v{C0}, v{C0+1}")
    emit(f"v_add_u32 v{C0+5}, v{C0+4}, v{C0+2}")
    emit(f"v_add_u32 v{C0+6}, v{C0+5}, v{C0+3}")
    emit(f"v_mov_b32 v{C0+7}, v{C0+6}")
    sc = C0 + 7
    for sh in (1, 2, 4, 8):
        emit("s_nop 1")
        emit(f"v_add_u32_dpp v{sc}, v{sc}, v{sc} row_shr:{sh} row_mask:0xf bank_mask:0xf")
    emit("s_nop 1")
    emit(f"v_add_u32_dpp v{sc}, v{sc}, v{sc} row_bcast:15 row_mask:0xa bank_mask:0xf")
    emit("s_nop 1")
    emit(f"v_add_u32_dpp v{sc}, v{sc}, v{sc} row_bcast:31 row_mask:0xc bank_mask:0xf")
    emit(f"v_sub_u32 v{C0+8}, v{sc}, v{C0+6}")
    emit(f"v_add_u32 v{C0+9}, v{C0+8}, v{C0}")
    emit(f"v_add_u32 v{C0+10}, v{C0+8}, v{C0+4}")
    emit(f"v_add_u32 v{C0+11}, v{C0+8}, v{C0+5}")
    emit(f"ds_write_b128 v{C0+13}, {vr(C0+8,4)} offset:{P1_START-P1_HIST}")
    for j in range(4): emit(f"v_lshl_or_b32 v{TV+2*j}, v{C0+j}, 12, v{C0+8+j}")
    emit("s_waitcnt lgkmcnt(0)")
    label("F_noscan")
    emit("s_waitcnt vmcnt(20)")
    for j in range(8): emit(f"v_lshlrev_b32 v{W+2*j}, 7, v{S+j}")
    emit("s_barrier")
    for j in range(8): emit(f"ds_read_b32 v{GT+j}, v{BA+j} offset:{P1_START-P1_HIST}")
    emit(f"buffer_load_dwordx2 v[{R.AS}:{R.AS+1}], v{R.zero}, s[40:43], 0 offen sc1")
    nB = prefetch(Opt.PFB)
    emit("s_waitcnt lgkmcnt(0)")
    for j in range(8): emit(f"v_add_lshl_u32 v{GT+j}, v{GT+j}, v{RKS+j}, 3")
    for j in range(8): emit(f"v_add_u32 v{GT+j}, {P1_SORT}, v{GT+j}")
    for j in range(4): emit(f"ds_write_b64 v{GT+j}, v[{W+2*j}:{W+2*j+1}]")
    emit(f"s_mov_b64 exec, s[{S_IT}:{S_IT+1}]")
    for j in range(4, 8): emit(f"ds_write_b64 v{GT+j}, v[{W+2*j}:{W+2*j+1}]")
    emit("s_mov_b64 exec, -1")
    emit(f"v_add_u32 v{TM+5}, {P1_SORT}, v{TM}")
    emit(f"v_cmp_gt_u32 vcc, 64, v0")
    emit(f"v_add_u32 v{TM+6}, 0x6000, v{TM}")
    emit(f"s_mul_i32 s{S_T3}, s{S_B}, {CHS*8}")
    emit(f"v_cndmask_b32 v{TM+6}, v{R.w0}, v{TM+6}, vcc")
    emit(f"v_add_u32 v{TM+7}, 0x2000, v{TM}")
    emit(f"v_add_u32 v{TM+8}, 0x4000, v{TM}")
    emit("s_waitcnt lgkmcnt(0)")
    emit("s_barrier")
    for k in range(4):
        emit(f"ds_read_b128 {vr(D+4*k,4)}, v{TM+5} offset:{8192*k}")
    offs = [TM, TM + 7, TM + 8, TM + 6]
    for k in range(4):
        emit(f"s_waitcnt lgkmcnt({3-k})")
        emit(f"buffer_store_dwordx4 {vr(D+4*k,4)}, v{offs[k]}, s[{SW}:{SW+3}], s{S_T3} offen sc1")
    stamp()
    emit(f"s_waitcnt vmcnt({4+nB})")
    S_N32 = 56; S_N8 = 57
    emit(f"s_mov_b32 s{S_T3}, 0")
    label("F_tagchk")
    emit(f"v_readfirstlane_b32 s{S_N8}, v{R.AS+1}")
    emit(f"v_readfirstlane_b32 s{S_N32}, v{R.AS}")
    emit("s_nop 3")
    emit(f"s_cmp_lg_u32 s{S_N8}, 0")
    emit("s_cbranch_scc1 F_tagok")
    emit(f"s_add_u32 s{S_T3}, s{S_T3}, 1")
    emit(f"s_cmp_ge_u32 s{S_T3}, {SPIN_MAX}")
    emit("s_cbranch_scc1 F_tagok")
    emit("s_sleep 2")
    emit(f"buffer_load_dwordx2 v[{R.AS}:{R.AS+1}], v{R.zero}, s[40:43], 0 offen sc1")
    emit("s_waitcnt vmcnt(0)")
    emit("s_branch F_tagchk")
    label("F_tagok")
    emit(f"s_and_b32 s{S_N8}, s{S_N8}, 0xff")
    emit("s_waitcnt vmcnt(0)")
    emit("s_barrier")
    stamp()
    emit(f"s_cmp_lg_u32 s{S_WAVE}, 0")
    emit("s_cbranch_scc1 F_notab")
    emit(f"s_lshl_b32 s{S_T0}, s{S_N8}, 24")
    for j in range(4):
        emit(f"v_or_b32 v{TV+2*j}, s{S_T0}, v{TV+2*j}")
        emit(f"v_mov_b32 v{TV+2*j+1}, s{S_N32}")
    emit(f"s_lshl_b32 s{S_T0}, s{S_B}, 11")
    emit(f"s_add_u32 s{S_T0}, s{S_T0}, {WS_TAB:#x}")
    emit(f"v_lshlrev_b32 v{t0}, 1, v{R.lane16}")
    emit(f"buffer_store_dwordx4 {vr(TV,4)}, v{t0}, s[{SW}:{SW+3}], s{S_T0} offen sc1")
    emit(f"buffer_store_dwordx4 {vr(TV+4,4)}, v{t0}, s[{SW}:{SW+3}], s{S_T0} offen offset:16 sc1")
    label("F_notab")
    UN = R.Z[1]; PK = R.AGG
    emit(f"s_mov_b32 s{S_T1}, 0x05040100")
    emit(f"s_mov_b32 s{S_T2}, 0x07060302")
    emit(f"s_lshl_b32 s{S_T0}, s{S_WAVE}, 11")
    emit(f"v_add_u32 v{t0}, s{S_T0}, v{R.lane16}")
    emit(f"v_add_u32 v{t0}, {WFL}, v{t0}")
    def pack(rnd, scaled):
        raw = RW + 8 * rnd; pk = PK + 8 * rnd
        if scaled:
            for q in range(8):
                emit(f"v_lshlrev_b32 v{UN+q}, 16, v{raw+q}")
                emit(f"v_and_b32 v{UN+8+q}, 0xffff0000, v{raw+q}")
            for q in range(16): emit(f"v_mul_f32 v{UN+q}, s{S_C}, v{UN+q}")
            for j in range(4):
                emit(f"v_cvt_pk_bf16_f32 v{pk+j}, v{UN+2*j}, v{UN+2*j+1}")
                emit(f"v_cvt_pk_bf16_f32 v{pk+4+j}, v{UN+8+2*j}, v{UN+8+2*j+1}")
        else:
            for j in range(4):
                emit(f"v_perm_b32 v{pk+j}, v{raw+2*j+1}, v{raw+2*j}, s{S_T1}")
                emit(f"v_perm_b32 v{pk+4+j}, v{raw+2*j+1}, v{raw+2*j}, s{S_T2}")
    def wr(rnd):
        pk = PK + 8 * rnd
        emit(f"ds_write_b128 v{t0}, {vr(pk,4)} offset:{rnd*16384}")
        emit(f"ds_write_b128 v{t0}, {vr(pk+4,4)} offset:{rnd*16384+1024}")
    if Opt.FOLD:
        emit(f"s_cmp_ge_u32 s{S_WAVE}, 4")
        emit("s_cbranch_scc1 F_p0s")
        pack(0, False)
        emit("s_branch F_p0d")
        label("F_p0s")
        pack(0, True)
        label("F_p0d")
    else:
        pack(0, False)
    wr(0)
    emit(f"s_cmp_eq_u32 s{S_WAVE}, 0")
    emit("s_cbranch_scc1 F_p1w0")
    pack(1, False)
    wr(1)
    emit("s_branch F_p1d")
    label("F_p1w0")
    pack(1, Opt.FOLD)
    wr(1)
    pack(2, False)
    wr(2)
    label("F_p1d")
    list_prefill()
    emit("s_waitcnt lgkmcnt(0)")
    emit("s_barrier")
    prefetch(Opt.PFC)
    emit(f"v_add_u32 v{R.t0}, {WFL}, v{R.lane16}")
    for sx in range(4):
        for t in range(2):
            emit(f"ds_read_b128 {vr([R.Z[1],R.H[1]][t]+4*sx,4)}, v{R.t0} offset:{(26+2*sx+t)*1024}")
    for sx in range(4):
        for t in range(2):
            emit(f"ds_read_b128 {vr([R.Z[0],R.H[0]][t]+4*sx,4)}, v{R.t0} offset:{(2*sx+t)*1024}")
    for f in range(8): emit(f"ds_read_b128 {vr(R.WB+4*f,4)}, v{R.t0} offset:{(8+f)*1024}")
    for f in range(2): emit(f"ds_read_b128 {vr(R.WC+4*f,4)}, v{R.t0} offset:{(16+f)*1024}")
    for f in range(8): emit(f"ds_read_b128 {vr(R.WV+4*f,4)}, v{R.t0} offset:{(18+f)*1024}")
    emit(f"s_lshl_b32 s{S_TABO}, s{S_B}, 3")
    emit(f"s_add_u32 s{S_TABO}, s{S_TABO}, {WS_TAB:#x}")
    for it in range(4): emit(f"s_add_u32 s{44+it}, s{S_TABO}, {it<<17:#x}")
    emit(f"v_lshrrev_b32 v{a}, 3, v0")
    emit(f"v_and_b32 v{b}, 7, v0")
    emit(f"v_lshlrev_b32 v{b}, 1, v{b}")
    emit(f"v_cmp_gt_u32 s[50:51], {NCH-3*64}, v{a}")
    emit(f"v_lshlrev_b32 v{R.w0+1}, 11, v{a}")
    emit(f"v_mul_u32_u24 v{a}, {CHS}, v{a}")
    emit(f"v_cndmask_b32 v{R.w0+2}, v{R.w0}, v{R.w0+1}, s[50:51]")
    emit(f"v_add_u32 v{a}, v{a}, v{b}")
    TB = R.AO
    def poll_loads():
        for it in range(4):
            emit(f"buffer_load_dwordx2 v[{TB+2*it}:{TB+2*it+1}], v{R.w0+1+(it==3)}, s[{SW}:{SW+3}], s{44+it} offen sc1")
    poll_loads()
    for s in range(4): emit(f"ds_read_b128 {AX(s)}, v{R.rd+s}")
    emit("s_waitcnt lgkmcnt(0)")
    pu_block()
    prefetch(Opt.PFD)
    stamp()
    emit(f"s_mov_b32 s{S_T3}, 0")
    label("F_poll")
    emit("s_waitcnt vmcnt(0)")
    for it in range(4):
        emit(f"v_xor_b32 v{R.AS+it}, s{S_N32}, v{TB+2*it+1}")
        emit(f"v_lshrrev_b32 v{R.AS+4+it}, 24, v{TB+2*it}")
        emit(f"v_xor_b32 v{R.AS+4+it}, s{S_N8}, v{R.AS+4+it}")
    emit(f"v_or_b32 v{R.AS+3}, v{R.AS+3}, v{R.AS+7}")
    emit(f"v_cndmask_b32 v{R.AS+3}, 0, v{R.AS+3}, s[50:51]")
    emit(f"v_or3_b32 v{R.AS}, v{R.AS}, v{R.AS+1}, v{R.AS+2}")
    emit(f"v_or3_b32 v{R.AS+4}, v{R.AS+4}, v{R.AS+5}, v{R.AS+6}")
    emit(f"v_or3_b32 v{R.AS}, v{R.AS}, v{R.AS+3}, v{R.AS+4}")
    emit(f"v_cmp_ne_u32 vcc, 0, v{R.AS}")
    emit("s_cbranch_vccz F_polled")
    emit(f"s_add_u32 s{S_T3}, s{S_T3}, 1")
    emit(f"s_cmp_ge_u32 s{S_T3}, {SPIN_MAX}")
    emit("s_cbranch_scc1 F_polled")
    poll_loads()
    emit("s_branch F_poll")
    label("F_polled")
    stamp()
    BASE = R.AS; REM = R.AS + 4
    for it in range(4):
        emit(f"v_bfe_u32 v{REM+it}, v{TB+2*it}, 12, 12")
        emit(f"v_sub_u32 v{REM+it}, v{REM+it}, v{b}")
        emit(f"v_and_b32 v{BASE+it}, 0xfff, v{TB+2*it}")
        emit(f"v_add_u32 v{BASE+it}, {it*64*CHS}, v{BASE+it}")
        emit(f"v_add_lshl_u32 v{BASE+it}, v{BASE+it}, v{a}, 3")
    REC = R.Z[0]; RK = R.Z[1]; TA = R.H[1]
    def msk(k): return f"s[{S_MASK+2*k}:{S_MASK+2*k+1}]"
    def rec_loads():
        for l in range(8):
            it, p = l // 2, l % 2
            emit(f"v_cmp_lt_i32 {msk(2*l)}, {16*p}, v{REM+it}")
        for l in range(8):
            it, p = l // 2, l % 2
            tmp = R.w0 + 1 + (l % 3)
            emit(f"v_cndmask_b32 v{tmp}, v{R.w0}, v{BASE+it}, {msk(2*l)}")
            emit(f"buffer_load_dwordx4 {vr(REC+4*l,4)}, v{tmp}, s[{SW}:{SW+3}], 0 offen offset:{128*p} sc1")
        for l in range(8):
            it, p = l // 2, l % 2
            emit(f"v_cmp_lt_i32 {msk(2*l+1)}, {16*p+1}, v{REM+it}")
    emit(f"v_mov_b32 v{R.t0}, 4")
    emit(f"s_mov_b32 s{S_T3}, {L1-4}")
    label("K2_collect")
    rec_loads()
    nE = prefetch(Opt.PFE)
    for l in range(8):
        emit(f"s_waitcnt vmcnt({nE+7-l})")
        for r in range(2):
            k = 2 * l + r
            emit(f"v_lshrrev_b32 v{TA+k}, 27, v{REC+4*l+2*r+1}")
        for r in range(2):
            k = 2 * l + r
            emit(f"s_mov_b64 exec, {msk(k)}")
            emit(f"ds_add_rtn_u32 v{RK+k}, v{TA+k}, v{R.t0} offset:{CNT}")
        emit("s_mov_b64 exec, -1")
    for it in range(4):
        emit(f"v_subrev_u32 v{REM+it}, 32, v{REM+it}")
        emit(f"v_add_u32 v{BASE+it}, 0x100, v{BASE+it}")
    emit(f"v_max3_i32 v{R.t1}, v{REM}, v{REM+1}, v{REM+2}")
    emit(f"v_max_i32 v{R.t1}, v{R.t1}, v{REM+3}")
    emit(f"v_cmp_lt_i32 vcc, 0, v{R.t1}")
    emit("s_waitcnt lgkmcnt(0)")
    for k in range(16): emit(f"v_min_u32 v{RK+k}, s{S_T3}, v{RK+k}")
    for k in range(16):
        emit(f"s_mov_b64 exec, {msk(k)}")
        emit(f"ds_write2st64_b32 v{RK+k}, v{REC+2*k}, v{REC+2*k+1} offset0:0 offset1:{L1OFF}")
    emit("s_mov_b64 exec, -1")
    emit("s_waitcnt lgkmcnt(0)")
    emit("s_cbranch_vccnz K2_collect")
    emit("s_barrier")
    stamp()
    label("K2_counts")
    emit(f"ds_read_b128 {AO(0)}, v{R.l0a}")
    emit(f"ds_read_b32 v{R.AS}, v{R.l1b}")
    emit(f"ds_read_b128 {AO(1)}, v{R.l0a} offset:128")
    emit(f"ds_read_b32 v{R.AS+1}, v{R.l1b} offset:128")
    emit(f"v_and_b32 v{R.t0}, 7, v0")
    emit(f"v_lshlrev_b32 v{R.t1}, 2, v{R.t0}")
    emit(f"ds_read_b32 v{R.t1}, v{R.t1} offset:{CNT}")
    emit(f"ds_read_b128 {vr(R.w0,4)}, v{R.l0a} offset:256")
    emit(f"ds_read_b32 v{R.w1d}, v{R.l1b} offset:256")
    emit(f"ds_read_b32 v{R.w1n}, v{R.l1a}")
    emit(f"v_mul_u32_u24 v{R.t0}, {LST}, v{R.t0}")
    emit(f"v_add_u32 v{R.t0}, {L0}, v{R.t0}")
    emit("s_waitcnt lgkmcnt(6)")
    for x in dma_issue(0, R.AO, R.AS): emit(x)
    emit("s_waitcnt lgkmcnt(0)")
    for x in dma_issue(BUF, R.AO + 4, R.AS + 1): emit(x)
    emit(f"v_sub_u32 v{R.t1}, v{R.t1}, v{R.t0}")
    emit(f"v_lshrrev_b32 v{R.t1}, 2, v{R.t1}")
    emit(f"v_cmp_lt_u32 vcc, {CAP}, v{R.t1}")
    emit(f"v_cmp_ne_u32 s[{S_MASK}:{S_MASK+1}], 0, v{R.t1}")
    emit(f"v_readlane_b32 s{S_N}, v{R.t1}, s{S_WAVE}")
    for x in nl_addr(): emit(x)
    emit(f"ds_read_b128 {AO(0)}, v{R.aoa}")
    emit(f"ds_read_b128 {AO(1)}, v{R.aoa} offset:32")
    emit(f"s_or_b32 s{S_TOT}, s{S_MASK}, s{S_MASK+1}")
    emit("s_cbranch_vccnz K2_slow_init")
    emit(f"s_add_u32 s{S_NG}, s{S_N}, 31")
    emit(f"s_lshr_b32 s{S_NG}, s{S_NG}, 5")
    emit(f"s_cmp_eq_u32 s{S_NG}, 0")
    emit("s_cbranch_scc1 K2_main_done")
    for r in range(8): emit(f"v_mov_b32 v{R.AS+r}, 0")
    for r in (0, 1, 2, 3, 8, 9, 10, 11): emit(f"v_mov_b32 v{R.Z[1]+r}, 0")
    emit(f"s_mov_b32 s{S_G}, 0")
    if Opt.FIXNG: emit(f"s_movk_i32 s{S_NG}, {Opt.FIXNG}")
    if Opt.PRIO:
        emit(f"s_sub_u32 s{S_GP}, s{S_NG}, {Opt.PRIO}")
        emit(f"s_cmp_ge_u32 s{S_WAVE}, 4")
        emit(f"s_cselect_b32 s{S_GP}, -1, s{S_GP}")
    emit("s_waitcnt vmcnt(5)")
    emit(f"ds_read_b128 {AE}, v{R.rde}")
    for s in range(4): emit(f"ds_read_b128 {AX(s)}, v{R.rd+s}")
    emit("s_waitcnt lgkmcnt(0)")
    for x in dma_issue(0, R.w0, R.w1d): emit(x)
    for x in zh_mfmas(0): emit(x)
    emit("s_nop 7")
    emit("s_nop 3")
    stamp(); cstamp()
    label("K2_loop")
    group_body(0, 0)
    gtrace()
    emit(f"s_add_u32 s{S_G}, s{S_G}, 1")
    prio_check(0)
    emit(f"s_cmp_ge_u32 s{S_G}, s{S_NG}")
    emit("s_cbranch_scc1 K2_loop_exit")
    group_body(1, 128)
    gtrace()
    adv = 0 if Opt.FIXNG else 0x100
    emit(f"v_add_u32 v{R.l0a}, {adv:#x}, v{R.l0a}")
    emit(f"v_add_u32 v{R.l1a}, {adv:#x}, v{R.l1a}")
    emit(f"v_add_u32 v{R.l1b}, {adv:#x}, v{R.l1b}")
    emit(f"s_add_u32 s{S_G}, s{S_G}, 1")
    prio_check(1)
    emit(f"s_cmp_lt_u32 s{S_G}, s{S_NG}")
    emit("s_cbranch_scc1 K2_loop")
    label("K2_loop_exit")
    emit("s_nop 1")
    for x in agg_mfmas(1): emit(x)
    emit(f"s_lshr_b32 s{S_T0}, s{S_G}, 1")
    emit(f"s_lshl_b32 s{S_T0}, s{S_T0}, 8")
    emit(f"v_subrev_u32 v{R.l0a}, s{S_T0}, v{R.l0a}")
    emit(f"v_subrev_u32 v{R.l1a}, s{S_T0}, v{R.l1a}")
    emit(f"v_subrev_u32 v{R.l1b}, s{S_T0}, v{R.l1b}")
    label("K2_main_done")
    emit(f"s_cmp_lg_u32 s{S_MODE}, 0")
    emit("s_cbranch_scc1 K2_slow_next")
    label("K2_epi")
    stamp(); cstamp(); vstamp(S_NG)
    emit("s_nop 7")
    emit("s_nop 7")
    emit(f"v_and_b32 v{R.t0}, 31, v0")
    emit(f"v_lshlrev_b32 v{R.t0}, 2, v{R.t0}")
    emit(f"v_lshl_add_u32 v{R.t0}, v{R.h16}, 5, v{R.t0}")
    z = R.Z[0]
    regs = [(t, r) for r in range(13) for t in range(2)]
    def tmp(t, r): return z + 2 * r + t
    for (t, r) in regs: emit(f"v_mul_f32 v{tmp(t,r)}, s{S_C}, v{R.AGG+16*t+r}")
    for (t, r) in regs: emit(f"v_exp_f32 v{tmp(t,r)}, v{tmp(t,r)}")
    for (t, r) in regs: emit(f"v_add_f32 v{tmp(t,r)}, 1.0, v{tmp(t,r)}")
    for (t, r) in regs: emit(f"v_rcp_f32 v{tmp(t,r)}, v{tmp(t,r)}")
    for (t, r) in regs: emit(f"v_mul_f32 v{tmp(t,r)}, v{tmp(t,r)}, v{R.AGG+16*t+r}")
    for r in range(13):
        emit(f"v_cvt_pk_bf16_f32 v{R.Z[1]+r}, v{tmp(0,r)}, v{tmp(1,r)}")
    for r in range(12):
        row = (r // 4) * 8 + r % 4
        emit(f"buffer_store_dword v{R.Z[1]+r}, v{R.t0}, s[{SO}:{SO+3}], s{S_NODE0} offen offset:{row*128}{OP}")
    emit("s_mov_b64 exec, 0xffffffff")
    emit(f"buffer_store_dword v{R.Z[1]+12}, v{R.t0}, s[{SO}:{SO+3}], s{S_NODE0} offen offset:{24*128}{OP}")
    if Opt.STAMP:
        emit("s_waitcnt vmcnt(0)")
        stamp()
        emit(f"s_lshl_b32 s{S_T0}, s2, 3")
        emit(f"s_add_u32 s{S_T0}, s{S_T0}, s{S_WAVE}")
        assert _st["n"] == 13, _st["n"]; _st["n"] = 14
        emit("s_mov_b64 exec, 0xffffffff")
        emit(f"s_lshl_b32 s{S_T1}, s{S_T0}, 7")
        emit(f"s_add_u32 s{S_T1}, s{S_T1}, {STB + (2 << 20):#x}")
        emit(f"v_lshrrev_b32 v255, 2, v{R.lane16}")
        emit(f"buffer_store_dword v254, v255, s[{SW}:{SW+3}], s{S_T1} offen")
        stamp_flush(0, SW, S_T0, R.w0, S_T1)
    label("K2_end")
    emit("s_endpgm")
    label("K2_slow_init")
    emit(f"s_mov_b32 s{S_MODE}, 1")
    emit(f"s_mov_b32 s{S_IT}, 0")
    emit(f"s_mov_b32 s{S_P}, 0")
    emit("s_branch K2_slow_batch")
    label("K2_slow_next")
    emit(f"s_add_u32 s{S_P}, s{S_P}, 1")
    emit(f"s_cmp_lg_u32 s{S_TOT}, 0")
    emit("s_cbranch_scc1 K2_slow_batch")
    emit(f"s_mov_b32 s{S_P}, 0")
    emit(f"s_add_u32 s{S_IT}, s{S_IT}, 1")
    emit(f"s_cmp_ge_u32 s{S_IT}, 4")
    emit("s_cbranch_scc1 K2_epi")
    label("K2_slow_batch")
    emit("s_waitcnt vmcnt(0) lgkmcnt(0)")
    emit("s_barrier")
    emit(f"s_cmp_lg_u32 s{S_WAVE}, 0")
    emit("s_cbranch_scc1 K2_slow_nocnt")
    emit(f"v_and_b32 v{R.w1d}, 63, v0")
    cnt_init(R.w1d)
    label("K2_slow_nocnt")
    list_prefill()
    emit(f"v_lshrrev_b32 v{a}, 3, v0")
    emit(f"v_and_b32 v{b}, 7, v0")
    emit(f"v_lshlrev_b32 v{R.t0}, 11, v{a}")
    emit(f"s_lshl_b32 s{S_T0}, s{S_IT}, 17")
    emit(f"s_add_u32 s{S_T0}, s{S_T0}, s{S_TABO}")
    emit(f"buffer_load_dword v{R.t1}, v{R.t0}, s[{SW}:{SW+3}], s{S_T0} offen sc1")
    emit(f"s_lshl_b32 s{S_T0}, s{S_IT}, 6")
    emit(f"v_add_u32 v{a}, s{S_T0}, v{a}")
    emit(f"s_lshl_b32 s{S_T1}, s{S_P}, 3")
    emit(f"v_add_u32 v{b}, s{S_T1}, v{b}")
    emit(f"v_cmp_gt_u32 vcc, {NCH}, v{a}")
    emit(f"v_mul_u32_u24 v{a}, {CHS}, v{a}")
    emit(f"v_add_u32 v{a}, v{a}, v{b}")
    emit("s_waitcnt vmcnt(0) lgkmcnt(0)")
    emit("s_barrier")
    emit(f"v_cndmask_b32 v{R.t1}, 0, v{R.t1}, vcc")
    emit(f"v_bfe_u32 v{R.t0}, v{R.t1}, 12, 12")
    emit(f"v_and_b32 v{R.t1}, 0xfff, v{R.t1}")
    emit(f"v_add_lshl_u32 v{a}, v{a}, v{R.t1}, 3")
    emit(f"v_cmp_lt_u32 vcc, v{b}, v{R.t0}")
    emit(f"v_mov_b32 v{R.w0}, 0x7ffffff0")
    emit("s_nop 1")
    emit(f"v_cndmask_b32 v{a}, v{R.w0}, v{a}, vcc")
    emit(f"buffer_load_dwordx2 v[{R.w0+2}:{R.w0+3}], v{a}, s[{SW}:{SW+3}], 0 offen sc1")
    emit(f"v_mov_b32 v{R.t0}, 4")
    emit("s_waitcnt vmcnt(0)")
    emit(f"v_lshrrev_b32 v{a}, 27, v{R.w0+3}")
    emit("s_mov_b64 exec, vcc")
    emit(f"ds_add_rtn_u32 v{b}, v{a}, v{R.t0} offset:{CNT}")
    emit("s_waitcnt lgkmcnt(0)")
    emit(f"ds_write2st64_b32 v{b}, v{R.w0+2}, v{R.w0+3} offset0:0 offset1:{L1OFF}")
    emit("s_mov_b64 exec, -1")
    emit("s_waitcnt lgkmcnt(0)")
    emit("s_barrier")
    emit("s_branch K2_counts")

def kd(name, vgpr, sgpr):
    acc = (vgpr + 3) // 4 * 4
    out.append(".p2align 6")
    out.append(f".amdhsa_kernel {name}")
    out.append(f"  .amdhsa_next_free_vgpr {vgpr}")
    out.append(f"  .amdhsa_next_free_sgpr {sgpr}")
    out.append(f"  .amdhsa_accum_offset {acc}")
    out.append("  .amdhsa_group_segment_fixed_size 0")
    out.append("  .amdhsa_kernarg_size 80")
    out.append("  .amdhsa_user_sgpr_count 2")
    out.append("  .amdhsa_user_sgpr_kernarg_segment_ptr 1")
    out.append("  .amdhsa_system_sgpr_workgroup_id_x 1")
    out.append(".end_amdhsa_kernel")

hdr = open("standalone__edge_featured_mpnn_egc__graph.s.ref").read().split("\n")
for l in hdr:
    if l.startswith("; Override"): break
    out.append(l)
out.append(f"; @launch grid=(256,1,1) block=(512,1,1) lds={K2_LDS}")
out.append('.amdgcn_target "amdgcn-amd-amdhsa--gfx950"')
out.append(".text")
gen_fused()
out.append('.section .rodata,"a"')
kd(KNAME, 256 if Opt.STAMP else K2_VGPR, 102 if Opt.STAMP else K2_SGPR)
print("\n".join(out))
```

```python
import sys

class Opt:
    FOLD = True
    NT_E = True
    NT_IDX = True
    NODMA = False
    NOLDS = False
    XZERO = False
    EZERO = False
    FIXNG = 0
    PRIO = 3
    PFB = 0
    PFC = 0
    PFD = 0x00
    PFE = 0x00
    OUTPOL = 0
    FAKEM = 0
    NT_XT = True
    NT_X = False
    STAMP = False
    DBG = 0

for a in sys.argv[1:]:
    if '=' in a:
        k, v = a.split('=')
        setattr(Opt, k, type(getattr(Opt, k))(int(v)))

N = 50000; E = 800000
NB = 250; CH = 3200; NCH = 250; TN = 25
CHS = 3216
WS_REC = 0
WS_TAB = 0x700000
WS_WF = 0x780000
WS_SIZE = 0x10000000
NLOG2E = 0xbfb8aa3b

out = []
def emit(s): out.append("    " + s)
def label(s): out.append(s + ":")
def comment(s): out.append("    ; " + s)

def srd(base, ptr, size):
    emit(f"s_mov_b32 s{base}, s{ptr}")
    emit(f"s_and_b32 s{base+1}, s{ptr+1}, 0xffff")
    emit(f"s_mov_b32 s{base+2}, {size:#x}")
    emit(f"s_mov_b32 s{base+3}, 0x20000")

STB = 0xF000000
_st = {"base": 72, "n": 0}
def stamp_begin(base):
    _st["base"] = base; _st["n"] = 0
def stamp(kind="s_memrealtime"):
    if not Opt.STAMP: return
    b = _st["base"] + 2 * _st["n"]; _st["n"] += 1
    emit(f"{kind} s[{b}:{b+1}]")
def cstamp(): stamp("s_memtime")
def vstamp(sreg):
    if not Opt.STAMP: return
    b = _st["base"] + 2 * _st["n"]; _st["n"] += 1
    emit(f"s_mov_b32 s{b}, s{sreg}")
    emit(f"s_mov_b32 s{b+1}, 0")
def dbg_flush(kidx, sel, va, sa):
    emit(f"s_load_dwordx2 s[{sa+4}:{sa+5}], s[0:1], 64")
    emit("s_waitcnt lgkmcnt(0)")
    if kidx == 0:
        emit(f"s_add_u32 s{sa+4}, s{sa+4}, 512")
        emit(f"s_addc_u32 s{sa+5}, s{sa+5}, 0")
    srd(sa, sa+4, 256)
    emit("s_mov_b64 exec, 1")
    emit(f"v_mov_b32 v{va+2}, 0")
    for (k, slot, kind) in sel:
        b = _st["base"] + 2 * k
        emit(f"v_mov_b32 v{va}, s{b}")
        if kind == 'min': emit(f"v_not_b32 v{va}, v{va}")
        emit(f"buffer_atomic_umax v{va}, v{va+2}, s[{sa}:{sa+3}], 0 offen offset:{4*slot}")
        emit("s_nop 1")

def stamp_flush(kidx, srdn, swave_global, va, tmp_s):
    if not Opt.STAMP: return
    if Opt.DBG:
        emit("s_waitcnt lgkmcnt(0)")
        if Opt.DBG == 2:
            emit(f"s_cmp_lg_u32 s{swave_global}, 804")
            emit("s_cbranch_scc1 K2_end")
            dbg_flush(1, [(7,4,'max'),(9,5,'max'),(8,6,'max'),(10,7,'max'),(0,8,'max'),(13,9,'max')], va, 32)
            return
        emit(f"s_and_b32 s{tmp_s}, s{swave_global}, 0x1c3")
        emit(f"s_cmp_lg_u32 s{tmp_s}, 0")
        emit("s_cbranch_scc1 K2_end")
        dbg_flush(1, [(0,4,'min'),(0,5,'max'),(1,6,'max'),(3,7,'max'),(5,8,'max'),(6,9,'max'),(7,10,'min'),(9,11,'min'),(9,12,'max'),(12,13,'max')], va, 32)
        return
    emit("s_waitcnt lgkmcnt(0)")
    emit("s_mov_b64 exec, 1")
    emit(f"s_lshl_b32 s{tmp_s}, s{swave_global}, 7")
    emit(f"s_add_u32 s{tmp_s}, s{tmp_s}, {STB + (kidx << 20):#x}")
    emit(f"v_mov_b32 v{va+2}, 0")
    for k in range(_st["n"]):
        b = _st["base"] + 2 * k
        emit(f"v_mov_b32 v{va}, s{b}")
        emit(f"v_mov_b32 v{va+1}, s{b+1}")
        emit(f"buffer_store_dwordx2 v[{va}:{va+1}], v{va+2}, s[{srdn}:{srdn+3}], s{tmp_s} offen offset:{8*k}")
        emit("s_nop 1")

def vr(b, n): return f"v[{b}:{b+n-1}]"

CNT = 0
AOT = 64
SM = AOT + 2560; SM_W = 2560
STG0 = SM + 8 * SM_W
assert STG0 % 16 == 0
BUFW = 5120
BUF = 8 * BUFW
WFL = STG0 + BUF
L0 = STG0 + 2 * BUF
CAP = 576; CAPT = 704
LST = CAPT * 4
L1 = L0 + 8 * LST
K2_LDS = L1 + 8 * LST
L1OFF = (L1 - L0) // 256
assert (L1 - L0) % 256 == 0 and K2_LDS <= 163840 and L0 % 16 == 0

class R: pass
_next = [1]
def alloc(n, align=1):
    b = _next[0]
    b = (b + align - 1) // align * align
    _next[0] = b + n
    return b
R.lane16 = alloc(1); R.dmab = alloc(1); R.rde = alloc(1)
R.rd = alloc(4)
R.l0a = alloc(1); R.l1a = alloc(1); R.h16 = alloc(1); R.aoc = alloc(1); R.sc = alloc(1); R.sr = alloc(1)
R.one = alloc(1); R.zero = alloc(1); R.eh16 = alloc(1); R.l1b = alloc(1)
R.w1d = alloc(1); R.w1n = alloc(1); R.aoa = alloc(1); R.sa = alloc(1); R.t0 = alloc(1); R.t1 = alloc(1)
R.pf = alloc(1); R.pfo = alloc(1)
R.w0 = alloc(4, 4)
R.WB = alloc(32, 4); R.WC = alloc(8, 4); R.WV = alloc(32, 4); R.P = alloc(16, 4)
R.AGG = alloc(32, 4)
R.Z = [alloc(16, 4), 0]; R.H = [alloc(16, 4), 0]
R.Z[1] = alloc(16, 4); R.H[1] = alloc(16, 4)
R.AX = alloc(16, 4); R.AE = alloc(4, 4); R.AO = alloc(8, 4); R.AS = alloc(8, 4)
K2_VGPR = _next[0]
assert K2_VGPR <= 256, K2_VGPR

SX = 8; SE = 12; SO = 16; SW = 20
S_B = 3; S_WAVE = 4; S_NG = 5; S_G = 6; S_MODE = 7
S_STG = 24; S_MSKE = 25; S_80 = 26; S_N = 27; S_IT = 28; S_P = 29; S_TOT = 30; S_T0 = 31
S_MASK = 32
S_T1 = 64; S_T2 = 65; S_C = 66; S_TABO = 67; S_NODE0 = 68; S_T3 = 69; S_GP = 70; S_TILE = 71
K2_SGPR = 72

def WB(s, t): return vr(R.WB + (s * 2 + t) * 4, 4)
def WV(s, t): return vr(R.WV + (s * 2 + t) * 4, 4)
def WC(t): return vr(R.WC + t * 4, 4)
def PP(s, t): return vr(R.P + (s * 2 + t) * 4, 4)
def AX(s): return vr(R.AX + s * 4, 4)
def AO(s): return vr(R.AO + s * 4, 4)
def AS(s): return vr(R.AS + s * 4, 4)
AE = vr(R.AE, 4)
def AGG(t): return vr(R.AGG + t * 16, 16)
def Zr(t): return vr(R.Z[t], 16)
def Hr(t): return vr(R.H[t], 16)
def mfma(d, a, b, c): return f"v_mfma_f32_32x32x16_bf16 {d}, {a}, {b}, {c}"

def zh_mfmas(t):
    z, h = Zr(t), Hr(t)
    m = [mfma(z, AO(0), PP(0, t), "0"), mfma(z, AO(1), PP(1, t), z), mfma(z, AE, WC(t), z)]
    for s in range(4):
        m.append(mfma(z, AX(s), WB(s, t), z))
        m.append(mfma(h, AX(s), WV(s, t), "0" if s == 0 else h))
    return m

def agg_mfmas(t):
    return [mfma(AGG(t), AS(0), vr(R.Z[t], 4), AGG(t)), mfma(AGG(t), AS(1), vr(R.Z[t] + 8, 4), AGG(t))]

def sig_stream(t):
    z, h = R.Z[t], R.H[t]
    st = []
    for m in range(4):
        rs = [4 * m + i for i in range(4)]
        if not Opt.FOLD:
            for r in rs: st.append((f"v_mul_f32 v{z+r}, s{S_C}, v{z+r}", 4))
        for r in rs: st.append((f"v_exp_f32 v{z+r}, v{z+r}", 8))
        for r in rs: st.append((f"v_add_f32 v{z+r}, 1.0, v{z+r}", 4))
        for r in rs: st.append((f"v_rcp_f32 v{z+r}, v{z+r}", 8))
        for r in rs: st.append((f"v_mul_f32 v{z+r}, v{z+r}, v{h+r}", 4))
        d = 8 * (m // 2) + 2 * (m % 2)
        st.append((f"v_cvt_pk_bf16_f32 v{z+d}, v{z+4*m}, v{z+4*m+1}", 4))
        st.append((f"v_cvt_pk_bf16_f32 v{z+d+1}, v{z+4*m+2}, v{z+4*m+3}", 4))
    return st

def dma_issue(bufoff, w0, w1):
    nte = " nt" if Opt.NT_E else ""
    seq = [f"s_add_u32 m0, s{S_STG}, {bufoff}"]
    for t in range(4):
        if Opt.XZERO: seq.append(f"v_and_or_b32 v{w0+t}, v{w0+t}, s71, v{R.dmab}")
        else: seq.append(f"v_xad_u32 v{w0+t}, v{R.dmab}, {16*t}, v{w0+t}")
        seq.append(f"buffer_load_dwordx4 v{w0+t}, s[{SX}:{SX+3}], 0 offen{' nt' if Opt.NT_X else ''} lds")
        seq.append("s_add_u32 m0, m0, 0x400")
    seq.append(f"v_and_or_b32 v{w1}, v{w1}, s{S_MSKE}, v{R.eh16}")
    seq.append(f"buffer_load_dwordx4 v{w1}, s[{SE}:{SE+3}], 0 offen{nte} lds")
    return seq

def nl_addr():
    return [f"v_and_b32 v{R.w1n}, 31, v{R.w1n}",
            f"v_mad_u32_u24 v{R.aoa}, v{R.w1n}, s{S_80}, v{R.aoc}",
            f"v_mad_u32_u24 v{R.sa}, v{R.w1n}, s{S_80}, v{R.sc}"]

def interleave(valu, mfmas, after, pre=None):
    pre = pre or {}
    def keep(x):
        if Opt.NODMA and (x.startswith("buffer_load") or "vmcnt" in x): return False
        if Opt.NOLDS and (x.startswith("ds_") or "lgkmcnt" in x): return False
        return True
    total = sum(c for _, c in valu)
    n = len(mfmas)
    tail = 48 if not Opt.FOLD else 56
    spacing = (total - tail) / (n - 1)
    k = 0; cum = 0
    for ins, c in valu:
        while k < n and cum >= k * spacing - 1e-9:
            for x in pre.get(k, []):
                if keep(x): emit(x)
            emit(mfmas[k])
            for x in after.get(k, []):
                if keep(x): emit(x)
            k += 1
        emit(ins); cum += c
    assert k == n, (k, n)

def group_body(par, lo):
    nb = BUF * (1 - par)
    m = agg_mfmas(1) + zh_mfmas(1)
    after = {
        0: [f"ds_read_b32 v{R.w1n}, v{R.l1a} offset:{lo+128}"],
        1: [f"ds_write_b16 v{R.sa}, v{R.one}",
            f"ds_read_b128 {AS(0)}, v{R.sr}",
            f"ds_read_b128 {AS(1)}, v{R.sr} offset:32",
            f"ds_write_b16 v{R.sa}, v{R.zero}"],
        3: ["s_waitcnt lgkmcnt(4)"] + nl_addr() +
           [f"ds_read_b128 {AO(0)}, v{R.aoa}", f"ds_read_b128 {AO(1)}, v{R.aoa} offset:32"],
        4: ["s_waitcnt vmcnt(5)", f"ds_read_b128 {AE}, v{R.rde} offset:{nb}"],
        6: [f"ds_read_b128 {AX(0)}, v{R.rd} offset:{nb}"],
        8: [f"ds_read_b128 {AX(1)}, v{R.rd+1} offset:{nb}"],
        10: [f"ds_read_b128 {AX(2)}, v{R.rd+2} offset:{nb}",
             f"ds_read_b128 {vr(R.w0,4)}, v{R.l0a} offset:{lo+384}",
             f"ds_read_b32 v{R.w1d}, v{R.l1b} offset:{lo+384}"],
        12: [f"ds_read_b128 {AX(3)}, v{R.rd+3} offset:{nb}"],
    }
    interleave(sig_stream(0), m, after)
    m = agg_mfmas(0) + zh_mfmas(0)
    d = dma_issue(nb, R.w0, R.w1d)
    pre = {0: ["s_waitcnt lgkmcnt(1)"]}
    after = {1: ["s_waitcnt lgkmcnt(0)"] + d[0:4], 2: d[4:7], 3: d[7:10], 4: d[10:13], 5: d[13:15]}
    interleave(sig_stream(1), m, after, pre)

def gtrace():
    if not Opt.STAMP: return
    emit("s_memtime s[100:101]")
    emit("s_waitcnt lgkmcnt(0)")
    emit(f"s_mov_b32 m0, s{S_G}")
    emit("s_nop 0")
    emit(f"v_writelane_b32 v254, s100, m0")

def prio_check(tag):
    if not Opt.PRIO: return
    emit(f"s_cmp_lg_u32 s{S_G}, s{S_GP}")
    emit(f"s_cbranch_scc1 K2_np{tag}")
    emit("s_setprio 0")
    label(f"K2_np{tag}")

def pu_block():
    aw = [R.Z[0], R.H[0]]; uu = [R.Z[1], R.H[1]]
    for t in range(2):
        for sx in range(4):
            emit(mfma(AGG(t), AX(sx), vr(uu[t] + 4 * sx, 4), "0" if sx == 0 else AGG(t)))
    for t in range(2):
        for sx in range(4):
            emit(mfma(vr(uu[t], 16), AX(sx), vr(aw[t] + 4 * sx, 4), "0" if sx == 0 else vr(uu[t], 16)))
    emit("s_nop 7")
    for t in range(2):
        if t == 1 and not Opt.FOLD: emit("s_nop 3")
        if Opt.FOLD:
            for r in range(16):
                emit(f"v_mul_f32 v{uu[t]+r}, s{S_C}, v{uu[t]+r}")
        for sx in range(2):
            for j in range(4):
                emit(f"v_cvt_pk_bf16_f32 v{R.P+(sx*2+t)*4+j}, v{uu[t]+8*sx+2*j}, v{uu[t]+8*sx+2*j+1}")

def cnt_init(lane):
    emit(f"v_and_b32 v{R.w0+1}, 7, v{lane}")
    emit(f"v_mul_u32_u24 v{R.aoa}, {LST}, v{R.w0+1}")
    emit(f"v_add_u32 v{R.aoa}, {L0}, v{R.aoa}")
    emit(f"v_lshlrev_b32 v{R.w0+1}, 2, v{R.w0+1}")
    emit(f"ds_write_b32 v{R.w0+1}, v{R.aoa} offset:{CNT}")

KNAME = "standalone__edge_featured_mpnn_egc__graph_kernel"
P1_HIST = L0; P1_START = L0 + 1024; P1_SORT = L0 + 2048
OP = {0: "", 1: " nt", 2: " sc1", 3: " sc0 sc1"}[Opt.OUTPOL]
SPIN_MAX = 1 << 20

_pf = [0]
def prefetch(mask):
    if not mask: return 0
    npop = bin(mask).count("1")
    emit(f"s_lshl_b32 s{S_T0}, 1, s{S_WAVE}")
    emit(f"s_sub_u32 s{S_T1}, s{S_T0}, 1")
    emit(f"s_and_b32 s{S_T1}, s{S_T1}, {mask:#x}")
    emit(f"s_bcnt1_i32_b32 s{S_T1}, s{S_T1}")
    emit(f"s_add_u32 s{S_T1}, s{S_T1}, {_pf[0]}")
    emit(f"s_lshl_b32 s{S_T1}, s{S_T1}, 18")
    emit(f"s_and_b32 s{S_T0}, s{S_T0}, {mask:#x}")
    emit(f"s_cselect_b32 s{S_T1}, s{S_T1}, 0x7f000000")
    emit(f"buffer_load_dword v{R.pf}, v{R.pfo}, s[{SX}:{SX+3}], s{S_T1} offen")
    _pf[0] += npop
    return 1

def list_prefill():
    z = R.H[1]
    for r in range(4):
        emit(f"v_mov_b32 v{z+r}, 0x7fffff80")
        emit(f"v_mov_b32 v{z+4+r}, {0x1fffffe0 | TN:#x}")
    emit(f"v_lshlrev_b32 v{z+8}, 4, v0")
    emit(f"v_add_u32 v{z+9}, 0x4000, v{z+8}")
    emit(f"v_min_u32 v{z+9}, {8*LST-16}, v{z+9}")
    emit(f"v_add_u32 v{z+8}, {L0}, v{z+8}")
    emit(f"v_add_u32 v{z+9}, {L0}, v{z+9}")
    for (arr, off) in ((z, 0), (z + 4, L1 - L0)):
        emit(f"ds_write_b128 v{z+8}, {vr(arr,4)} offset:{off}")
        emit(f"ds_write_b128 v{z+8}, {vr(arr,4)} offset:{off+8192}")
        emit(f"ds_write_b128 v{z+9}, {vr(arr,4)} offset:{off}")

def gen_fused():
    nt = " nt" if Opt.NT_IDX else ""
    out.append(".p2align 8")
    out.append(f".globl {KNAME}")
    out.append(f".type {KNAME},@function")
    label(KNAME)
    emit("s_cmp_ge_u32 s2, 256")
    emit("s_cbranch_scc1 K2_end")
    emit("s_and_b32 s3, s2, 7")
    emit("s_lshl_b32 s3, s3, 5")
    emit("s_lshr_b32 s4, s2, 3")
    emit(f"s_add_u32 s{S_B}, s3, s4")
    emit(f"s_cmp_ge_u32 s{S_B}, {NB}")
    emit("s_cbranch_scc1 K2_end")
    stamp_begin(72); stamp()
    if Opt.STAMP: emit("s_memtime s[98:99]")
    emit("s_load_dwordx16 s[40:55], s[0:1], 0")
    emit("s_load_dwordx4 s[56:59], s[0:1], 64")
    emit("s_memrealtime s[60:61]")
    t0, t1 = R.t0, R.t1
    D = R.WB; S = R.WB + 8; GT = R.WB + 16; BA = R.WB + 24; RKS = R.WC; W = R.WV; TM = R.WV + 16
    emit(f"v_lshrrev_b32 v{t0}, 6, v0")
    emit(f"v_and_b32 v{t1}, 63, v0")
    emit(f"v_readfirstlane_b32 s{S_WAVE}, v{t0}")
    emit(f"v_lshlrev_b32 v{R.lane16}, 4, v{t1}")
    emit(f"v_lshlrev_b32 v{TM}, 4, v0")
    emit(f"v_cmp_gt_u32 s[{S_IT}:{S_IT+1}], 0x120, v0" if False else f"v_cmp_gt_u32 vcc, 0x120, v0")
    emit(f"v_mov_b32 v{R.w0}, 0x7ffffff0")
    emit(f"v_add_u32 v{TM+1}, 0x2000, v{TM}")
    emit(f"s_mul_i32 s{S_T0}, s{S_B}, 12800")
    emit(f"v_cndmask_b32 v{TM+1}, v{R.w0}, v{TM+1}, vcc")
    emit(f"s_mov_b64 s[{S_IT}:{S_IT+1}], vcc")
    if Opt.PRIO: emit("s_setprio 1")
    emit("s_waitcnt lgkmcnt(0)")
    srd(32, 46, E * 4)
    emit(f"buffer_load_dwordx4 {vr(D,4)}, v{TM}, s[32:35], s{S_T0} offen{nt}")
    emit(f"buffer_load_dwordx4 {vr(D+4,4)}, v{TM+1}, s[32:35], s{S_T0} offen{nt}")
    srd(36, 44, E * 4)
    emit(f"buffer_load_dwordx4 {vr(S,4)}, v{TM}, s[36:39], s{S_T0} offen{nt}")
    emit(f"buffer_load_dwordx4 {vr(S+4,4)}, v{TM+1}, s[36:39], s{S_T0} offen{nt}")
    srd(SX, 40, N * 128)
    srd(SE, 42, E * 32)
    srd(SO, 54, N * 128)
    srd(SW, 58, WS_SIZE)
    srd(40, 56, 256)
    i, h = R.w1n, R.w1d
    a, b = R.aoa, R.sa
    emit(f"v_and_b32 v{i}, 31, v{t1}")
    emit(f"v_lshrrev_b32 v{h}, 5, v{t1}")
    emit(f"v_lshlrev_b32 v{R.h16}, 4, v{h}")
    emit(f"v_mov_b32 v{R.zero}, 0")
    emit(f"s_or_b32 s{S_T0}, s{S_B}, s{S_WAVE}")
    emit(f"s_cmp_lg_u32 s{S_T0}, 0")
    emit("s_cbranch_scc1 F_notag")
    emit("s_and_b32 s61, s61, 0xff")
    emit("s_or_b32 s61, s61, 0x100")
    emit(f"v_mov_b32 v{R.w0+2}, s60")
    emit(f"v_mov_b32 v{R.w0+3}, s61")
    emit("s_mov_b64 exec, 1")
    emit(f"buffer_store_dwordx2 v[{R.w0+2}:{R.w0+3}], v{R.zero}, s[40:43], 0 offen sc1")
    emit("s_mov_b64 exec, -1")
    label("F_notag")
    RW = R.Z[0]
    emit(f"s_mul_i32 s{S_STG}, s{S_WAVE}, {BUFW}")
    emit(f"s_add_u32 s{S_STG}, s{S_STG}, {STG0}")
    emit(f"v_and_b32 v{t0}, 7, v{t1}")
    emit(f"v_lshlrev_b32 v{R.dmab}, 2, v{h}")
    emit(f"v_xor_b32 v{R.dmab}, v{R.dmab}, v{t0}")
    emit(f"v_lshlrev_b32 v{R.dmab}, 4, v{R.dmab}")
    emit(f"s_mul_i32 s{S_NODE0}, s{S_B}, 200")
    emit(f"s_mul_i32 s{S_T0}, s{S_WAVE}, {TN}")
    emit(f"s_add_u32 s{S_NODE0}, s{S_NODE0}, s{S_T0}")
    emit(f"s_lshl_b32 s{S_NODE0}, s{S_NODE0}, 7")
    emit(f"s_mov_b32 s{S_MSKE}, {0xffe0 if Opt.EZERO else 0x1fffffe0:#x}")
    if Opt.XZERO: emit("s_mov_b32 s71, 0xff80")
    emit(f"s_movk_i32 s{S_80}, 80")
    emit(f"s_mov_b32 s{S_C}, {NLOG2E:#x}")
    emit(f"s_mov_b32 s{S_MODE}, 0")
    emit(f"v_mov_b32 v{R.one}, 0x3f80")
    emit(f"v_and_b32 v{t0}, 19, v{i}")
    emit(f"v_and_b32 v{a}, 4, v{i}")
    emit(f"v_lshl_or_b32 v{t0}, v{a}, 1, v{t0}")
    emit(f"v_and_b32 v{a}, 8, v{i}")
    emit(f"v_lshrrev_b32 v{a}, 1, v{a}")
    emit(f"v_or_b32 v{t0}, v{t0}, v{a}")
    emit(f"v_lshlrev_b32 v{t0}, 1, v{t0}")
    emit(f"s_mul_i32 s{S_T0}, s{S_WAVE}, {SM_W}")
    emit(f"s_add_u32 s{S_T0}, s{S_T0}, {SM}")
    emit(f"v_add_u32 v{R.sc}, s{S_T0}, v{t0}")
    emit(f"v_mad_u32_u24 v{a}, v{i}, s{S_80}, v{R.h16}")
    emit(f"v_add_u32 v{R.sr}, s{S_T0}, v{a}")
    emit(f"v_add_u32 v{R.aoc}, {AOT}, v{R.h16}")
    emit(f"v_mov_b32 v{R.w0+2}, 0")
    emit(f"v_mov_b32 v{R.w0+3}, 0")
    emit(f"v_lshlrev_b32 v{b}, 3, v{t1}")
    emit(f"s_cmp_lg_u32 s{S_WAVE}, 7")
    emit("s_cbranch_scc1 F_noinit")
    emit(f"v_add_u32 v{a}, {P1_HIST}, v{b}")
    emit(f"ds_write_b64 v{a}, v[{R.w0+2}:{R.w0+3}]")
    emit(f"ds_write_b64 v{a}, v[{R.w0+2}:{R.w0+3}] offset:512")
    cnt_init(t1)
    for k in range(5):
        emit(f"ds_write_b64 v{b}, v[{R.w0+2}:{R.w0+3}] offset:{AOT+512*k}")
    emit(f"v_mad_u32_u24 v{a}, v{i}, s{S_80}, v{t0}")
    emit(f"ds_write_b16 v{a}, v{R.one} offset:{AOT}")
    label("F_noinit")
    emit(f"v_add_u32 v{a}, s{S_T0}, v{b}")
    for k in range(5):
        emit(f"ds_write_b64 v{a}, v[{R.w0+2}:{R.w0+3}] offset:{512*k}")
    emit(f"v_and_b32 v{a}, 1, v{t1}")
    emit(f"v_xor_b32 v{a}, v{a}, v{h}")
    emit(f"v_lshlrev_b32 v{R.eh16}, 4, v{a}")
    emit(f"v_lshrrev_b32 v{a}, 4, v{i}")
    emit(f"v_xor_b32 v{a}, v{a}, v{h}")
    emit(f"v_lshlrev_b32 v{a}, 4, v{a}")
    emit(f"v_lshl_add_u32 v{a}, v{i}, 5, v{a}")
    emit(f"v_add_u32 v{R.rde}, s{S_STG}, v{a}")
    emit(f"v_add_u32 v{R.rde}, 0x1000, v{R.rde}")
    emit(f"v_and_b32 v{a}, 3, v{i}")
    emit(f"v_lshrrev_b32 v{b}, 4, v{i}")
    emit(f"v_lshl_add_u32 v{b}, v{b}, 2, v{a}")
    emit(f"v_xor_b32 v{b}, v{b}, v{h}")
    emit(f"v_lshlrev_b32 v{b}, 4, v{b}")
    emit(f"v_lshlrev_b32 v{a}, 10, v{a}")
    emit(f"v_lshrrev_b32 v{t0}, 2, v{i}")
    emit(f"v_lshl_add_u32 v{a}, v{t0}, 7, v{a}")
    emit(f"v_add_u32 v{a}, s{S_STG}, v{a}")
    emit(f"s_movk_i32 s{S_T2}, 96")
    for s in range(4):
        c = ["0", "32", "64", f"s{S_T2}"][s]
        emit(f"v_xad_u32 v{R.rd+s}, v{b}, {c}, v{a}")
    emit(f"s_mul_i32 s{S_T0}, s{S_WAVE}, {LST}")
    emit(f"s_add_u32 s{S_T0}, s{S_T0}, {L0}")
    emit(f"v_lshrrev_b32 v{a}, 3, v{t1}")
    emit(f"v_lshlrev_b32 v{a}, 4, v{a}")
    emit(f"v_add_u32 v{R.l0a}, s{S_T0}, v{a}")
    emit(f"v_lshlrev_b32 v{a}, 2, v{i}")
    emit(f"v_add_u32 v{a}, s{S_T0}, v{a}")
    emit(f"v_add_u32 v{R.l1a}, {L1-L0}, v{a}")
    emit(f"v_lshrrev_b32 v{a}, 1, v{t1}")
    emit(f"v_lshlrev_b32 v{a}, 2, v{a}")
    emit(f"v_add_u32 v{a}, s{S_T0}, v{a}")
    emit(f"v_add_u32 v{R.l1b}, {L1-L0}, v{a}")
    emit(f"s_lshr_b32 s{S_T0}, s2, 3")
    emit(f"s_lshl_b32 s{S_T0}, s{S_T0}, 13")
    emit(f"v_lshlrev_b32 v{R.pfo}, 7, v{t1}")
    emit(f"v_add_u32 v{R.pfo}, s{S_T0}, v{R.pfo}")
    emit(f"s_mov_b32 s{S_T3}, 83887")
    emit(f"s_mul_i32 s{S_T0}, s{S_B}, 102400")
    emit(f"v_lshlrev_b32 v{TM+2}, 7, v0")
    emit(f"v_add_u32 v{TM+2}, s{S_T0}, v{TM+2}")
    emit(f"v_add_u32 v{TM+3}, 0x10000, v{TM+2}")
    emit(f"v_mov_b32 v{TM+4}, 1")
    emit("s_waitcnt lgkmcnt(0)")
    emit("s_barrier")
    emit(f"v_lshrrev_b32 v{t0}, 3, v{t1}")
    emit(f"v_lshlrev_b32 v{t0}, 9, v{t0}")
    emit(f"s_mov_b32 m0, s{S_STG}")
    emit(f"s_mov_b32 s{S_T0}, s{S_NODE0}")
    for t in range(4):
        emit(f"v_xad_u32 v{R.AE+t}, v{R.dmab}, {16*t}, v{t0}")
        emit(f"buffer_load_dwordx4 v{R.AE+t}, s[{SX}:{SX+3}], s{S_T0} offen{' nt' if Opt.NT_XT else ''} lds")
        emit("s_add_u32 m0, m0, 0x400")
        emit(f"s_add_u32 s{S_T0}, s{S_T0}, 128")
    emit("s_waitcnt vmcnt(6)")
    stamp()
    for j in range(8): emit(f"v_mul_u32_u24 v{GT+j}, s{S_T3}, v{D+j}")
    for j in range(8): emit(f"v_lshrrev_b32 v{BA+j}, 24, v{GT+j}")
    for j in range(8): emit(f"v_lshlrev_b32 v{BA+j}, 2, v{BA+j}")
    for j in range(8): emit(f"v_add_u32 v{BA+j}, {P1_HIST}, v{BA+j}")
    for j in range(4): emit(f"ds_add_rtn_u32 v{RKS+j}, v{BA+j}, v{TM+4}")
    emit(f"s_mov_b64 exec, s[{S_IT}:{S_IT+1}]")
    for j in range(4, 8): emit(f"ds_add_rtn_u32 v{RKS+j}, v{BA+j}, v{TM+4}")
    emit("s_mov_b64 exec, -1")
    emit(f"v_lshlrev_b32 v{a}, 2, v{i}")
    emit(f"v_lshl_add_u32 v{a}, v{h}, 10, v{a}")
    def wsel(ks_reg):
        emit(f"s_cmp_lt_u32 s{ks_reg}, 13")
        emit("s_cselect_b32 s60, s50, s48")
        emit("s_cselect_b32 s61, s51, s49")
        emit(f"s_cselect_b32 s{S_T1}, 9, 13")
        emit(f"s_cmp_lt_u32 s{ks_reg}, 9")
        emit("s_cselect_b32 s60, s52, s60")
        emit("s_cselect_b32 s61, s53, s61")
        emit(f"s_cselect_b32 s{S_T1}, 0, s{S_T1}")
        emit(f"s_movk_i32 s{S_T2}, 0x2000")
        emit(f"s_cselect_b32 s62, 0x4800, s{S_T2}")
        emit("s_and_b32 s61, s61, 0xffff")
        emit("s_mov_b32 s63, 0x20000")
        emit(f"s_sub_u32 s{S_T1}, s{ks_reg}, s{S_T1}")
        emit(f"s_lshl_b32 s{S_T1}, s{S_T1}, 11")
    for rnd in range(2):
        emit(f"s_add_u32 s{S_T0}, s{S_WAVE}, {8*rnd}")
        wsel(S_T0)
        for q in range(8):
            emit(f"buffer_load_dword v{RW+8*rnd+q}, v{a}, s[60:63], s{S_T1} offen offset:{q*128}")
    emit(f"s_cmp_lg_u32 s{S_WAVE}, 0")
    emit("s_cbranch_scc1 F_now3")
    emit(f"s_mov_b32 s{S_T0}, 16")
    wsel(S_T0)
    for q in range(8):
        emit(f"buffer_load_dword v{RW+16+q}, v{a}, s[60:63], s{S_T1} offen offset:{q*128}")
    label("F_now3")
    emit(f"s_movk_i32 s{S_T2}, 96")
    for j in range(8): emit(f"v_lshrrev_b32 v{GT+j}, 21, v{GT+j}")
    for j in range(8): emit(f"v_mul_u32_u24 v{TM+8+j}, 25, v{GT+j}")
    for j in range(8): emit(f"v_sub_u32 v{D+j}, v{D+j}, v{TM+8+j}")
    for j in range(8): emit(f"v_lshl_or_b32 v{D+j}, v{GT+j}, 29, v{D+j}")
    for j in range(8):
        c = ["0", "32", "64", f"s{S_T2}"][j % 4]
        emit(f"v_add3_u32 v{W+2*j+1}, v{TM+2+j//4}, v{D+j}, {c}")
    emit("s_waitcnt lgkmcnt(0)")
    emit("s_barrier")
    TV = R.AO
    emit(f"s_cmp_lg_u32 s{S_WAVE}, 0")
    emit("s_cbranch_scc1 F_noscan")
    C0 = R.P
    emit(f"v_add_u32 v{C0+13}, {P1_HIST}, v{R.lane16}")
    emit(f"ds_read_b128 {vr(C0,4)}, v{C0+13}")
    emit("s_waitcnt lgkmcnt(0)")
    emit(f"v_add_u32 v{C0+4}, v{C0}, v{C0+1}")
    emit(f"v_add_u32 v{C0+5}, v{C0+4}, v{C0+2}")
    emit(f"v_add_u32 v{C0+6}, v{C0+5}, v{C0+3}")
    emit(f"v_mov_b32 v{C0+7}, v{C0+6}")
    sc = C0 + 7
    for sh in (1, 2, 4, 8):
        emit("s_nop 1")
        emit(f"v_add_u32_dpp v{sc}, v{sc}, v{sc} row_shr:{sh} row_mask:0xf bank_mask:0xf")
    emit("s_nop 1")
    emit(f"v_add_u32_dpp v{sc}, v{sc}, v{sc} row_bcast:15 row_mask:0xa bank_mask:0xf")
    emit("s_nop 1")
    emit(f"v_add_u32_dpp v{sc}, v{sc}, v{sc} row_bcast:31 row_mask:0xc bank_mask:0xf")
    emit(f"v_sub_u32 v{C0+8}, v{sc}, v{C0+6}")
    emit(f"v_add_u32 v{C0+9}, v{C0+8}, v{C0}")
    emit(f"v_add_u32 v{C0+10}, v{C0+8}, v{C0+4}")
    emit(f"v_add_u32 v{C0+11}, v{C0+8}, v{C0+5}")
    emit(f"ds_write_b128 v{C0+13}, {vr(C0+8,4)} offset:{P1_START-P1_HIST}")
    for j in range(4): emit(f"v_lshl_or_b32 v{TV+2*j}, v{C0+j}, 12, v{C0+8+j}")
    emit("s_waitcnt lgkmcnt(0)")
    label("F_noscan")
    emit("s_waitcnt vmcnt(20)")
    for j in range(8): emit(f"v_lshlrev_b32 v{W+2*j}, 7, v{S+j}")
    emit("s_barrier")
    for j in range(8): emit(f"ds_read_b32 v{GT+j}, v{BA+j} offset:{P1_START-P1_HIST}")
    emit(f"buffer_load_dwordx2 v[{R.AS}:{R.AS+1}], v{R.zero}, s[40:43], 0 offen sc1")
    nB = prefetch(Opt.PFB)
    emit("s_waitcnt lgkmcnt(0)")
    for j in range(8): emit(f"v_add_lshl_u32 v{GT+j}, v{GT+j}, v{RKS+j}, 3")
    if Opt.FAKEM:
        emit(f"s_mul_i32 s{S_T0}, s{S_B}, 102400")
        for j in range(Opt.FAKEM):
            emit(f"v_lshl_add_u32 v{W+2*j+1}, v{GT+j}, 2, v{D+j}")
            emit(f"v_add_u32 v{W+2*j+1}, s{S_T0}, v{W+2*j+1}")
    for j in range(8): emit(f"v_add_u32 v{GT+j}, {P1_SORT}, v{GT+j}")
    for j in range(4): emit(f"ds_write_b64 v{GT+j}, v[{W+2*j}:{W+2*j+1}]")
    emit(f"s_mov_b64 exec, s[{S_IT}:{S_IT+1}]")
    for j in range(4, 8): emit(f"ds_write_b64 v{GT+j}, v[{W+2*j}:{W+2*j+1}]")
    emit("s_mov_b64 exec, -1")
    emit(f"v_add_u32 v{TM+5}, {P1_SORT}, v{TM}")
    emit(f"v_cmp_gt_u32 vcc, 64, v0")
    emit(f"v_add_u32 v{TM+6}, 0x6000, v{TM}")
    emit(f"s_mul_i32 s{S_T3}, s{S_B}, {CHS*8}")
    emit(f"v_cndmask_b32 v{TM+6}, v{R.w0}, v{TM+6}, vcc")
    emit(f"v_add_u32 v{TM+7}, 0x2000, v{TM}")
    emit(f"v_add_u32 v{TM+8}, 0x4000, v{TM}")
    emit("s_waitcnt lgkmcnt(0)")
    emit("s_barrier")
    for k in range(4):
        emit(f"ds_read_b128 {vr(D+4*k,4)}, v{TM+5} offset:{8192*k}")
    offs = [TM, TM + 7, TM + 8, TM + 6]
    for k in range(4):
        emit(f"s_waitcnt lgkmcnt({3-k})")
        emit(f"buffer_store_dwordx4 {vr(D+4*k,4)}, v{offs[k]}, s[{SW}:{SW+3}], s{S_T3} offen sc1")
    stamp()
    emit(f"s_waitcnt vmcnt({4+nB})")
    S_N32 = 56; S_N8 = 57
    emit(f"s_mov_b32 s{S_T3}, 0")
    label("F_tagchk")
    emit(f"v_readfirstlane_b32 s{S_N8}, v{R.AS+1}")
    emit(f"v_readfirstlane_b32 s{S_N32}, v{R.AS}")
    emit("s_nop 3")
    emit(f"s_cmp_lg_u32 s{S_N8}, 0")
    emit("s_cbranch_scc1 F_tagok")
    emit(f"s_add_u32 s{S_T3}, s{S_T3}, 1")
    emit(f"s_cmp_ge_u32 s{S_T3}, {SPIN_MAX}")
    emit("s_cbranch_scc1 F_tagok")
    emit("s_sleep 2")
    emit(f"buffer_load_dwordx2 v[{R.AS}:{R.AS+1}], v{R.zero}, s[40:43], 0 offen sc1")
    emit("s_waitcnt vmcnt(0)")
    emit("s_branch F_tagchk")
    label("F_tagok")
    emit(f"s_and_b32 s{S_N8}, s{S_N8}, 0xff")
    emit("s_waitcnt vmcnt(0)")
    emit("s_barrier")
    stamp()
    emit(f"s_cmp_lg_u32 s{S_WAVE}, 0")
    emit("s_cbranch_scc1 F_notab")
    emit(f"s_lshl_b32 s{S_T0}, s{S_N8}, 24")
    for j in range(4):
        emit(f"v_or_b32 v{TV+2*j}, s{S_T0}, v{TV+2*j}")
        emit(f"v_mov_b32 v{TV+2*j+1}, s{S_N32}")
    emit(f"s_lshl_b32 s{S_T0}, s{S_B}, 11")
    emit(f"s_add_u32 s{S_T0}, s{S_T0}, {WS_TAB:#x}")
    emit(f"v_lshlrev_b32 v{t0}, 1, v{R.lane16}")
    emit(f"buffer_store_dwordx4 {vr(TV,4)}, v{t0}, s[{SW}:{SW+3}], s{S_T0} offen sc1")
    emit(f"buffer_store_dwordx4 {vr(TV+4,4)}, v{t0}, s[{SW}:{SW+3}], s{S_T0} offen offset:16 sc1")
    label("F_notab")
    UN = R.Z[1]; PK = R.AGG
    emit(f"s_mov_b32 s{S_T1}, 0x05040100")
    emit(f"s_mov_b32 s{S_T2}, 0x07060302")
    emit(f"s_lshl_b32 s{S_T0}, s{S_WAVE}, 11")
    emit(f"v_add_u32 v{t0}, s{S_T0}, v{R.lane16}")
    emit(f"v_add_u32 v{t0}, {WFL}, v{t0}")
    def pack(rnd, scaled):
        raw = RW + 8 * rnd; pk = PK + 8 * rnd
        if scaled:
            for q in range(8):
                emit(f"v_lshlrev_b32 v{UN+q}, 16, v{raw+q}")
                emit(f"v_and_b32 v{UN+8+q}, 0xffff0000, v{raw+q}")
            for q in range(16): emit(f"v_mul_f32 v{UN+q}, s{S_C}, v{UN+q}")
            for j in range(4):
                emit(f"v_cvt_pk_bf16_f32 v{pk+j}, v{UN+2*j}, v{UN+2*j+1}")
                emit(f"v_cvt_pk_bf16_f32 v{pk+4+j}, v{UN+8+2*j}, v{UN+8+2*j+1}")
        else:
            for j in range(4):
                emit(f"v_perm_b32 v{pk+j}, v{raw+2*j+1}, v{raw+2*j}, s{S_T1}")
                emit(f"v_perm_b32 v{pk+4+j}, v{raw+2*j+1}, v{raw+2*j}, s{S_T2}")
    def wr(rnd):
        pk = PK + 8 * rnd
        emit(f"ds_write_b128 v{t0}, {vr(pk,4)} offset:{rnd*16384}")
        emit(f"ds_write_b128 v{t0}, {vr(pk+4,4)} offset:{rnd*16384+1024}")
    if Opt.FOLD:
        emit(f"s_cmp_ge_u32 s{S_WAVE}, 4")
        emit("s_cbranch_scc1 F_p0s")
        pack(0, False)
        emit("s_branch F_p0d")
        label("F_p0s")
        pack(0, True)
        label("F_p0d")
    else:
        pack(0, False)
    wr(0)
    emit(f"s_cmp_eq_u32 s{S_WAVE}, 0")
    emit("s_cbranch_scc1 F_p1w0")
    pack(1, False)
    wr(1)
    emit("s_branch F_p1d")
    label("F_p1w0")
    pack(1, Opt.FOLD)
    wr(1)
    pack(2, False)
    wr(2)
    label("F_p1d")
    list_prefill()
    emit("s_waitcnt lgkmcnt(0)")
    emit("s_barrier")
    prefetch(Opt.PFC)
    emit(f"v_add_u32 v{R.t0}, {WFL}, v{R.lane16}")
    for sx in range(4):
        for t in range(2):
            emit(f"ds_read_b128 {vr([R.Z[1],R.H[1]][t]+4*sx,4)}, v{R.t0} offset:{(26+2*sx+t)*1024}")
    for sx in range(4):
        for t in range(2):
            emit(f"ds_read_b128 {vr([R.Z[0],R.H[0]][t]+4*sx,4)}, v{R.t0} offset:{(2*sx+t)*1024}")
    for f in range(8): emit(f"ds_read_b128 {vr(R.WB+4*f,4)}, v{R.t0} offset:{(8+f)*1024}")
    for f in range(2): emit(f"ds_read_b128 {vr(R.WC+4*f,4)}, v{R.t0} offset:{(16+f)*1024}")
    for f in range(8): emit(f"ds_read_b128 {vr(R.WV+4*f,4)}, v{R.t0} offset:{(18+f)*1024}")
    emit(f"s_lshl_b32 s{S_TABO}, s{S_B}, 3")
    emit(f"s_add_u32 s{S_TABO}, s{S_TABO}, {WS_TAB:#x}")
    for it in range(4): emit(f"s_add_u32 s{44+it}, s{S_TABO}, {it<<17:#x}")
    emit(f"v_lshrrev_b32 v{a}, 3, v0")
    emit(f"v_and_b32 v{b}, 7, v0")
    emit(f"v_lshlrev_b32 v{b}, 1, v{b}")
    emit(f"v_cmp_gt_u32 s[50:51], {NCH-3*64}, v{a}")
    emit(f"v_lshlrev_b32 v{R.w0+1}, 11, v{a}")
    emit(f"v_mul_u32_u24 v{a}, {CHS}, v{a}")
    emit(f"v_cndmask_b32 v{R.w0+2}, v{R.w0}, v{R.w0+1}, s[50:51]")
    emit(f"v_add_u32 v{a}, v{a}, v{b}")
    TB = R.AO
    def poll_loads():
        for it in range(4):
            emit(f"buffer_load_dwordx2 v[{TB+2*it}:{TB+2*it+1}], v{R.w0+1+(it==3)}, s[{SW}:{SW+3}], s{44+it} offen sc1")
    poll_loads()
    for s in range(4): emit(f"ds_read_b128 {AX(s)}, v{R.rd+s}")
    emit("s_waitcnt lgkmcnt(0)")
    pu_block()
    prefetch(Opt.PFD)
    stamp()
    emit(f"s_mov_b32 s{S_T3}, 0")
    label("F_poll")
    emit("s_waitcnt vmcnt(0)")
    for it in range(4):
        emit(f"v_xor_b32 v{R.AS+it}, s{S_N32}, v{TB+2*it+1}")
        emit(f"v_lshrrev_b32 v{R.AS+4+it}, 24, v{TB+2*it}")
        emit(f"v_xor_b32 v{R.AS+4+it}, s{S_N8}, v{R.AS+4+it}")
    emit(f"v_or_b32 v{R.AS+3}, v{R.AS+3}, v{R.AS+7}")
    emit(f"v_cndmask_b32 v{R.AS+3}, 0, v{R.AS+3}, s[50:51]")
    emit(f"v_or3_b32 v{R.AS}, v{R.AS}, v{R.AS+1}, v{R.AS+2}")
    emit(f"v_or3_b32 v{R.AS+4}, v{R.AS+4}, v{R.AS+5}, v{R.AS+6}")
    emit(f"v_or3_b32 v{R.AS}, v{R.AS}, v{R.AS+3}, v{R.AS+4}")
    emit(f"v_cmp_ne_u32 vcc, 0, v{R.AS}")
    emit("s_cbranch_vccz F_polled")
    emit(f"s_add_u32 s{S_T3}, s{S_T3}, 1")
    emit(f"s_cmp_ge_u32 s{S_T3}, {SPIN_MAX}")
    emit("s_cbranch_scc1 F_polled")
    poll_loads()
    emit("s_branch F_poll")
    label("F_polled")
    stamp()
    BASE = R.AS; REM = R.AS + 4
    for it in range(4):
        emit(f"v_bfe_u32 v{REM+it}, v{TB+2*it}, 12, 12")
        emit(f"v_sub_u32 v{REM+it}, v{REM+it}, v{b}")
        emit(f"v_and_b32 v{BASE+it}, 0xfff, v{TB+2*it}")
        emit(f"v_add_u32 v{BASE+it}, {it*64*CHS}, v{BASE+it}")
        emit(f"v_add_lshl_u32 v{BASE+it}, v{BASE+it}, v{a}, 3")
    REC = R.Z[0]; RK = R.Z[1]; TA = R.H[1]
    def msk(k): return f"s[{S_MASK+2*k}:{S_MASK+2*k+1}]"
    def rec_loads():
        for l in range(8):
            it, p = l // 2, l % 2
            emit(f"v_cmp_lt_i32 {msk(2*l)}, {16*p}, v{REM+it}")
        for l in range(8):
            it, p = l // 2, l % 2
            tmp = R.w0 + 1 + (l % 3)
            emit(f"v_cndmask_b32 v{tmp}, v{R.w0}, v{BASE+it}, {msk(2*l)}")
            emit(f"buffer_load_dwordx4 {vr(REC+4*l,4)}, v{tmp}, s[{SW}:{SW+3}], 0 offen offset:{128*p} sc1")
        for l in range(8):
            it, p = l // 2, l % 2
            emit(f"v_cmp_lt_i32 {msk(2*l+1)}, {16*p+1}, v{REM+it}")
    emit(f"v_mov_b32 v{R.t0}, 4")
    emit(f"s_mov_b32 s{S_T3}, {L1-4}")
    label("K2_collect")
    rec_loads()
    nE = prefetch(Opt.PFE)
    for l in range(8):
        emit(f"s_waitcnt vmcnt({nE+7-l})")
        for r in range(2):
            k = 2 * l + r
            emit(f"v_lshrrev_b32 v{TA+k}, 27, v{REC+4*l+2*r+1}")
        for r in range(2):
            k = 2 * l + r
            emit(f"s_mov_b64 exec, {msk(k)}")
            emit(f"ds_add_rtn_u32 v{RK+k}, v{TA+k}, v{R.t0} offset:{CNT}")
        emit("s_mov_b64 exec, -1")
    for it in range(4):
        emit(f"v_subrev_u32 v{REM+it}, 32, v{REM+it}")
        emit(f"v_add_u32 v{BASE+it}, 0x100, v{BASE+it}")
    emit(f"v_max3_i32 v{R.t1}, v{REM}, v{REM+1}, v{REM+2}")
    emit(f"v_max_i32 v{R.t1}, v{R.t1}, v{REM+3}")
    emit(f"v_cmp_lt_i32 vcc, 0, v{R.t1}")
    emit("s_waitcnt lgkmcnt(0)")
    for k in range(16): emit(f"v_min_u32 v{RK+k}, s{S_T3}, v{RK+k}")
    for k in range(16):
        emit(f"s_mov_b64 exec, {msk(k)}")
        emit(f"ds_write2st64_b32 v{RK+k}, v{REC+2*k}, v{REC+2*k+1} offset0:0 offset1:{L1OFF}")
    emit("s_mov_b64 exec, -1")
    emit("s_waitcnt lgkmcnt(0)")
    emit("s_cbranch_vccnz K2_collect")
    emit("s_barrier")
    stamp()
    label("K2_counts")
    emit(f"ds_read_b128 {AO(0)}, v{R.l0a}")
    emit(f"ds_read_b32 v{R.AS}, v{R.l1b}")
    emit(f"ds_read_b128 {AO(1)}, v{R.l0a} offset:128")
    emit(f"ds_read_b32 v{R.AS+1}, v{R.l1b} offset:128")
    emit(f"v_and_b32 v{R.t0}, 7, v0")
    emit(f"v_lshlrev_b32 v{R.t1}, 2, v{R.t0}")
    emit(f"ds_read_b32 v{R.t1}, v{R.t1} offset:{CNT}")
    emit(f"ds_read_b128 {vr(R.w0,4)}, v{R.l0a} offset:256")
    emit(f"ds_read_b32 v{R.w1d}, v{R.l1b} offset:256")
    emit(f"ds_read_b32 v{R.w1n}, v{R.l1a}")
    emit(f"v_mul_u32_u24 v{R.t0}, {LST}, v{R.t0}")
    emit(f"v_add_u32 v{R.t0}, {L0}, v{R.t0}")
    emit("s_waitcnt lgkmcnt(6)")
    for x in dma_issue(0, R.AO, R.AS): emit(x)
    emit("s_waitcnt lgkmcnt(0)")
    for x in dma_issue(BUF, R.AO + 4, R.AS + 1): emit(x)
    emit(f"v_sub_u32 v{R.t1}, v{R.t1}, v{R.t0}")
    emit(f"v_lshrrev_b32 v{R.t1}, 2, v{R.t1}")
    emit(f"v_cmp_lt_u32 vcc, {CAP}, v{R.t1}")
    emit(f"v_cmp_ne_u32 s[{S_MASK}:{S_MASK+1}], 0, v{R.t1}")
    emit(f"v_readlane_b32 s{S_N}, v{R.t1}, s{S_WAVE}")
    for x in nl_addr(): emit(x)
    emit(f"ds_read_b128 {AO(0)}, v{R.aoa}")
    emit(f"ds_read_b128 {AO(1)}, v{R.aoa} offset:32")
    emit(f"s_or_b32 s{S_TOT}, s{S_MASK}, s{S_MASK+1}")
    emit("s_cbranch_vccnz K2_slow_init")
    emit(f"s_add_u32 s{S_NG}, s{S_N}, 31")
    emit(f"s_lshr_b32 s{S_NG}, s{S_NG}, 5")
    emit(f"s_cmp_eq_u32 s{S_NG}, 0")
    emit("s_cbranch_scc1 K2_main_done")
    for r in range(8): emit(f"v_mov_b32 v{R.AS+r}, 0")
    for r in (0, 1, 2, 3, 8, 9, 10, 11): emit(f"v_mov_b32 v{R.Z[1]+r}, 0")
    emit(f"s_mov_b32 s{S_G}, 0")
    if Opt.FIXNG: emit(f"s_movk_i32 s{S_NG}, {Opt.FIXNG}")
    if Opt.PRIO:
        emit(f"s_sub_u32 s{S_GP}, s{S_NG}, {Opt.PRIO}")
        emit(f"s_cmp_ge_u32 s{S_WAVE}, 4")
        emit(f"s_cselect_b32 s{S_GP}, -1, s{S_GP}")
    emit("s_waitcnt vmcnt(5)")
    emit(f"ds_read_b128 {AE}, v{R.rde}")
    for s in range(4): emit(f"ds_read_b128 {AX(s)}, v{R.rd+s}")
    emit("s_waitcnt lgkmcnt(0)")
    for x in dma_issue(0, R.w0, R.w1d): emit(x)
    for x in zh_mfmas(0): emit(x)
    emit("s_nop 7")
    emit("s_nop 3")
    stamp(); cstamp()
    label("K2_loop")
    group_body(0, 0)
    gtrace()
    emit(f"s_add_u32 s{S_G}, s{S_G}, 1")
    prio_check(0)
    emit(f"s_cmp_ge_u32 s{S_G}, s{S_NG}")
    emit("s_cbranch_scc1 K2_loop_exit")
    group_body(1, 128)
    gtrace()
    adv = 0 if Opt.FIXNG else 0x100
    emit(f"v_add_u32 v{R.l0a}, {adv:#x}, v{R.l0a}")
    emit(f"v_add_u32 v{R.l1a}, {adv:#x}, v{R.l1a}")
    emit(f"v_add_u32 v{R.l1b}, {adv:#x}, v{R.l1b}")
    emit(f"s_add_u32 s{S_G}, s{S_G}, 1")
    prio_check(1)
    emit(f"s_cmp_lt_u32 s{S_G}, s{S_NG}")
    emit("s_cbranch_scc1 K2_loop")
    label("K2_loop_exit")
    emit("s_nop 1")
    for x in agg_mfmas(1): emit(x)
    emit(f"s_lshr_b32 s{S_T0}, s{S_G}, 1")
    emit(f"s_lshl_b32 s{S_T0}, s{S_T0}, 8")
    emit(f"v_subrev_u32 v{R.l0a}, s{S_T0}, v{R.l0a}")
    emit(f"v_subrev_u32 v{R.l1a}, s{S_T0}, v{R.l1a}")
    emit(f"v_subrev_u32 v{R.l1b}, s{S_T0}, v{R.l1b}")
    label("K2_main_done")
    emit(f"s_cmp_lg_u32 s{S_MODE}, 0")
    emit("s_cbranch_scc1 K2_slow_next")
    label("K2_epi")
    stamp(); cstamp(); vstamp(S_NG)
    emit("s_nop 7")
    emit("s_nop 7")
    emit(f"v_and_b32 v{R.t0}, 31, v0")
    emit(f"v_lshlrev_b32 v{R.t0}, 2, v{R.t0}")
    emit(f"v_lshl_add_u32 v{R.t0}, v{R.h16}, 5, v{R.t0}")
    z = R.Z[0]
    regs = [(t, r) for r in range(13) for t in range(2)]
    def tmp(t, r): return z + 2 * r + t
    for (t, r) in regs: emit(f"v_mul_f32 v{tmp(t,r)}, s{S_C}, v{R.AGG+16*t+r}")
    for (t, r) in regs: emit(f"v_exp_f32 v{tmp(t,r)}, v{tmp(t,r)}")
    for (t, r) in regs: emit(f"v_add_f32 v{tmp(t,r)}, 1.0, v{tmp(t,r)}")
    for (t, r) in regs: emit(f"v_rcp_f32 v{tmp(t,r)}, v{tmp(t,r)}")
    for (t, r) in regs: emit(f"v_mul_f32 v{tmp(t,r)}, v{tmp(t,r)}, v{R.AGG+16*t+r}")
    for r in range(13):
        emit(f"v_cvt_pk_bf16_f32 v{R.Z[1]+r}, v{tmp(0,r)}, v{tmp(1,r)}")
    for r in range(12):
        row = (r // 4) * 8 + r % 4
        emit(f"buffer_store_dword v{R.Z[1]+r}, v{R.t0}, s[{SO}:{SO+3}], s{S_NODE0} offen offset:{row*128}{OP}")
    emit("s_mov_b64 exec, 0xffffffff")
    emit(f"buffer_store_dword v{R.Z[1]+12}, v{R.t0}, s[{SO}:{SO+3}], s{S_NODE0} offen offset:{24*128}{OP}")
    if Opt.STAMP:
        emit("s_waitcnt vmcnt(0)")
        stamp()
        emit(f"s_lshl_b32 s{S_T0}, s2, 3")
        emit(f"s_add_u32 s{S_T0}, s{S_T0}, s{S_WAVE}")
        assert _st["n"] == 13, _st["n"]; _st["n"] = 14
        emit("s_mov_b64 exec, 0xffffffff")
        emit(f"s_lshl_b32 s{S_T1}, s{S_T0}, 7")
        emit(f"s_add_u32 s{S_T1}, s{S_T1}, {STB + (2 << 20):#x}")
        emit(f"v_lshrrev_b32 v255, 2, v{R.lane16}")
        emit(f"buffer_store_dword v254, v255, s[{SW}:{SW+3}], s{S_T1} offen")
        stamp_flush(0, SW, S_T0, R.w0, S_T1)
    label("K2_end")
    emit("s_endpgm")
    label("K2_slow_init")
    emit(f"s_mov_b32 s{S_MODE}, 1")
    emit(f"s_mov_b32 s{S_IT}, 0")
    emit(f"s_mov_b32 s{S_P}, 0")
    emit("s_branch K2_slow_batch")
    label("K2_slow_next")
    emit(f"s_add_u32 s{S_P}, s{S_P}, 1")
    emit(f"s_cmp_lg_u32 s{S_TOT}, 0")
    emit("s_cbranch_scc1 K2_slow_batch")
    emit(f"s_mov_b32 s{S_P}, 0")
    emit(f"s_add_u32 s{S_IT}, s{S_IT}, 1")
    emit(f"s_cmp_ge_u32 s{S_IT}, 4")
    emit("s_cbranch_scc1 K2_epi")
    label("K2_slow_batch")
    emit("s_waitcnt vmcnt(0) lgkmcnt(0)")
    emit("s_barrier")
    emit(f"s_cmp_lg_u32 s{S_WAVE}, 0")
    emit("s_cbranch_scc1 K2_slow_nocnt")
    emit(f"v_and_b32 v{R.w1d}, 63, v0")
    cnt_init(R.w1d)
    label("K2_slow_nocnt")
    list_prefill()
    emit(f"v_lshrrev_b32 v{a}, 3, v0")
    emit(f"v_and_b32 v{b}, 7, v0")
    emit(f"v_lshlrev_b32 v{R.t0}, 11, v{a}")
    emit(f"s_lshl_b32 s{S_T0}, s{S_IT}, 17")
    emit(f"s_add_u32 s{S_T0}, s{S_T0}, s{S_TABO}")
    emit(f"buffer_load_dword v{R.t1}, v{R.t0}, s[{SW}:{SW+3}], s{S_T0} offen sc1")
    emit(f"s_lshl_b32 s{S_T0}, s{S_IT}, 6")
    emit(f"v_add_u32 v{a}, s{S_T0}, v{a}")
    emit(f"s_lshl_b32 s{S_T1}, s{S_P}, 3")
    emit(f"v_add_u32 v{b}, s{S_T1}, v{b}")
    emit(f"v_cmp_gt_u32 vcc, {NCH}, v{a}")
    emit(f"v_mul_u32_u24 v{a}, {CHS}, v{a}")
    emit(f"v_add_u32 v{a}, v{a}, v{b}")
    emit("s_waitcnt vmcnt(0) lgkmcnt(0)")
    emit("s_barrier")
    emit(f"v_cndmask_b32 v{R.t1}, 0, v{R.t1}, vcc")
    emit(f"v_bfe_u32 v{R.t0}, v{R.t1}, 12, 12")
    emit(f"v_and_b32 v{R.t1}, 0xfff, v{R.t1}")
    emit(f"v_add_lshl_u32 v{a}, v{a}, v{R.t1}, 3")
    emit(f"v_cmp_lt_u32 vcc, v{b}, v{R.t0}")
    emit(f"v_mov_b32 v{R.w0}, 0x7ffffff0")
    emit("s_nop 1")
    emit(f"v_cndmask_b32 v{a}, v{R.w0}, v{a}, vcc")
    emit(f"buffer_load_dwordx2 v[{R.w0+2}:{R.w0+3}], v{a}, s[{SW}:{SW+3}], 0 offen sc1")
    emit(f"v_mov_b32 v{R.t0}, 4")
    emit("s_waitcnt vmcnt(0)")
    emit(f"v_lshrrev_b32 v{a}, 27, v{R.w0+3}")
    emit("s_mov_b64 exec, vcc")
    emit(f"ds_add_rtn_u32 v{b}, v{a}, v{R.t0} offset:{CNT}")
    emit("s_waitcnt lgkmcnt(0)")
    emit(f"ds_write2st64_b32 v{b}, v{R.w0+2}, v{R.w0+3} offset0:0 offset1:{L1OFF}")
    emit("s_mov_b64 exec, -1")
    emit("s_waitcnt lgkmcnt(0)")
    emit("s_barrier")
    emit("s_branch K2_counts")

def kd(name, vgpr, sgpr):
    acc = (vgpr + 3) // 4 * 4
    out.append(".p2align 6")
    out.append(f".amdhsa_kernel {name}")
    out.append(f"  .amdhsa_next_free_vgpr {vgpr}")
    out.append(f"  .amdhsa_next_free_sgpr {sgpr}")
    out.append(f"  .amdhsa_accum_offset {acc}")
    out.append("  .amdhsa_group_segment_fixed_size 0")
    out.append("  .amdhsa_kernarg_size 80")
    out.append("  .amdhsa_user_sgpr_count 2")
    out.append("  .amdhsa_user_sgpr_kernarg_segment_ptr 1")
    out.append("  .amdhsa_system_sgpr_workgroup_id_x 1")
    out.append(".end_amdhsa_kernel")

hdr = open("standalone__edge_featured_mpnn_egc__graph.s.ref").read().split("\n")
for l in hdr:
    if l.startswith("; Override"): break
    out.append(l)
out.append(f"; @launch {'kernel='+KNAME+' ' if Opt.DBG else ''}grid=(256,1,1) block=(512,1,1) lds={K2_LDS}")
out.append('.amdgcn_target "amdgcn-amd-amdhsa--gfx950"')
out.append(".text")
gen_fused()
out.append('.section .rodata,"a"')
kd(KNAME, 256 if Opt.STAMP else K2_VGPR, 102 if Opt.STAMP else K2_SGPR)
print("\n".join(out))
```

```python
import sys, math

class Opt:
    FOLD = True
    NT_E = True
    NT_IDX = True
    NT_XT = True
    ME = 2048
    ESPOL = 2
    PRIO = 3
    OUTPOL = 0
    NODMA = False
    FIXNG = 0
    STAMP = False
    DBG = 0

for a in sys.argv[1:]:
    if '=' in a:
        k, v = a.split('=')
        setattr(Opt, k, type(getattr(Opt, k))(int(v)))

N = 50000; E = 800000
NB = 250; CH = 3200; NCH = 250; TN = 25
CHS = 3216
ME = Opt.ME; NE = ME // 256
assert ME % 256 == 0 and ME <= 2048
WS_TAB = 0x700000
WS_F2 = 0x790000
WS_ES = 0x2000000
WS_SIZE = 0x10000000
NLOG2E = 0xbfb8aa3b
KNAME = "standalone__edge_featured_mpnn_egc__graph_kernel"
SPIN_MAX = 1 << 20

out = []
def emit(s): out.append("    " + s)
def label(s): out.append(s + ":")
def comment(s): out.append("    ; " + s)
def vr(b, n): return f"v[{b}:{b+n-1}]"

def srd(base, ptr, size):
    emit(f"s_mov_b32 s{base}, s{ptr}")
    emit(f"s_and_b32 s{base+1}, s{ptr+1}, 0xffff")
    emit(f"s_mov_b32 s{base+2}, {size:#x}")
    emit(f"s_mov_b32 s{base+3}, 0x20000")

STB = 0xF000000
ST0 = 74
_st = {"n": 0}
def stamp(kind="s_memrealtime"):
    if not Opt.STAMP: return
    b = ST0 + 2 * _st["n"]; _st["n"] += 1
    emit(f"{kind} s[{b}:{b+1}]")
def cstamp(): stamp("s_memtime")
def vstamp(sreg):
    if not Opt.STAMP: return
    b = ST0 + 2 * _st["n"]; _st["n"] += 1
    emit(f"s_mov_b32 s{b}, s{sreg}")
    emit(f"s_mov_b32 s{b+1}, 0")
def dbg_flush(sel, va, sa):
    emit(f"s_load_dwordx2 s[{sa+4}:{sa+5}], s[0:1], 64")
    emit("s_waitcnt lgkmcnt(0)")
    srd(sa, sa + 4, 256)
    emit("s_mov_b64 exec, 1")
    emit(f"v_mov_b32 v{va+2}, 0")
    for (k, slot, kind) in sel:
        b = ST0 + 2 * k
        emit(f"v_mov_b32 v{va}, s{b}")
        if kind == 'min': emit(f"v_not_b32 v{va}, v{va}")
        emit(f"buffer_atomic_umax v{va}, v{va+2}, s[{sa}:{sa+3}], 0 offen offset:{4*slot}")
        emit("s_nop 1")
def stamp_flush(srdn, swg, va, tmp_s):
    emit("s_waitcnt lgkmcnt(0)")
    if Opt.DBG:
        emit(f"s_and_b32 s{tmp_s}, s{swg}, 0x1c3")
        emit(f"s_cmp_lg_u32 s{tmp_s}, 0")
        emit("s_cbranch_scc1 K_end")
        dbg_flush([(0,4,'min'),(0,5,'max'),(1,6,'max'),(3,7,'max'),(5,8,'max'),(6,9,'max'),(7,10,'min'),(9,11,'min'),(9,12,'max'),(12,13,'max')], va, 32)
        return
    emit("s_mov_b64 exec, 1")
    emit(f"s_lshl_b32 s{tmp_s}, s{swg}, 7")
    emit(f"s_add_u32 s{tmp_s}, s{tmp_s}, {STB:#x}")
    emit(f"v_mov_b32 v{va+2}, 0")
    for k in range(_st["n"]):
        b = ST0 + 2 * k
        emit(f"v_mov_b32 v{va}, s{b}")
        emit(f"v_mov_b32 v{va+1}, s{b+1}")
        emit(f"buffer_store_dwordx2 v[{va}:{va+1}], v{va+2}, s[{srdn}:{srdn+3}], s{tmp_s} offen offset:{8*k}")
        emit("s_nop 1")

CNT = 0; DONE = 64
AOT = 128
SM = AOT + 2560; SM_W = 2560
STG0 = SM + 8 * SM_W
BUFW = 5120; BUF = 8 * BUFW
L0 = STG0 + 2 * BUF
EST = SM
WFL = L0 - 34 * 1024
assert EST + ME * 32 <= WFL and STG0 % 16 == 0 and SM % 16 == 0
CAPT = 832; LST = CAPT * 4
L1 = L0 + 8 * LST
L1OFF = (L1 - L0) // 256
INV = L1 + 8 * LST
K_LDS = INV + 4096
assert (L1 - L0) % 256 == 0 and K_LDS <= 163840 and L0 % 16 == 0
P1_HIST = L0; P1_START = L0 + 2048; P1_SORT = L0 + 4096
meanA = 400.0 * (1 - ME / CH)
CA = int(meanA + 6.5 * math.sqrt(meanA) + 7) // 4 * 4
assert CAPT - 128 - CA >= 400.0 * ME / CH + 6 * math.sqrt(400.0 * ME / CH + 1)
DUM0 = 0x7fffff80; DUM1 = 0x01ffffe0 | TN

class R: pass
_next = [1]
def alloc(n, align=1):
    b = _next[0]
    b = (b + align - 1) // align * align
    _next[0] = b + n
    return b
R.lane16 = alloc(1); R.dmab = alloc(1); R.rde = alloc(1)
R.rd = alloc(4)
R.l0a = alloc(1); R.l1a = alloc(1); R.h16 = alloc(1); R.aoc = alloc(1); R.sc = alloc(1); R.sr = alloc(1)
R.one = alloc(1); R.zero = alloc(1); R.eh16 = alloc(1); R.l1b = alloc(1)
R.w1d = alloc(1); R.w1n = alloc(1); R.aoa = alloc(1); R.sa = alloc(1); R.t0 = alloc(1); R.t1 = alloc(1)
R.w0 = alloc(4, 4)
R.WB = alloc(32, 4); R.WC = alloc(8, 4); R.WV = alloc(32, 4); R.P = alloc(16, 4)
R.AGG = alloc(32, 4)
R.Z = [alloc(16, 4), 0]; R.H = [alloc(16, 4), 0]
R.Z[1] = alloc(16, 4); R.H[1] = alloc(16, 4)
R.AX = alloc(16, 4); R.AE = alloc(4, 4); R.AO = alloc(8, 4); R.AS = alloc(8, 4)
K_VGPR = _next[0]
assert K_VGPR <= 256, K_VGPR

SX = 8; SE = 12; SO = 16; SW = 20
S_B = 3; S_WAVE = 4; S_NG = 5; S_G = 6; S_MODE = 7
S_STG = 24; S_MSKE = 25; S_80 = 26; S_MID4 = 27; S_IT = 28; S_P = 29; S_TOT = 30; S_T0 = 31
S_MASK = 32
S_T1 = 64; S_T2 = 65; S_C = 66; S_TABO = 67; S_NODE0 = 68; S_T3 = 69; S_GP = 70; S_N32 = 71; S_GM = 72; S_2P25 = 73
K_SGPR = 74

def WB(s, t): return vr(R.WB + (s * 2 + t) * 4, 4)
def WV(s, t): return vr(R.WV + (s * 2 + t) * 4, 4)
def WC(t): return vr(R.WC + t * 4, 4)
def PP(s, t): return vr(R.P + (s * 2 + t) * 4, 4)
def AX(s): return vr(R.AX + s * 4, 4)
def AO(s): return vr(R.AO + s * 4, 4)
def AS(s): return vr(R.AS + s * 4, 4)
AE = vr(R.AE, 4)
def AGG(t): return vr(R.AGG + t * 16, 16)
def Zr(t): return vr(R.Z[t], 16)
def Hr(t): return vr(R.H[t], 16)
def mfma(d, a, b, c): return f"v_mfma_f32_32x32x16_bf16 {d}, {a}, {b}, {c}"
def msk(k): return f"s[{S_MASK+2*k}:{S_MASK+2*k+1}]"

def zh_mfmas(t):
    z, h = Zr(t), Hr(t)
    m = [mfma(z, AO(0), PP(0, t), "0"), mfma(z, AO(1), PP(1, t), z), mfma(z, AE, WC(t), z)]
    for s in range(4):
        m.append(mfma(z, AX(s), WB(s, t), z))
        m.append(mfma(h, AX(s), WV(s, t), "0" if s == 0 else h))
    return m

def agg_mfmas(t):
    return [mfma(AGG(t), AS(0), vr(R.Z[t], 4), AGG(t)), mfma(AGG(t), AS(1), vr(R.Z[t] + 8, 4), AGG(t))]

def sig_stream(t):
    z, h = R.Z[t], R.H[t]
    st = []
    for m in range(4):
        rs = [4 * m + i for i in range(4)]
        if not Opt.FOLD:
            for r in rs: st.append((f"v_mul_f32 v{z+r}, s{S_C}, v{z+r}", 4))
        for r in rs: st.append((f"v_exp_f32 v{z+r}, v{z+r}", 8))
        for r in rs: st.append((f"v_add_f32 v{z+r}, 1.0, v{z+r}", 4))
        for r in rs: st.append((f"v_rcp_f32 v{z+r}, v{z+r}", 8))
        for r in rs: st.append((f"v_mul_f32 v{z+r}, v{z+r}, v{h+r}", 4))
        d = 8 * (m // 2) + 2 * (m % 2)
        st.append((f"v_cvt_pk_bf16_f32 v{z+d}, v{z+4*m}, v{z+4*m+1}", 4))
        st.append((f"v_cvt_pk_bf16_f32 v{z+d+1}, v{z+4*m+2}, v{z+4*m+3}", 4))
    return st

def dma_issue(bufoff, w0, w1):
    nte = " nt" if Opt.NT_E else ""
    esp = {0: "", 1: " nt", 2: " sc1", 3: " sc1 nt"}[Opt.ESPOL]
    ch = []
    for t in range(4):
        c = [f"s_add_u32 m0, s{S_STG}, {bufoff + 1024*t}",
             f"v_xad_u32 v{w0+t}, v{R.dmab}, {16*t}, v{w0+t}",
             f"buffer_load_dwordx4 v{w0+t}, s[{SX}:{SX+3}], 0 offen lds"]
        ch.append(c)
    c = [f"s_add_u32 m0, s{S_STG}, {bufoff + 4096}",
         f"v_and_or_b32 v{w1}, v{w1}, s{S_MSKE}, v{R.eh16}"]
    if ME:
        c += [f"v_cmp_gt_u32 vcc, s{S_2P25}, v{w1}",
              "s_mov_b64 exec, vcc",
              f"buffer_load_dwordx4 v{w1}, s[{SE}:{SE+3}], 0 offen{nte} lds",
              "s_not_b64 exec, exec",
              f"buffer_load_dwordx4 v{w1}, s[{SW}:{SW+3}], 0 offen{esp} lds",
              "s_mov_b64 exec, -1"]
    else:
        c += [f"buffer_load_dwordx4 v{w1}, s[{SE}:{SE+3}], 0 offen{nte} lds"]
    ch.append(c)
    return ch

def emit_dma(bufoff, w0, w1):
    for c in dma_issue(bufoff, w0, w1):
        for x in c: emit(x)

def nl_addr():
    return [f"v_and_b32 v{R.w1n}, 31, v{R.w1n}",
            f"v_mad_u32_u24 v{R.aoa}, v{R.w1n}, s{S_80}, v{R.aoc}",
            f"v_mad_u32_u24 v{R.sa}, v{R.w1n}, s{S_80}, v{R.sc}"]

def interleave(valu, mfmas, after, pre=None):
    pre = pre or {}
    def keep(x):
        if Opt.NODMA and (x.startswith("buffer_load") or "vmcnt" in x): return False
        return True
    total = sum(c for _, c in valu)
    n = len(mfmas)
    tail = 48 if not Opt.FOLD else 56
    spacing = (total - tail) / (n - 1)
    k = 0; cum = 0
    for ins, c in valu:
        while k < n and cum >= k * spacing - 1e-9:
            for x in pre.get(k, []):
                if keep(x): emit(x)
            emit(mfmas[k])
            for x in after.get(k, []):
                if keep(x): emit(x)
            k += 1
        emit(ins); cum += c
    assert k == n, (k, n)

def group_body(par, lo):
    nb = BUF * (1 - par)
    m = agg_mfmas(1) + zh_mfmas(1)
    after = {
        0: [f"ds_read_b32 v{R.w1n}, v{R.l1a} offset:{lo+128}"],
        1: [f"ds_write_b16 v{R.sa}, v{R.one}",
            f"ds_read_b128 {AS(0)}, v{R.sr}",
            f"ds_read_b128 {AS(1)}, v{R.sr} offset:32",
            f"ds_write_b16 v{R.sa}, v{R.zero}"],
        3: ["s_waitcnt lgkmcnt(4)"] + nl_addr() +
           [f"ds_read_b128 {AO(0)}, v{R.aoa}", f"ds_read_b128 {AO(1)}, v{R.aoa} offset:32"],
        4: ["s_waitcnt vmcnt(5)", f"ds_read_b128 {AE}, v{R.rde} offset:{nb}"],
        6: [f"ds_read_b128 {AX(0)}, v{R.rd} offset:{nb}"],
        8: [f"ds_read_b128 {AX(1)}, v{R.rd+1} offset:{nb}"],
        10: [f"ds_read_b128 {AX(2)}, v{R.rd+2} offset:{nb}",
             f"ds_read_b128 {vr(R.w0,4)}, v{R.l0a} offset:{lo+384}",
             f"ds_read_b32 v{R.w1d}, v{R.l1b} offset:{lo+384}"],
        12: [f"ds_read_b128 {AX(3)}, v{R.rd+3} offset:{nb}"],
    }
    interleave(sig_stream(0), m, after)
    m = agg_mfmas(0) + zh_mfmas(0)
    d = dma_issue(nb, R.w0, R.w1d)
    pre = {0: ["s_waitcnt lgkmcnt(1)"]}
    after = {1: ["s_waitcnt lgkmcnt(0)"] + d[0], 2: d[1], 3: d[2], 4: d[3], 5: d[4]}
    interleave(sig_stream(1), m, after, pre)

def gtrace():
    if not Opt.STAMP: return
    emit(f"s_memtime s[{S_MASK}:{S_MASK+1}]")
    emit("s_waitcnt lgkmcnt(0)")
    emit(f"s_mov_b32 m0, s{S_G}")
    emit("s_nop 0")
    emit(f"v_writelane_b32 v254, s{S_MASK}, m0")

def prio_check(tag):
    if not Opt.PRIO: return
    emit(f"s_cmp_lg_u32 s{S_G}, s{S_GP}")
    emit(f"s_cbranch_scc1 K_np{tag}")
    emit("s_setprio 0")
    label(f"K_np{tag}")

def moved_poll(tag):
    emit(f"s_mov_b32 s{S_T3}, 0")
    emit(f"s_mov_b32 s{S_T0}, {WS_F2:#x}")
    label(f"K_mp{tag}")
    emit(f"buffer_load_dwordx4 {vr(R.w0,4)}, v{R.lane16}, s[{SW}:{SW+3}], s{S_T0} offen sc1")
    emit("s_waitcnt vmcnt(0)")
    for j in range(4): emit(f"v_xor_b32 v{R.w0+j}, s{S_N32}, v{R.w0+j}")
    emit(f"v_or3_b32 v{R.w0}, v{R.w0}, v{R.w0+1}, v{R.w0+2}")
    emit(f"v_or_b32 v{R.w0}, v{R.w0}, v{R.w0+3}")
    emit(f"v_cmp_ne_u32 vcc, 0, v{R.w0}")
    emit(f"s_cbranch_vccz K_mpd{tag}")
    emit(f"s_add_u32 s{S_T3}, s{S_T3}, 1")
    emit(f"s_cmp_ge_u32 s{S_T3}, {SPIN_MAX}")
    emit(f"s_cbranch_scc1 K_mpd{tag}")
    emit("s_sleep 4")
    emit(f"s_branch K_mp{tag}")
    label(f"K_mpd{tag}")

def pu_block():
    aw = [R.Z[0], R.H[0]]; uu = [R.Z[1], R.H[1]]
    for t in range(2):
        for sx in range(4):
            emit(mfma(AGG(t), AX(sx), vr(uu[t] + 4 * sx, 4), "0" if sx == 0 else AGG(t)))
    for t in range(2):
        for sx in range(4):
            emit(mfma(vr(uu[t], 16), AX(sx), vr(aw[t] + 4 * sx, 4), "0" if sx == 0 else vr(uu[t], 16)))
    emit("s_nop 7")
    for t in range(2):
        if t == 1 and not Opt.FOLD: emit("s_nop 3")
        if Opt.FOLD:
            for r in range(16): emit(f"v_mul_f32 v{uu[t]+r}, s{S_C}, v{uu[t]+r}")
        for sx in range(2):
            for j in range(4):
                emit(f"v_cvt_pk_bf16_f32 v{R.P+(sx*2+t)*4+j}, v{uu[t]+8*sx+2*j}, v{uu[t]+8*sx+2*j+1}")

def cnt_init(ta, tb):
    emit(f"v_and_b32 v{tb}, 7, v0")
    emit(f"v_mul_u32_u24 v{ta+1}, {LST}, v{tb}")
    emit(f"v_add_u32 v{ta+1}, {L0}, v{ta+1}")
    emit(f"v_add_u32 v{ta+1}, s{S_MID4}, v{ta+1}")
    emit(f"v_subrev_u32 v{ta}, 4, v{ta+1}")
    emit(f"v_lshlrev_b32 v{tb}, 3, v{tb}")
    emit(f"ds_write_b64 v{tb}, v[{ta}:{ta+1}] offset:{CNT}")

def list_prefill():
    z = R.H[1]
    for r in range(4):
        emit(f"v_mov_b32 v{z+r}, {DUM0:#x}")
        emit(f"v_mov_b32 v{z+4+r}, {DUM1:#x}")
    emit(f"v_lshlrev_b32 v{z+8}, 4, v0")
    emit(f"v_add_u32 v{z+9}, 0x6000, v{z+8}")
    emit(f"v_min_u32 v{z+9}, {8*LST-16}, v{z+9}")
    emit(f"v_add_u32 v{z+8}, {L0}, v{z+8}")
    emit(f"v_add_u32 v{z+9}, {L0}, v{z+9}")
    assert 3 * 8192 <= 8 * LST <= 4 * 8192
    for (arr, off) in ((z, 0), (z + 4, L1 - L0)):
        for k in range(3):
            emit(f"ds_write_b128 v{z+8}, {vr(arr,4)} offset:{off+8192*k}")
        emit(f"ds_write_b128 v{z+9}, {vr(arr,4)} offset:{off}")

def gen():
    nt = " nt" if Opt.NT_IDX else ""
    OP = {0: "", 1: " nt", 2: " sc1"}[Opt.OUTPOL]
    out.append(".p2align 8")
    out.append(f".globl {KNAME}")
    out.append(f".type {KNAME},@function")
    label(KNAME)
    emit("s_cmp_ge_u32 s2, 256")
    emit("s_cbranch_scc1 K_end")
    emit("s_and_b32 s3, s2, 7")
    emit("s_lshl_b32 s3, s3, 5")
    emit("s_lshr_b32 s4, s2, 3")
    emit(f"s_add_u32 s{S_B}, s3, s4")
    emit(f"s_cmp_ge_u32 s{S_B}, {NB}")
    emit("s_cbranch_scc1 K_end")
    stamp()
    if Opt.STAMP: emit("s_memtime s[100:101]")
    emit("s_load_dwordx16 s[40:55], s[0:1], 0")
    emit("s_load_dwordx4 s[56:59], s[0:1], 64")
    emit("s_memrealtime s[60:61]")
    t0, t1 = R.t0, R.t1
    D = R.WB; S = R.WB + 8; GT = R.WB + 16; BA = R.WB + 24; RKS = R.WC; W = R.WV; TM = R.WV + 16
    emit(f"v_lshrrev_b32 v{t0}, 6, v0")
    emit(f"v_and_b32 v{t1}, 63, v0")
    emit(f"v_readfirstlane_b32 s{S_WAVE}, v{t0}")
    emit(f"v_lshlrev_b32 v{R.lane16}, 4, v{t1}")
    emit(f"v_lshlrev_b32 v{TM}, 4, v0")
    emit("v_cmp_gt_u32 vcc, 0x120, v0")
    emit(f"v_mov_b32 v{R.w0}, 0x7ffffff0")
    emit(f"v_add_u32 v{TM+1}, 0x2000, v{TM}")
    emit(f"s_mul_i32 s{S_T0}, s{S_B}, 12800")
    emit(f"v_cndmask_b32 v{TM+1}, v{R.w0}, v{TM+1}, vcc")
    emit(f"s_mov_b64 s[{S_IT}:{S_IT+1}], vcc")
    if Opt.PRIO: emit("s_setprio 1")
    emit("s_waitcnt lgkmcnt(0)")
    srd(32, 46, E * 4)
    emit(f"buffer_load_dwordx4 {vr(D,4)}, v{TM}, s[32:35], s{S_T0} offen{nt}")
    emit(f"buffer_load_dwordx4 {vr(D+4,4)}, v{TM+1}, s[32:35], s{S_T0} offen{nt}")
    srd(36, 44, E * 4)
    emit(f"buffer_load_dwordx4 {vr(S,4)}, v{TM}, s[36:39], s{S_T0} offen{nt}")
    emit(f"buffer_load_dwordx4 {vr(S+4,4)}, v{TM+1}, s[36:39], s{S_T0} offen{nt}")
    srd(SX, 40, N * 128)
    srd(SE, 42, E * 32)
    srd(SO, 54, N * 128)
    srd(SW, 58, WS_SIZE)
    srd(40, 56, 256)
    i, h = R.w1n, R.w1d
    a, b = R.aoa, R.sa
    emit(f"v_and_b32 v{i}, 31, v{t1}")
    emit(f"v_lshrrev_b32 v{h}, 5, v{t1}")
    emit(f"v_lshlrev_b32 v{R.h16}, 4, v{h}")
    emit(f"v_mov_b32 v{R.zero}, 0")
    emit(f"s_or_b32 s{S_T0}, s{S_B}, s{S_WAVE}")
    emit(f"s_cmp_lg_u32 s{S_T0}, 0")
    emit("s_cbranch_scc1 F_notag")
    emit("s_and_b32 s61, s61, 0xff")
    emit("s_or_b32 s61, s61, 0x100")
    emit(f"v_mov_b32 v{R.w0+2}, s60")
    emit(f"v_mov_b32 v{R.w0+3}, s61")
    emit("s_mov_b64 exec, 1")
    emit(f"buffer_store_dwordx2 v[{R.w0+2}:{R.w0+3}], v{R.zero}, s[40:43], 0 offen sc1")
    emit("s_mov_b64 exec, -1")
    label("F_notag")
    emit(f"s_mul_i32 s{S_STG}, s{S_WAVE}, {BUFW}")
    emit(f"s_add_u32 s{S_STG}, s{S_STG}, {STG0}")
    emit(f"s_mul_i32 s{S_NODE0}, s{S_B}, 200")
    emit(f"s_mul_i32 s{S_T0}, s{S_WAVE}, {TN}")
    emit(f"s_add_u32 s{S_NODE0}, s{S_NODE0}, s{S_T0}")
    emit(f"s_lshl_b32 s{S_NODE0}, s{S_NODE0}, 7")
    emit(f"s_mov_b32 s{S_MSKE}, 0x03ffffe0")
    emit(f"s_mov_b32 s{S_2P25}, {WS_ES:#x}")
    emit(f"s_movk_i32 s{S_80}, 80")
    emit(f"s_mov_b32 s{S_C}, {NLOG2E:#x}")
    emit(f"s_mov_b32 s{S_MODE}, 0")
    emit(f"s_movk_i32 s{S_MID4}, {CA*4}")
    emit(f"v_mov_b32 v{R.one}, 0x3f80")
    emit(f"v_and_b32 v{t0}, 19, v{i}")
    emit(f"v_and_b32 v{a}, 4, v{i}")
    emit(f"v_lshl_or_b32 v{t0}, v{a}, 1, v{t0}")
    emit(f"v_and_b32 v{a}, 8, v{i}")
    emit(f"v_lshrrev_b32 v{a}, 1, v{a}")
    emit(f"v_or_b32 v{t0}, v{t0}, v{a}")
    emit(f"v_lshlrev_b32 v{t0}, 1, v{t0}")
    emit(f"v_mov_b32 v{R.w0+2}, 0")
    emit(f"v_mov_b32 v{R.w0+3}, 0")
    emit(f"v_lshlrev_b32 v{b}, 3, v{t1}")
    emit(f"s_cmp_lg_u32 s{S_WAVE}, 7")
    emit("s_cbranch_scc1 F_noinit")
    emit(f"v_add_u32 v{a}, {P1_HIST}, v{b}")
    for k in range(4): emit(f"ds_write_b64 v{a}, v[{R.w0+2}:{R.w0+3}] offset:{512*k}")
    emit(f"ds_write_b64 v{R.zero}, v[{R.w0+2}:{R.w0+3}] offset:{DONE}")
    cnt_init(R.AS, R.AS + 2)
    for k in range(5): emit(f"ds_write_b64 v{b}, v[{R.w0+2}:{R.w0+3}] offset:{AOT+512*k}")
    emit(f"v_mad_u32_u24 v{a}, v{i}, s{S_80}, v{t0}")
    emit(f"ds_write_b16 v{a}, v{R.one} offset:{AOT}")
    label("F_noinit")
    emit(f"s_mov_b32 s{S_T3}, 83887")
    emit(f"s_mul_i32 s{S_TOT}, s{S_B}, 102400")
    emit(f"v_lshlrev_b32 v{TM+2}, 7, v0")
    emit(f"v_add_u32 v{TM+2}, s{S_TOT}, v{TM+2}")
    emit(f"v_add_u32 v{TM+3}, 0x10000, v{TM+2}")
    emit(f"v_mov_b32 v{TM+4}, 1")
    emit(f"v_cmp_gt_u32 s[44:45], s{S_80}, v0" if False else f"v_cmp_gt_u32 vcc, {ME//4:#x}, v0")
    emit(f"v_mov_b32 v{TM+9}, {P1_HIST}")
    emit(f"v_mov_b32 v{TM+10}, {P1_HIST+4}")
    emit(f"v_cndmask_b32 v{TM+10}, v{TM+9}, v{TM+10}, vcc")
    emit("s_mov_b64 s[44:45], vcc")
    emit("s_waitcnt lgkmcnt(0)")
    emit("s_barrier")
    emit(f"v_and_b32 v{a}, 7, v{t1}")
    emit(f"v_lshlrev_b32 v{R.dmab}, 2, v{h}")
    emit(f"v_xor_b32 v{R.dmab}, v{R.dmab}, v{a}")
    emit(f"v_lshlrev_b32 v{R.dmab}, 4, v{R.dmab}")
    emit(f"v_lshrrev_b32 v{a}, 3, v{t1}")
    emit(f"v_lshlrev_b32 v{a}, 9, v{a}")
    emit(f"s_lshl_b32 s{S_T1}, s{S_WAVE}, 12")
    emit(f"s_add_u32 m0, s{S_T1}, {WFL}")
    emit(f"s_mov_b32 s{S_T0}, s{S_NODE0}")
    for t in range(4):
        emit(f"v_xad_u32 v{R.AE+t}, v{R.dmab}, {16*t}, v{a}")
        emit(f"buffer_load_dwordx4 v{R.AE+t}, s[{SX}:{SX+3}], s{S_T0} offen{' nt' if Opt.NT_XT else ''} lds")
        emit("s_add_u32 m0, m0, 0x400")
        emit(f"s_add_u32 s{S_T0}, s{S_T0}, 128")
    emit(f"s_movk_i32 s{S_T2}, 96")
    emit(f"s_mul_i32 s{S_T0}, s{S_WAVE}, {SM_W}")
    emit(f"s_add_u32 s{S_T0}, s{S_T0}, {SM}")
    emit(f"v_add_u32 v{R.sc}, s{S_T0}, v{t0}")
    emit(f"v_mad_u32_u24 v{a}, v{i}, s{S_80}, v{R.h16}")
    emit(f"v_add_u32 v{R.sr}, s{S_T0}, v{a}")
    emit(f"v_add_u32 v{R.aoc}, {AOT}, v{R.h16}")
    emit(f"v_and_b32 v{a}, 1, v{t1}")
    emit(f"v_xor_b32 v{a}, v{a}, v{h}")
    emit(f"v_lshlrev_b32 v{R.eh16}, 4, v{a}")
    emit(f"v_lshrrev_b32 v{a}, 4, v{i}")
    emit(f"v_xor_b32 v{a}, v{a}, v{h}")
    emit(f"v_lshlrev_b32 v{a}, 4, v{a}")
    emit(f"v_lshl_add_u32 v{a}, v{i}, 5, v{a}")
    emit(f"v_add_u32 v{R.rde}, s{S_STG}, v{a}")
    emit(f"v_add_u32 v{R.rde}, 0x1000, v{R.rde}")
    emit(f"v_and_b32 v{a}, 3, v{i}")
    emit(f"v_lshrrev_b32 v{b}, 4, v{i}")
    emit(f"v_lshl_add_u32 v{b}, v{b}, 2, v{a}")
    emit(f"v_xor_b32 v{b}, v{b}, v{h}")
    emit(f"v_lshlrev_b32 v{b}, 4, v{b}")
    emit(f"v_lshlrev_b32 v{a}, 10, v{a}")
    emit(f"v_lshrrev_b32 v{t0}, 2, v{i}")
    emit(f"v_lshl_add_u32 v{a}, v{t0}, 7, v{a}")
    emit(f"v_add_u32 v{a}, s{S_STG}, v{a}")
    for s in range(4):
        c = ["0", "32", "64", f"s{S_T2}"][s]
        emit(f"v_xad_u32 v{R.rd+s}, v{b}, {c}, v{a}")
    NM = ME // 128
    rounds = [min(NM, 4 * r) for r in range(5)]
    _lab = [0]
    def e_round(r):
        k0, k1 = rounds[r], rounds[r + 1]
        if k1 <= k0: return
        _lab[0] += 1
        emit(f"s_cmp_lt_u32 s{S_WAVE}, 4")
        emit(f"s_cbranch_scc1 F_noe{_lab[0]}")
        emit(f"s_lshl_b32 s{S_T0}, s{S_WAVE}, 10")
        emit(f"s_add_u32 s{S_T1}, s{S_T0}, s{S_TOT}")
        emit(f"s_add_u32 s{S_T1}, s{S_T1}, {k0*4096 - 4096}")
        emit(f"s_add_u32 m0, s{S_T0}, {EST + k0*4096 - 4096}")
        for k in range(k0, k1):
            emit("s_nop 0")
            emit(f"buffer_load_dwordx4 v{R.lane16}, s[{SE}:{SE+3}], s{S_T1} offen nt lds")
            if k < k1 - 1:
                emit("s_add_u32 m0, m0, 0x1000")
                emit(f"s_add_u32 s{S_T1}, s{S_T1}, 0x1000")
        label(f"F_noe{_lab[0]}")
    emit("s_waitcnt vmcnt(6)")
    stamp()
    for j in range(8): emit(f"v_mul_u32_u24 v{GT+j}, s{S_T3}, v{D+j}")
    for j in range(8): emit(f"v_lshrrev_b32 v{BA+j}, 24, v{GT+j}")
    for j in range(8): emit(f"v_lshl_add_u32 v{BA+j}, v{BA+j}, 3, v{TM+10 if j < 4 else TM+9}")
    for j in range(4): emit(f"ds_add_rtn_u32 v{RKS+j}, v{BA+j}, v{TM+4}")
    emit(f"s_mov_b64 exec, s[{S_IT}:{S_IT+1}]")
    for j in range(4, 8): emit(f"ds_add_rtn_u32 v{RKS+j}, v{BA+j}, v{TM+4}")
    emit("s_mov_b64 exec, -1")
    for j in range(8): emit(f"v_lshrrev_b32 v{GT+j}, 21, v{GT+j}")
    for j in range(8): emit(f"v_mul_u32_u24 v{W+2*j}, 25, v{GT+j}")
    for j in range(8): emit(f"v_sub_u32 v{D+j}, v{D+j}, v{W+2*j}")
    for j in range(8): emit(f"v_lshl_or_b32 v{D+j}, v{GT+j}, 29, v{D+j}")
    for j in range(8):
        c = ["0", "32", "64", f"s{S_T2}"][j % 4]
        emit(f"v_add3_u32 v{W+2*j+1}, v{TM+2+j//4}, v{D+j}, {c}")
    emit("s_waitcnt vmcnt(4)")
    for j in range(8): emit(f"v_lshlrev_b32 v{W+2*j}, 7, v{S+j}")
    emit("s_waitcnt lgkmcnt(0)")
    emit("s_barrier")
    TV = R.AO
    RW = R.Z[0]
    def wsel(ks_reg):
        emit(f"s_cmp_lt_u32 s{ks_reg}, 13")
        emit("s_cselect_b32 s60, s50, s48")
        emit("s_cselect_b32 s61, s51, s49")
        emit(f"s_cselect_b32 s{S_T1}, 9, 13")
        emit(f"s_cmp_lt_u32 s{ks_reg}, 9")
        emit("s_cselect_b32 s60, s52, s60")
        emit("s_cselect_b32 s61, s53, s61")
        emit(f"s_cselect_b32 s{S_T1}, 0, s{S_T1}")
        emit(f"s_movk_i32 s{S_T2}, 0x2000")
        emit(f"s_cselect_b32 s62, 0x4800, s{S_T2}")
        emit("s_and_b32 s61, s61, 0xffff")
        emit("s_mov_b32 s63, 0x20000")
        emit(f"s_sub_u32 s{S_T1}, s{ks_reg}, s{S_T1}")
        emit(f"s_lshl_b32 s{S_T1}, s{S_T1}, 11")
    def wloads(rnds):
        emit(f"v_lshlrev_b32 v{a}, 2, v{i}")
        emit(f"v_lshl_add_u32 v{a}, v{h}, 10, v{a}")
        for rnd in rnds:
            emit(f"s_add_u32 s{S_T0}, s{S_WAVE}, {8*rnd}")
            wsel(S_T0)
            for q in range(8):
                emit(f"buffer_load_dword v{RW+8*rnd+q}, v{a}, s[60:63], s{S_T1} offen offset:{q*128}")
    emit(f"s_cmp_lg_u32 s{S_WAVE}, 0")
    emit("s_cbranch_scc1 F_noscan")
    C0 = R.AGG
    emit(f"v_lshlrev_b32 v{C0+30}, 1, v{R.lane16}")
    emit(f"v_add_u32 v{C0+30}, {P1_HIST}, v{C0+30}")
    emit(f"ds_read_b128 {vr(C0,4)}, v{C0+30}")
    emit(f"ds_read_b128 {vr(C0+4,4)}, v{C0+30} offset:16")
    emit("s_waitcnt lgkmcnt(0)")
    for j in range(4):
        emit(f"v_add_u32 v{C0+24+j}, v{C0+2*j}, v{C0+2*j+1}")
        emit(f"v_lshl_or_b32 v{C0+8+j}, v{C0+2*j+1}, 16, v{C0+24+j}")
    emit(f"v_add_u32 v{C0+12}, v{C0+8}, v{C0+9}")
    emit(f"v_add_u32 v{C0+13}, v{C0+12}, v{C0+10}")
    emit(f"v_add_u32 v{C0+14}, v{C0+13}, v{C0+11}")
    sc = C0 + 15
    emit(f"v_mov_b32 v{sc}, v{C0+14}")
    for sh in (1, 2, 4, 8):
        emit("s_nop 1")
        emit(f"v_add_u32_dpp v{sc}, v{sc}, v{sc} row_shr:{sh} row_mask:0xf bank_mask:0xf")
    emit("s_nop 1")
    emit(f"v_add_u32_dpp v{sc}, v{sc}, v{sc} row_bcast:15 row_mask:0xa bank_mask:0xf")
    emit("s_nop 1")
    emit(f"v_add_u32_dpp v{sc}, v{sc}, v{sc} row_bcast:31 row_mask:0xc bank_mask:0xf")
    emit(f"v_sub_u32 v{C0+16}, v{sc}, v{C0+14}")
    emit(f"v_add_u32 v{C0+18}, v{C0+16}, v{C0+8}")
    emit(f"v_add_u32 v{C0+20}, v{C0+16}, v{C0+12}")
    emit(f"v_add_u32 v{C0+22}, v{C0+16}, v{C0+13}")
    for j in range(4): emit(f"v_add_u32 v{C0+17+2*j}, v{C0+16+2*j}, v{C0+2*j}")
    emit(f"ds_write_b128 v{C0+30}, {vr(C0+16,4)} offset:{P1_START-P1_HIST}")
    emit(f"ds_write_b128 v{C0+30}, {vr(C0+20,4)} offset:{P1_START-P1_HIST+16}")
    for j in range(4):
        emit(f"v_and_b32 v{TV+2*j}, 0xffff, v{C0+16+2*j}")
        emit(f"v_lshl_or_b32 v{TV+2*j}, v{C0+24+j}, 12, v{TV+2*j}")
    emit("s_waitcnt lgkmcnt(0)")
    emit("s_barrier")
    for j in range(8): emit(f"ds_read_b32 v{GT+j}, v{BA+j} offset:{P1_START-P1_HIST}")
    wloads([0, 1, 2])
    emit("s_branch F_scanned")
    label("F_noscan")
    wloads([0, 1])
    emit("s_barrier")
    for j in range(8): emit(f"ds_read_b32 v{GT+j}, v{BA+j} offset:{P1_START-P1_HIST}")
    label("F_scanned")
    emit(f"buffer_load_dwordx2 v[{R.AS}:{R.AS+1}], v{R.zero}, s[40:43], 0 offen sc1")
    emit(f"s_lshl_b32 s{S_T1}, s{S_WAVE}, 12")
    emit(f"s_add_u32 s{S_T1}, s{S_T1}, {WFL}")
    emit(f"s_sub_u32 s{S_T1}, s{S_T1}, s{S_STG}")
    for s in range(4): emit(f"v_add_u32 v{R.AE+s}, s{S_T1}, v{R.rd+s}")
    emit("s_waitcnt vmcnt(17)")
    for s in range(4): emit(f"ds_read_b128 {AX(s)}, v{R.AE+s}")
    e_round(0)
    emit(f"s_mul_i32 s{S_T0}, s{S_B}, {ME*32}")
    emit(f"s_add_u32 s{S_T0}, s{S_T0}, {WS_ES + (1 << 28):#x}")
    emit(f"v_lshlrev_b32 v{TM+11}, 2, v0")
    emit("s_waitcnt lgkmcnt(4)")
    if ME:
        emit("s_mov_b64 exec, s[44:45]")
        for j in range(4):
            emit(f"v_lshrrev_b32 v{S+j}, 16, v{GT+j}")
            emit(f"v_add_u32 v{S+j}, v{S+j}, v{RKS+j}")
            emit(f"v_lshl_add_u32 v{W+2*j+1}, v{S+j}, 5, v{D+j}")
            emit(f"v_add_u32 v{W+2*j+1}, s{S_T0}, v{W+2*j+1}")
            emit(f"v_lshlrev_b32 v{S+j}, 1, v{S+j}")
            emit(f"v_add_u32 v{S+j}, {INV}, v{S+j}")
            emit(f"v_add_u32 v{S+4+j}, {j}, v{TM+11}")
            emit(f"ds_write_b16 v{S+j}, v{S+4+j}")
        emit("s_mov_b64 exec, -1")
    for j in range(8): emit(f"v_and_b32 v{GT+j}, 0xffff, v{GT+j}")
    for j in range(8): emit(f"v_add_lshl_u32 v{GT+j}, v{GT+j}, v{RKS+j}, 3")
    for j in range(8): emit(f"v_add_u32 v{GT+j}, {P1_SORT}, v{GT+j}")
    for j in range(4): emit(f"ds_write_b64 v{GT+j}, v[{W+2*j}:{W+2*j+1}]")
    emit(f"s_mov_b64 exec, s[{S_IT}:{S_IT+1}]")
    for j in range(4, 8): emit(f"ds_write_b64 v{GT+j}, v[{W+2*j}:{W+2*j+1}]")
    emit("s_mov_b64 exec, -1")
    emit(f"v_add_u32 v{TM+5}, {P1_SORT}, v{TM}")
    emit("v_cmp_gt_u32 vcc, 64, v0")
    emit(f"s_mul_i32 s{S_T3}, s{S_B}, {CHS*8}")
    emit("s_nop 0")
    emit(f"v_cndmask_b32 v{TM+6}, v{R.w0}, v{TM}, vcc")
    emit("s_waitcnt lgkmcnt(0)")
    emit("s_barrier")
    emit(f"s_cmp_ge_u32 s{S_WAVE}, 4")
    emit("s_cbranch_scc1 F_m1")
    for k in range(7): emit(f"ds_read_b128 {vr(D+4*k,4)}, v{TM+5} offset:{4096*k}")
    for k in range(7):
        emit(f"s_waitcnt lgkmcnt({6-k})")
        emit(f"buffer_store_dwordx4 {vr(D+4*k,4)}, v{TM if k < 6 else TM+6}, s[{SW}:{SW+3}], s{S_T3} offen sc1")
        if k < 6: emit(f"s_add_u32 s{S_T3}, s{S_T3}, 0x1000")
    emit("s_waitcnt vmcnt(7)")
    emit("s_branch F_m1d")
    label("F_m1")
    e_round(1)
    emit(f"s_waitcnt vmcnt({rounds[2]})")
    label("F_m1d")
    stamp()
    UN = R.Z[1]; PK = R.AGG
    emit(f"s_mov_b32 s{S_T1}, 0x05040100")
    emit(f"s_mov_b32 s{S_T2}, 0x07060302")
    emit(f"s_lshl_b32 s{S_T0}, s{S_WAVE}, 11")
    emit(f"v_add_u32 v{t0}, s{S_T0}, v{R.lane16}")
    emit(f"v_add_u32 v{t0}, {WFL}, v{t0}")
    def pack(rnd, scaled):
        raw = RW + 8 * rnd; pk = PK + 8 * rnd
        if scaled:
            for q in range(8):
                emit(f"v_lshlrev_b32 v{UN+q}, 16, v{raw+q}")
                emit(f"v_and_b32 v{UN+8+q}, 0xffff0000, v{raw+q}")
            for q in range(16): emit(f"v_mul_f32 v{UN+q}, s{S_C}, v{UN+q}")
            for j in range(4):
                emit(f"v_cvt_pk_bf16_f32 v{pk+j}, v{UN+2*j}, v{UN+2*j+1}")
                emit(f"v_cvt_pk_bf16_f32 v{pk+4+j}, v{UN+8+2*j}, v{UN+8+2*j+1}")
        else:
            for j in range(4):
                emit(f"v_perm_b32 v{pk+j}, v{raw+2*j+1}, v{raw+2*j}, s{S_T1}")
                emit(f"v_perm_b32 v{pk+4+j}, v{raw+2*j+1}, v{raw+2*j}, s{S_T2}")
    def wr(rnd):
        pk = PK + 8 * rnd
        emit(f"ds_write_b128 v{t0}, {vr(pk,4)} offset:{rnd*16384}")
        emit(f"ds_write_b128 v{t0}, {vr(pk+4,4)} offset:{rnd*16384+1024}")
    if Opt.FOLD:
        emit(f"s_cmp_ge_u32 s{S_WAVE}, 4")
        emit("s_cbranch_scc1 F_p0s")
        pack(0, False)
        emit("s_branch F_p0d")
        label("F_p0s")
        pack(0, True)
        label("F_p0d")
    else:
        pack(0, False)
    wr(0)
    emit(f"s_cmp_eq_u32 s{S_WAVE}, 0")
    emit("s_cbranch_scc1 F_p1w0")
    pack(1, False)
    wr(1)
    emit("s_branch F_p1d")
    label("F_p1w0")
    pack(1, Opt.FOLD)
    wr(1)
    pack(2, False)
    wr(2)
    label("F_p1d")
    S_N8 = 57
    emit(f"s_mov_b32 s{S_T3}, 0")
    label("F_tagchk")
    emit(f"v_readfirstlane_b32 s{S_N8}, v{R.AS+1}")
    emit(f"v_readfirstlane_b32 s{S_N32}, v{R.AS}")
    emit("s_nop 3")
    emit(f"s_cmp_lg_u32 s{S_N8}, 0")
    emit("s_cbranch_scc1 F_tagok")
    emit(f"s_add_u32 s{S_T3}, s{S_T3}, 1")
    emit(f"s_cmp_ge_u32 s{S_T3}, {SPIN_MAX}")
    emit("s_cbranch_scc1 F_tagok")
    emit("s_sleep 2")
    emit(f"buffer_load_dwordx2 v[{R.AS}:{R.AS+1}], v{R.zero}, s[40:43], 0 offen sc1")
    emit("s_waitcnt vmcnt(0)")
    emit("s_branch F_tagchk")
    label("F_tagok")
    emit(f"s_and_b32 s{S_N8}, s{S_N8}, 0xff")
    e_round(2)
    emit(f"s_cmp_ge_u32 s{S_WAVE}, 4")
    emit("s_cbranch_scc1 F_noack")
    emit("s_waitcnt vmcnt(0)")
    label("F_noack")
    emit("s_waitcnt lgkmcnt(0)")
    emit("s_barrier")
    stamp()
    emit(f"s_cmp_lg_u32 s{S_WAVE}, 0")
    emit("s_cbranch_scc1 F_notab")
    emit(f"s_lshl_b32 s{S_T0}, s{S_N8}, 24")
    for j in range(4):
        emit(f"v_or_b32 v{TV+2*j}, s{S_T0}, v{TV+2*j}")
        emit(f"v_mov_b32 v{TV+2*j+1}, s{S_N32}")
    emit(f"s_lshl_b32 s{S_T0}, s{S_B}, 11")
    emit(f"s_add_u32 s{S_T0}, s{S_T0}, {WS_TAB:#x}")
    emit(f"v_lshlrev_b32 v{t0}, 1, v{R.lane16}")
    emit(f"buffer_store_dwordx4 {vr(TV,4)}, v{t0}, s[{SW}:{SW+3}], s{S_T0} offen sc1")
    emit(f"buffer_store_dwordx4 {vr(TV+4,4)}, v{t0}, s[{SW}:{SW+3}], s{S_T0} offen offset:16 sc1")
    label("F_notab")
    list_prefill()
    e_round(3)
    emit(f"v_add_u32 v{t0}, {WFL}, v{R.lane16}")
    emit("s_waitcnt lgkmcnt(0)")
    for sx in range(4):
        for t in range(2):
            emit(f"ds_read_b128 {vr([R.Z[1],R.H[1]][t]+4*sx,4)}, v{t0} offset:{(26+2*sx+t)*1024}")
    for sx in range(4):
        for t in range(2):
            emit(f"ds_read_b128 {vr([R.Z[0],R.H[0]][t]+4*sx,4)}, v{t0} offset:{(2*sx+t)*1024}")
    emit("s_barrier")
    for f in range(8): emit(f"ds_read_b128 {vr(R.WB+4*f,4)}, v{t0} offset:{(8+f)*1024}")
    for f in range(2): emit(f"ds_read_b128 {vr(R.WC+4*f,4)}, v{t0} offset:{(16+f)*1024}")
    for f in range(8): emit(f"ds_read_b128 {vr(R.WV+4*f,4)}, v{t0} offset:{(18+f)*1024}")
    emit(f"s_lshl_b32 s{S_TABO}, s{S_B}, 3")
    emit(f"s_add_u32 s{S_TABO}, s{S_TABO}, {WS_TAB:#x}")
    emit(f"s_cmp_ge_u32 s{S_WAVE}, 4")
    emit("s_cbranch_scc1 F_mover")
    for it in range(8): emit(f"s_add_u32 s{44+it}, s{S_TABO}, {it<<16:#x}")
    emit(f"v_lshrrev_b32 v{a}, 3, v0")
    emit(f"v_and_b32 v{b}, 7, v0")
    emit(f"v_lshlrev_b32 v{b}, 1, v{b}")
    emit(f"v_cmp_gt_u32 s[52:53], {NCH-7*32}, v{a}")
    emit(f"v_lshlrev_b32 v{R.w0+1}, 11, v{a}")
    emit(f"v_mul_u32_u24 v{a}, {CHS}, v{a}")
    emit(f"v_cndmask_b32 v{R.w0+2}, v{R.w0}, v{R.w0+1}, s[52:53]")
    emit(f"v_add_u32 v{a}, v{a}, v{b}")
    TB = R.AO
    assert R.AS == R.AO + 8
    def poll_loads():
        for it in range(8):
            emit(f"buffer_load_dwordx2 v[{TB+2*it}:{TB+2*it+1}], v{R.w0+1+(it==7)}, s[{SW}:{SW+3}], s{44+it} offen sc1")
    poll_loads()
    emit("s_waitcnt lgkmcnt(0)")
    pu_block()
    stamp()
    emit(f"s_mov_b32 s{S_T3}, 0")
    CK = R.Z[0]
    label("F_poll")
    emit("s_waitcnt vmcnt(0)")
    for it in range(8):
        emit(f"v_xor_b32 v{CK+it}, s{S_N32}, v{TB+2*it+1}")
        emit(f"v_lshrrev_b32 v{CK+8+it}, 24, v{TB+2*it}")
        emit(f"v_xor_b32 v{CK+8+it}, s{S_N8}, v{CK+8+it}")
    emit(f"v_or_b32 v{CK+7}, v{CK+7}, v{CK+15}")
    emit(f"v_cndmask_b32 v{CK+7}, 0, v{CK+7}, s[52:53]")
    for k in range(1, 15, 2): emit(f"v_or3_b32 v{CK}, v{CK}, v{CK+k}, v{CK+k+1}")
    emit(f"v_cmp_ne_u32 vcc, 0, v{CK}")
    emit("s_cbranch_vccz F_polled")
    emit(f"s_add_u32 s{S_T3}, s{S_T3}, 1")
    emit(f"s_cmp_ge_u32 s{S_T3}, {SPIN_MAX}")
    emit("s_cbranch_scc1 F_polled")
    poll_loads()
    emit("s_branch F_poll")
    label("F_polled")
    stamp()
    def BASE(it): return TB + 2 * it
    def REM(it): return TB + 2 * it + 1
    for it in range(8):
        emit(f"v_bfe_u32 v{REM(it)}, v{BASE(it)}, 12, 12")
        emit(f"v_sub_u32 v{REM(it)}, v{REM(it)}, v{b}")
        emit(f"v_and_b32 v{BASE(it)}, 0xfff, v{BASE(it)}")
        emit(f"v_add_u32 v{BASE(it)}, {it*32*CHS}, v{BASE(it)}")
        emit(f"v_add_lshl_u32 v{BASE(it)}, v{BASE(it)}, v{a}, 3")
    REC = R.Z[0]; RK = R.AX; TA = R.AE
    assert R.H[1] == R.Z[0] + 48
    emit(f"v_mov_b32 v{R.t0}, {L0}")
    emit(f"s_mov_b32 s{S_T3}, {L1-4}")
    label("K_collect")
    for l in range(16):
        it, p = l // 2, l % 2
        emit(f"v_cmp_lt_i32 {msk(l)}, {16*p}, v{REM(it)}")
    for l in range(16):
        it, p = l // 2, l % 2
        tmp = R.w0 + 1 + (l % 3)
        emit(f"v_cndmask_b32 v{tmp}, v{R.w0}, v{BASE(it)}, {msk(l)}")
        emit(f"buffer_load_dwordx4 {vr(REC+4*l,4)}, v{tmp}, s[{SW}:{SW+3}], 0 offen offset:{128*p} sc1")
    for half in range(2):
        for l8 in range(8):
            l = 8 * half + l8; it, p = l // 2, l % 2
            for r in range(2):
                emit(f"v_cmp_lt_i32 {msk(2*l8+r)}, {16*p+r}, v{REM(it)}")
        for l8 in range(8):
            l = 8 * half + l8
            emit(f"s_waitcnt vmcnt({15-l})")
            for r in range(2):
                k = 2 * l8 + r
                w1 = REC + 4 * l + 2 * r + 1
                emit(f"v_lshrrev_b32 v{TA+k%4}, 26, v{w1}")
                emit(f"v_and_b32 v{RK+k}, 4, v{TA+k%4}")
                emit(f"v_lshl_add_u32 v{RK+k}, v{RK+k}, 1, -4")
            for r in range(2):
                k = 2 * l8 + r
                emit(f"s_mov_b64 exec, {msk(k)}")
                emit(f"ds_add_rtn_u32 v{RK+k}, v{TA+k%4}, v{RK+k} offset:{CNT}")
            emit("s_mov_b64 exec, -1")
        emit("s_waitcnt lgkmcnt(0)")
        for k in range(16): emit(f"v_med3_i32 v{RK+k}, v{RK+k}, v{R.t0}, s{S_T3}")
        for k in range(16):
            emit(f"s_mov_b64 exec, {msk(k)}")
            emit(f"ds_write2st64_b32 v{RK+k}, v{REC+32*half+2*k}, v{REC+32*half+2*k+1} offset0:0 offset1:{L1OFF}")
        emit("s_mov_b64 exec, -1")
    for it in range(8):
        emit(f"v_subrev_u32 v{REM(it)}, 32, v{REM(it)}")
        emit(f"v_add_u32 v{BASE(it)}, 0x100, v{BASE(it)}")
    emit(f"v_max3_i32 v{R.t1}, v{REM(0)}, v{REM(1)}, v{REM(2)}")
    emit(f"v_max3_i32 v{R.t1}, v{R.t1}, v{REM(3)}, v{REM(4)}")
    emit(f"v_max3_i32 v{R.t1}, v{R.t1}, v{REM(5)}, v{REM(6)}")
    emit(f"v_max_i32 v{R.t1}, v{R.t1}, v{REM(7)}")
    emit(f"v_cmp_lt_i32 vcc, 0, v{R.t1}")
    emit("s_waitcnt lgkmcnt(0)")
    emit("s_cbranch_vccnz K_collect")
    emit("s_branch K_collected")
    label("F_mover")
    emit("s_waitcnt lgkmcnt(0)")
    pu_block()
    if Opt.STAMP: _st["n"] -= 2
    stamp()
    if ME:
        NU = ME // 128
        IX = R.Z[1]
        emit(f"v_and_b32 v{a}, 0xfe, v0")
        emit(f"v_add_u32 v{a}, {INV}, v{a}")
        for k in range(NU): emit(f"ds_read_u16 v{IX+k}, v{a} offset:{256*k}")
        emit(f"v_and_b32 v{b}, 1, v0")
        emit(f"v_lshlrev_b32 v{b}, 4, v{b}")
        emit(f"v_add_u32 v{b}, {EST}, v{b}")
        emit(f"v_and_b32 v{a}, 0xff, v0")
        emit(f"v_lshlrev_b32 v{a}, 4, v{a}")
        emit(f"v_mov_b32 v{R.t0}, 1")
        emit("s_waitcnt vmcnt(0)")
        emit("s_mov_b64 exec, 1")
        emit(f"ds_add_u32 v{R.zero}, v{R.t0} offset:{DONE+4}")
        emit("s_mov_b64 exec, -1")
        emit("s_waitcnt lgkmcnt(0)")
        for k in range(NU): emit(f"v_lshl_add_u32 v{IX+k}, v{IX+k}, 5, v{b}")
        label("F_mwait")
        emit(f"ds_read_b32 v{R.t1}, v{R.zero} offset:{DONE+4}")
        emit("s_waitcnt lgkmcnt(0)")
        emit(f"v_readfirstlane_b32 s{S_T0}, v{R.t1}")
        emit("s_nop 3")
        emit(f"s_cmp_lt_u32 s{S_T0}, 4")
        emit("s_cbranch_scc1 F_mwait")
        emit(f"s_mul_i32 s{S_T0}, s{S_B}, {ME*32}")
        emit(f"s_add_u32 s{S_T0}, s{S_T0}, {WS_ES:#x}")
        for k0 in range(0, NU, 8):
            ks = list(range(k0, min(k0 + 8, NU)))
            for k in ks: emit(f"ds_read_b128 {vr(R.Z[0]+4*(k-k0),4)}, v{IX+k}")
            for k in ks:
                emit(f"s_waitcnt lgkmcnt({ks[-1]-k})")
                emit(f"buffer_store_dwordx4 {vr(R.Z[0]+4*(k-k0),4)}, v{a}, s[{SW}:{SW+3}], s{S_T0} offen sc1")
                emit(f"s_add_u32 s{S_T0}, s{S_T0}, 0x1000")
    stamp()
    label("K_collected")
    emit("s_barrier")
    stamp()
    emit(f"s_mul_i32 s{S_T0}, s{S_WAVE}, {SM_W}")
    emit(f"v_lshrrev_b32 v{a}, 1, v{R.lane16}")
    emit(f"v_add_u32 v{a}, s{S_T0}, v{a}")
    emit(f"v_mov_b32 v{R.w0+2}, 0")
    emit(f"v_mov_b32 v{R.w0+3}, 0")
    for k in range(5): emit(f"ds_write_b64 v{a}, v[{R.w0+2}:{R.w0+3}] offset:{SM+512*k}")
    label("K_counts")
    emit(f"v_and_b32 v{R.t0}, 7, v0")
    emit(f"v_lshlrev_b32 v{R.t1}, 3, v{R.t0}")
    emit(f"ds_read_b64 v[{R.w0}:{R.w0+1}], v{R.t1} offset:{CNT}")
    emit(f"v_mul_u32_u24 v{R.t0}, {LST}, v{R.t0}")
    emit(f"v_add_u32 v{R.t0}, {L0}, v{R.t0}")
    emit(f"v_add_u32 v{R.t0}, s{S_MID4}, v{R.t0}")
    emit(f"s_sub_u32 s{S_T2}, {(CAPT-128)*4}, s{S_MID4}")
    emit("s_waitcnt lgkmcnt(0)")
    emit(f"v_sub_u32 v{R.w0}, v{R.t0}, v{R.w0}")
    emit(f"v_subrev_u32 v{R.w0}, 4, v{R.w0}")
    emit(f"v_sub_u32 v{R.w0+1}, v{R.w0+1}, v{R.t0}")
    emit(f"v_cmp_lt_u32 vcc, s{S_MID4}, v{R.w0}")
    emit(f"v_cmp_lt_u32 {msk(0)}, s{S_T2}, v{R.w0+1}")
    emit(f"v_cmp_ne_u32 {msk(1)}, 0, v{R.w0+1}")
    emit(f"v_readlane_b32 s{S_T0}, v{R.w0}, s{S_WAVE}")
    emit(f"v_readlane_b32 s{S_T1}, v{R.w0+1}, s{S_WAVE}")
    emit("s_nop 2")
    emit(f"s_or_b64 {msk(0)}, {msk(0)}, vcc")
    emit(f"s_or_b32 s{S_TOT}, s{S_MASK+2}, s{S_MASK+3}")
    emit(f"s_or_b32 s{S_MASK+4}, s{S_MASK}, s{S_MASK+1}")
    emit(f"s_add_u32 s{S_T0}, s{S_T0}, 15")
    emit(f"s_and_b32 s{S_T0}, s{S_T0}, -16")
    emit(f"s_add_u32 s{S_NG}, s{S_T0}, s{S_T1}")
    emit(f"s_add_u32 s{S_NG}, s{S_NG}, 127")
    emit(f"s_lshr_b32 s{S_NG}, s{S_NG}, 7")
    emit(f"s_lshr_b32 s{S_GM}, s{S_T0}, 7")
    emit(f"s_cmp_eq_u32 s{S_T1}, 0")
    emit(f"s_cselect_b32 s{S_GM}, 0x7fff, s{S_GM}")
    emit(f"s_cmp_lg_u32 s{S_MODE}, 0")
    emit(f"s_cselect_b32 s{S_GM}, 0x7fff, s{S_GM}")
    emit(f"s_mul_i32 s{S_T1}, s{S_WAVE}, {LST}")
    emit(f"s_add_u32 s{S_T1}, s{S_T1}, s{S_MID4}")
    emit(f"s_sub_u32 s{S_T1}, s{S_T1}, s{S_T0}")
    emit(f"s_cmp_lg_u32 s{S_MASK+4}, 0")
    emit(f"s_cselect_b32 s{S_T1}, 0, s{S_T1}")
    emit(f"s_cselect_b32 s{S_GM}, 0, s{S_GM}")
    emit(f"s_add_u32 s{S_T1}, s{S_T1}, {L0}")
    emit(f"s_add_u32 s{S_T2}, s{S_T1}, {L1-L0}")
    emit(f"v_lshrrev_b32 v{R.l0a}, 7, v{R.lane16}")
    emit(f"v_lshlrev_b32 v{R.l0a}, 4, v{R.l0a}")
    emit(f"v_add_u32 v{R.l0a}, s{S_T1}, v{R.l0a}")
    emit(f"v_bfe_u32 v{R.l1a}, v{R.lane16}, 2, 7")
    emit(f"v_add_u32 v{R.l1a}, s{S_T2}, v{R.l1a}")
    emit(f"v_lshrrev_b32 v{R.l1b}, 5, v{R.lane16}")
    emit(f"v_lshlrev_b32 v{R.l1b}, 2, v{R.l1b}")
    emit(f"v_add_u32 v{R.l1b}, s{S_T2}, v{R.l1b}")
    def first_dmas():
        emit(f"ds_read_b128 {AO(0)}, v{R.l0a}")
        emit(f"ds_read_b32 v{R.AS}, v{R.l1b}")
        emit(f"ds_read_b128 {AO(1)}, v{R.l0a} offset:128")
        emit(f"ds_read_b32 v{R.AS+1}, v{R.l1b} offset:128")
        emit("s_waitcnt lgkmcnt(2)")
        emit_dma(0, R.AO, R.AS)
        emit("s_waitcnt lgkmcnt(0)")
        emit_dma(BUF, R.AO + 4, R.AS + 1)
    if ME:
        emit(f"s_cmp_lg_u32 s{S_MODE}, 0")
        emit("s_cbranch_scc1 K_late")
        emit(f"s_cmp_lt_u32 s{S_WAVE}, 4")
        emit("s_cbranch_scc1 K_published")
        emit("s_waitcnt vmcnt(0)")
        emit(f"v_mov_b32 v{R.t0}, 1")
        emit("s_mov_b64 exec, 1")
        emit(f"ds_add_rtn_u32 v{R.t1}, v{R.zero}, v{R.t0} offset:{DONE}")
        emit("s_waitcnt lgkmcnt(0)")
        emit(f"v_readfirstlane_b32 s{S_T0}, v{R.t1}")
        emit(f"v_mov_b32 v{R.t0}, s{S_N32}")
        emit(f"s_lshl_b32 s{S_T1}, s{S_B}, 2")
        emit(f"s_add_u32 s{S_T1}, s{S_T1}, {WS_F2:#x}")
        emit(f"s_cmp_lg_u32 s{S_T0}, 3")
        emit("s_cbranch_scc1 K_published")
        emit(f"buffer_store_dword v{R.t0}, v{R.zero}, s[{SW}:{SW+3}], s{S_T1} offen sc1")
        emit(f"s_cmp_ge_u32 s{S_B}, 6")
        emit("s_cbranch_scc1 K_published")
        emit(f"buffer_store_dword v{R.t0}, v{R.zero}, s[{SW}:{SW+3}], s{S_T1} offen offset:1000 sc1")
        label("K_published")
        emit("s_mov_b64 exec, -1")
        emit(f"s_cmp_ge_u32 s{S_GM}, 3")
        emit("s_cbranch_scc1 K_late")
        moved_poll("a")
        label("K_late")
    emit(f"s_cmp_lg_u32 s{S_MASK+4}, 0")
    emit("s_cbranch_scc1 K_slow_init")
    first_dmas()
    emit(f"s_cmp_eq_u32 s{S_NG}, 0")
    emit("s_cbranch_scc1 K_main_done")
    emit(f"ds_read_b32 v{R.w1n}, v{R.l1a}")
    emit(f"ds_read_b128 {vr(R.w0,4)}, v{R.l0a} offset:256")
    emit(f"ds_read_b32 v{R.w1d}, v{R.l1b} offset:256")
    for r in range(8): emit(f"v_mov_b32 v{R.AS+r}, 0")
    for r in (0, 1, 2, 3, 8, 9, 10, 11): emit(f"v_mov_b32 v{R.Z[1]+r}, 0")
    emit(f"s_mov_b32 s{S_G}, 0")
    emit(f"s_sub_u32 s{S_GM}, s{S_GM}, 3")
    if Opt.FIXNG: emit(f"s_movk_i32 s{S_NG}, {Opt.FIXNG}")
    if Opt.PRIO:
        emit(f"s_sub_u32 s{S_GP}, s{S_NG}, {Opt.PRIO}")
        emit(f"s_cmp_ge_u32 s{S_WAVE}, 4")
        emit(f"s_cselect_b32 s{S_GP}, -1, s{S_GP}")
    emit("s_waitcnt lgkmcnt(2)")
    for x in nl_addr(): emit(x)
    emit(f"ds_read_b128 {AO(0)}, v{R.aoa}")
    emit(f"ds_read_b128 {AO(1)}, v{R.aoa} offset:32")
    emit("s_waitcnt vmcnt(5)")
    emit(f"ds_read_b128 {AE}, v{R.rde}")
    for s in range(4): emit(f"ds_read_b128 {AX(s)}, v{R.rd+s}")
    emit("s_waitcnt lgkmcnt(0)")
    emit_dma(0, R.w0, R.w1d)
    for x in zh_mfmas(0): emit(x)
    emit("s_nop 7")
    emit("s_nop 3")
    stamp(); cstamp()
    def mcheck(tag):
        if not ME: return
        emit(f"s_cmp_eq_u32 s{S_G}, s{S_GM}")
        emit(f"s_cbranch_scc1 K_mpo{tag}")
        label(f"K_mpr{tag}")
    label("K_loop")
    mcheck(0)
    group_body(0, 0)
    gtrace()
    emit(f"s_add_u32 s{S_G}, s{S_G}, 1")
    prio_check(0)
    emit(f"s_cmp_ge_u32 s{S_G}, s{S_NG}")
    emit("s_cbranch_scc1 K_loop_exit")
    mcheck(1)
    group_body(1, 128)
    gtrace()
    adv = 0 if Opt.FIXNG else 0x100
    for r in (R.l0a, R.l1a, R.l1b): emit(f"v_add_u32 v{r}, {adv:#x}, v{r}")
    emit(f"s_add_u32 s{S_G}, s{S_G}, 1")
    prio_check(1)
    emit(f"s_cmp_lt_u32 s{S_G}, s{S_NG}")
    emit("s_cbranch_scc1 K_loop")
    label("K_loop_exit")
    emit("s_nop 1")
    for x in agg_mfmas(1): emit(x)
    label("K_main_done")
    emit(f"s_cmp_lg_u32 s{S_MODE}, 0")
    emit("s_cbranch_scc1 K_slow_next")
    label("K_epi")
    stamp(); cstamp(); vstamp(S_NG)
    emit("s_nop 7")
    emit("s_nop 7")
    emit(f"v_and_b32 v{R.t0}, 31, v0")
    emit(f"v_lshlrev_b32 v{R.t0}, 2, v{R.t0}")
    emit(f"v_lshl_add_u32 v{R.t0}, v{R.h16}, 5, v{R.t0}")
    z = R.Z[0]
    regs = [(t, r) for r in range(13) for t in range(2)]
    def tmp(t, r): return z + 2 * r + t
    for (t, r) in regs: emit(f"v_mul_f32 v{tmp(t,r)}, s{S_C}, v{R.AGG+16*t+r}")
    for (t, r) in regs: emit(f"v_exp_f32 v{tmp(t,r)}, v{tmp(t,r)}")
    for (t, r) in regs: emit(f"v_add_f32 v{tmp(t,r)}, 1.0, v{tmp(t,r)}")
    for (t, r) in regs: emit(f"v_rcp_f32 v{tmp(t,r)}, v{tmp(t,r)}")
    for (t, r) in regs: emit(f"v_mul_f32 v{tmp(t,r)}, v{tmp(t,r)}, v{R.AGG+16*t+r}")
    for r in range(13): emit(f"v_cvt_pk_bf16_f32 v{R.Z[1]+r}, v{tmp(0,r)}, v{tmp(1,r)}")
    for r in range(12):
        row = (r // 4) * 8 + r % 4
        emit(f"buffer_store_dword v{R.Z[1]+r}, v{R.t0}, s[{SO}:{SO+3}], s{S_NODE0} offen offset:{row*128}{OP}")
    emit("s_mov_b64 exec, 0xffffffff")
    emit(f"buffer_store_dword v{R.Z[1]+12}, v{R.t0}, s[{SO}:{SO+3}], s{S_NODE0} offen offset:{24*128}{OP}")
    if Opt.STAMP:
        emit("s_waitcnt vmcnt(0)")
        stamp()
        emit(f"s_lshl_b32 s{S_T0}, s2, 3")
        emit(f"s_add_u32 s{S_T0}, s{S_T0}, s{S_WAVE}")
        assert _st["n"] == 13, _st["n"]; _st["n"] = 14
        emit(f"s_lshl_b32 s{S_T1}, s{S_T0}, 7")
        emit(f"s_add_u32 s{S_T1}, s{S_T1}, {STB + (2 << 20):#x}")
        emit(f"v_lshrrev_b32 v255, 2, v{R.lane16}")
        emit(f"buffer_store_dword v254, v255, s[{SW}:{SW+3}], s{S_T1} offen")
        stamp_flush(SW, S_T0, R.w0, S_T1)
    label("K_end")
    emit("s_endpgm")
    if ME:
        for tag in (0, 1):
            label(f"K_mpo{tag}")
            moved_poll(f"l{tag}")
            emit(f"s_branch K_mpr{tag}")
    label("K_slow_init")
    emit(f"s_mov_b32 s{S_MODE}, 1")
    emit(f"s_mov_b32 s{S_MID4}, 0")
    emit(f"s_mov_b32 s{S_IT}, 0")
    emit(f"s_mov_b32 s{S_P}, 0")
    emit("s_branch K_slow_batch")
    label("K_slow_next")
    emit(f"s_add_u32 s{S_P}, s{S_P}, 1")
    emit(f"s_cmp_lg_u32 s{S_TOT}, 0")
    emit("s_cbranch_scc1 K_slow_batch")
    emit(f"s_mov_b32 s{S_P}, 0")
    emit(f"s_add_u32 s{S_IT}, s{S_IT}, 1")
    emit(f"s_cmp_ge_u32 s{S_IT}, 4")
    emit("s_cbranch_scc1 K_epi")
    label("K_slow_batch")
    emit("s_waitcnt vmcnt(0) lgkmcnt(0)")
    emit("s_barrier")
    emit(f"s_cmp_lg_u32 s{S_WAVE}, 0")
    emit("s_cbranch_scc1 K_slow_nocnt")
    cnt_init(R.AS, R.AS + 2)
    label("K_slow_nocnt")
    emit("s_nop 7")
    emit("s_nop 7")
    list_prefill()
    emit(f"v_lshrrev_b32 v{a}, 3, v0")
    emit(f"v_and_b32 v{b}, 7, v0")
    emit(f"v_lshlrev_b32 v{R.t0}, 11, v{a}")
    emit(f"s_lshl_b32 s{S_T0}, s{S_IT}, 17")
    emit(f"s_add_u32 s{S_T0}, s{S_T0}, s{S_TABO}")
    emit(f"buffer_load_dword v{R.t1}, v{R.t0}, s[{SW}:{SW+3}], s{S_T0} offen sc1")
    emit(f"s_lshl_b32 s{S_T0}, s{S_IT}, 6")
    emit(f"v_add_u32 v{a}, s{S_T0}, v{a}")
    emit(f"s_lshl_b32 s{S_T1}, s{S_P}, 3")
    emit(f"v_add_u32 v{b}, s{S_T1}, v{b}")
    emit(f"v_cmp_gt_u32 vcc, {NCH}, v{a}")
    emit(f"v_mul_u32_u24 v{a}, {CHS}, v{a}")
    emit(f"v_add_u32 v{a}, v{a}, v{b}")
    emit("s_waitcnt vmcnt(0) lgkmcnt(0)")
    emit("s_barrier")
    emit(f"v_cndmask_b32 v{R.t1}, 0, v{R.t1}, vcc")
    emit(f"v_bfe_u32 v{R.t0}, v{R.t1}, 12, 12")
    emit(f"v_and_b32 v{R.t1}, 0xfff, v{R.t1}")
    emit(f"v_add_lshl_u32 v{a}, v{a}, v{R.t1}, 3")
    emit(f"v_cmp_lt_u32 vcc, v{b}, v{R.t0}")
    emit(f"v_mov_b32 v{R.w0}, 0x7ffffff0")
    emit("s_nop 1")
    emit(f"v_cndmask_b32 v{a}, v{R.w0}, v{a}, vcc")
    emit(f"buffer_load_dwordx2 v[{R.w0+2}:{R.w0+3}], v{a}, s[{SW}:{SW+3}], 0 offen sc1")
    emit(f"v_mov_b32 v{R.t0}, 4")
    emit("s_waitcnt vmcnt(0)")
    emit(f"v_lshrrev_b32 v{a}, 26, v{R.w0+3}")
    emit(f"v_or_b32 v{a}, 4, v{a}")
    emit("s_mov_b64 exec, vcc")
    emit(f"ds_add_rtn_u32 v{b}, v{a}, v{R.t0} offset:{CNT}")
    emit("s_waitcnt lgkmcnt(0)")
    emit(f"ds_write2st64_b32 v{b}, v{R.w0+2}, v{R.w0+3} offset0:0 offset1:{L1OFF}")
    emit("s_mov_b64 exec, -1")
    emit("s_waitcnt lgkmcnt(0)")
    emit("s_barrier")
    emit("s_branch K_counts")

def kd(name, vgpr, sgpr):
    acc = (vgpr + 3) // 4 * 4
    out.append(".p2align 6")
    out.append(f".amdhsa_kernel {name}")
    out.append(f"  .amdhsa_next_free_vgpr {vgpr}")
    out.append(f"  .amdhsa_next_free_sgpr {sgpr}")
    out.append(f"  .amdhsa_accum_offset {acc}")
    out.append("  .amdhsa_group_segment_fixed_size 0")
    out.append("  .amdhsa_kernarg_size 80")
    out.append("  .amdhsa_user_sgpr_count 2")
    out.append("  .amdhsa_user_sgpr_kernarg_segment_ptr 1")
    out.append("  .amdhsa_system_sgpr_workgroup_id_x 1")
    out.append(".end_amdhsa_kernel")

hdr = open("standalone__edge_featured_mpnn_egc__graph.s.ref").read().split("\n")
for l in hdr:
    if l.startswith("; Override"): break
    out.append(l)
out.append(f"; @launch {'kernel='+KNAME+' ' if Opt.DBG else ''}grid=(256,1,1) block=(512,1,1) lds={K_LDS}")
out.append('.amdgcn_target "amdgcn-amd-amdhsa--gfx950"')
out.append(".text")
gen()
out.append('.section .rodata,"a"')
kd(KNAME, 256 if Opt.STAMP else K_VGPR, 102 if Opt.STAMP else K_SGPR)
print("\n".join(out))
```

```python
import sys

class Opt:
    FOLD = True
    NT_E = True
    NT_IDX = True
    NODMA = False
    NOLDS = False
    XZERO = False
    EZERO = False
    FIXNG = 0
    PRIO = 3
    PFB = 0
    PFC = 0
    PFD = 0x00
    PFE = 0x00
    OUTPOL = 0
    STAG = 0
    PSLEEP = 0
    NT_W = 0
    SKIPS = 0
    FAKEM = 0
    NT_XT = True
    NT_X = False
    STAMP = False
    DBG = 0

for a in sys.argv[1:]:
    if '=' in a:
        k, v = a.split('=')
        setattr(Opt, k, type(getattr(Opt, k))(int(v)))

N = 50000; E = 800000
NB = 250; CH = 3200; NCH = 250; TN = 25
CHS = 3216
WS_REC = 0
WS_TAB = 0x700000
WS_WF = 0x780000
WS_SIZE = 0x10000000
NLOG2E = 0xbfb8aa3b

out = []
def emit(s): out.append("    " + s)
def label(s): out.append(s + ":")
def comment(s): out.append("    ; " + s)

def srd(base, ptr, size):
    emit(f"s_mov_b32 s{base}, s{ptr}")
    emit(f"s_and_b32 s{base+1}, s{ptr+1}, 0xffff")
    emit(f"s_mov_b32 s{base+2}, {size:#x}")
    emit(f"s_mov_b32 s{base+3}, 0x20000")

STB = 0xF000000
_st = {"base": 72, "n": 0}
def stamp_begin(base):
    _st["base"] = base; _st["n"] = 0
def stamp(kind="s_memrealtime"):
    if not Opt.STAMP: return
    b = _st["base"] + 2 * _st["n"]; _st["n"] += 1
    emit(f"{kind} s[{b}:{b+1}]")
def cstamp(): stamp("s_memtime")
def vstamp(sreg):
    if not Opt.STAMP: return
    b = _st["base"] + 2 * _st["n"]; _st["n"] += 1
    emit(f"s_mov_b32 s{b}, s{sreg}")
    emit(f"s_mov_b32 s{b+1}, 0")
def dbg_flush(kidx, sel, va, sa):
    emit(f"s_load_dwordx2 s[{sa+4}:{sa+5}], s[0:1], 64")
    emit("s_waitcnt lgkmcnt(0)")
    if kidx == 0:
        emit(f"s_add_u32 s{sa+4}, s{sa+4}, 512")
        emit(f"s_addc_u32 s{sa+5}, s{sa+5}, 0")
    srd(sa, sa+4, 256)
    emit("s_mov_b64 exec, 1")
    emit(f"v_mov_b32 v{va+2}, 0")
    for (k, slot, kind) in sel:
        b = _st["base"] + 2 * k
        emit(f"v_mov_b32 v{va}, s{b}")
        if kind == 'min': emit(f"v_not_b32 v{va}, v{va}")
        emit(f"buffer_atomic_umax v{va}, v{va+2}, s[{sa}:{sa+3}], 0 offen offset:{4*slot}")
        emit("s_nop 1")

def stamp_flush(kidx, srdn, swave_global, va, tmp_s):
    if not Opt.STAMP: return
    if Opt.DBG:
        emit("s_waitcnt lgkmcnt(0)")
        if Opt.DBG == 2:
            emit(f"s_cmp_lg_u32 s{swave_global}, 804")
            emit("s_cbranch_scc1 K2_end")
            dbg_flush(1, [(7,4,'max'),(9,5,'max'),(8,6,'max'),(10,7,'max'),(0,8,'max'),(13,9,'max')], va, 32)
            return
        emit(f"s_and_b32 s{tmp_s}, s{swave_global}, 0x1c3")
        emit(f"s_cmp_lg_u32 s{tmp_s}, 0")
        emit("s_cbranch_scc1 K2_end")
        dbg_flush(1, [(0,4,'min'),(0,5,'max'),(1,6,'max'),(3,7,'max'),(5,8,'max'),(6,9,'max'),(7,10,'min'),(9,11,'min'),(9,12,'max'),(12,13,'max')], va, 32)
        return
    emit("s_waitcnt lgkmcnt(0)")
    emit("s_mov_b64 exec, 1")
    emit(f"s_lshl_b32 s{tmp_s}, s{swave_global}, 7")
    emit(f"s_add_u32 s{tmp_s}, s{tmp_s}, {STB + (kidx << 20):#x}")
    emit(f"v_mov_b32 v{va+2}, 0")
    for k in range(_st["n"]):
        b = _st["base"] + 2 * k
        emit(f"v_mov_b32 v{va}, s{b}")
        emit(f"v_mov_b32 v{va+1}, s{b+1}")
        emit(f"buffer_store_dwordx2 v[{va}:{va+1}], v{va+2}, s[{srdn}:{srdn+3}], s{tmp_s} offen offset:{8*k}")
        emit("s_nop 1")

def vr(b, n): return f"v[{b}:{b+n-1}]"

CNT = 0
AOT = 64
SM = AOT + 2560; SM_W = 2560
STG0 = SM + 8 * SM_W
assert STG0 % 16 == 0
BUFW = 5120
BUF = 8 * BUFW
WFL = STG0 + BUF
L0 = STG0 + 2 * BUF
CAP = 576; CAPT = 704
LST = CAPT * 4
L1 = L0 + 8 * LST
K2_LDS = L1 + 8 * LST
L1OFF = (L1 - L0) // 256
assert (L1 - L0) % 256 == 0 and K2_LDS <= 163840 and L0 % 16 == 0

class R: pass
_next = [1]
def alloc(n, align=1):
    b = _next[0]
    b = (b + align - 1) // align * align
    _next[0] = b + n
    return b
R.lane16 = alloc(1); R.dmab = alloc(1); R.rde = alloc(1)
R.rd = alloc(4)
R.l0a = alloc(1); R.l1a = alloc(1); R.h16 = alloc(1); R.aoc = alloc(1); R.sc = alloc(1); R.sr = alloc(1)
R.one = alloc(1); R.zero = alloc(1); R.eh16 = alloc(1); R.l1b = alloc(1)
R.w1d = alloc(1); R.w1n = alloc(1); R.aoa = alloc(1); R.sa = alloc(1); R.t0 = alloc(1); R.t1 = alloc(1)
R.pf = alloc(1); R.pfo = alloc(1)
R.w0 = alloc(4, 4)
R.WB = alloc(32, 4); R.WC = alloc(8, 4); R.WV = alloc(32, 4); R.P = alloc(16, 4)
R.AGG = alloc(32, 4)
R.Z = [alloc(16, 4), 0]; R.H = [alloc(16, 4), 0]
R.Z[1] = alloc(16, 4); R.H[1] = alloc(16, 4)
R.AX = alloc(16, 4); R.AE = alloc(4, 4); R.AO = alloc(8, 4); R.AS = alloc(8, 4)
K2_VGPR = _next[0]
assert K2_VGPR <= 256, K2_VGPR

SX = 8; SE = 12; SO = 16; SW = 20
S_B = 3; S_WAVE = 4; S_NG = 5; S_G = 6; S_MODE = 7
S_STG = 24; S_MSKE = 25; S_80 = 26; S_N = 27; S_IT = 28; S_P = 29; S_TOT = 30; S_T0 = 31
S_MASK = 32
S_T1 = 64; S_T2 = 65; S_C = 66; S_TABO = 67; S_NODE0 = 68; S_T3 = 69; S_GP = 70; S_TILE = 71
K2_SGPR = 72

def WB(s, t): return vr(R.WB + (s * 2 + t) * 4, 4)
def WV(s, t): return vr(R.WV + (s * 2 + t) * 4, 4)
def WC(t): return vr(R.WC + t * 4, 4)
def PP(s, t): return vr(R.P + (s * 2 + t) * 4, 4)
def AX(s): return vr(R.AX + s * 4, 4)
def AO(s): return vr(R.AO + s * 4, 4)
def AS(s): return vr(R.AS + s * 4, 4)
AE = vr(R.AE, 4)
def AGG(t): return vr(R.AGG + t * 16, 16)
def Zr(t): return vr(R.Z[t], 16)
def Hr(t): return vr(R.H[t], 16)
def mfma(d, a, b, c): return f"v_mfma_f32_32x32x16_bf16 {d}, {a}, {b}, {c}"

def zh_mfmas(t):
    z, h = Zr(t), Hr(t)
    m = [mfma(z, AO(0), PP(0, t), "0"), mfma(z, AO(1), PP(1, t), z), mfma(z, AE, WC(t), z)]
    for s in range(4):
        m.append(mfma(z, AX(s), WB(s, t), z))
        m.append(mfma(h, AX(s), WV(s, t), "0" if s == 0 else h))
    return m

def agg_mfmas(t):
    return [mfma(AGG(t), AS(0), vr(R.Z[t], 4), AGG(t)), mfma(AGG(t), AS(1), vr(R.Z[t] + 8, 4), AGG(t))]

def sig_stream(t):
    z, h = R.Z[t], R.H[t]
    st = []
    for m in range(4):
        rs = [4 * m + i for i in range(4)]
        if not Opt.FOLD:
            for r in rs: st.append((f"v_mul_f32 v{z+r}, s{S_C}, v{z+r}", 4))
        for r in rs: st.append((f"v_exp_f32 v{z+r}, v{z+r}", 8))
        for r in rs: st.append((f"v_add_f32 v{z+r}, 1.0, v{z+r}", 4))
        for r in rs: st.append((f"v_rcp_f32 v{z+r}, v{z+r}", 8))
        for r in rs: st.append((f"v_mul_f32 v{z+r}, v{z+r}, v{h+r}", 4))
        d = 8 * (m // 2) + 2 * (m % 2)
        st.append((f"v_cvt_pk_bf16_f32 v{z+d}, v{z+4*m}, v{z+4*m+1}", 4))
        st.append((f"v_cvt_pk_bf16_f32 v{z+d+1}, v{z+4*m+2}, v{z+4*m+3}", 4))
    return st

def dma_issue(bufoff, w0, w1):
    nte = " nt" if Opt.NT_E else ""
    seq = [f"s_add_u32 m0, s{S_STG}, {bufoff}"]
    for t in range(4):
        if Opt.XZERO: seq.append(f"v_and_or_b32 v{w0+t}, v{w0+t}, s71, v{R.dmab}")
        else: seq.append(f"v_xad_u32 v{w0+t}, v{R.dmab}, {16*t}, v{w0+t}")
        seq.append(f"buffer_load_dwordx4 v{w0+t}, s[{SX}:{SX+3}], 0 offen{' nt' if Opt.NT_X else ''} lds")
        seq.append("s_add_u32 m0, m0, 0x400")
    seq.append(f"v_and_or_b32 v{w1}, v{w1}, s{S_MSKE}, v{R.eh16}")
    seq.append(f"buffer_load_dwordx4 v{w1}, s[{SE}:{SE+3}], 0 offen{nte} lds")
    return seq

def nl_addr():
    return [f"v_and_b32 v{R.w1n}, 31, v{R.w1n}",
            f"v_mad_u32_u24 v{R.aoa}, v{R.w1n}, s{S_80}, v{R.aoc}",
            f"v_mad_u32_u24 v{R.sa}, v{R.w1n}, s{S_80}, v{R.sc}"]

def interleave(valu, mfmas, after, pre=None):
    pre = pre or {}
    def keep(x):
        if Opt.NODMA and (x.startswith("buffer_load") or "vmcnt" in x): return False
        if Opt.NOLDS and (x.startswith("ds_") or "lgkmcnt" in x): return False
        return True
    total = sum(c for _, c in valu)
    n = len(mfmas)
    tail = 48 if not Opt.FOLD else 56
    spacing = (total - tail) / (n - 1)
    k = 0; cum = 0
    for ins, c in valu:
        while k < n and cum >= k * spacing - 1e-9:
            for x in pre.get(k, []):
                if keep(x): emit(x)
            if not (Opt.SKIPS and k in ((0, 2, 3) if Opt.SKIPS == 1 else (0, 1, 2, 3))): emit(mfmas[k])
            for x in after.get(k, []):
                if keep(x): emit(x)
            k += 1
        emit(ins); cum += c
    assert k == n, (k, n)

def group_body(par, lo):
    nb = BUF * (1 - par)
    m = agg_mfmas(1) + zh_mfmas(1)
    after = {
        0: [f"ds_read_b32 v{R.w1n}, v{R.l1a} offset:{lo+128}"],
        1: [f"ds_write_b16 v{R.sa}, v{R.one}",
            f"ds_read_b128 {AS(0)}, v{R.sr}",
            f"ds_read_b128 {AS(1)}, v{R.sr} offset:32",
            f"ds_write_b16 v{R.sa}, v{R.zero}"],
        3: ["s_waitcnt lgkmcnt(4)"] + nl_addr() +
           [f"ds_read_b128 {AO(0)}, v{R.aoa}", f"ds_read_b128 {AO(1)}, v{R.aoa} offset:32"],
        4: ["s_waitcnt vmcnt(5)", f"ds_read_b128 {AE}, v{R.rde} offset:{nb}"],
        6: [f"ds_read_b128 {AX(0)}, v{R.rd} offset:{nb}"],
        8: [f"ds_read_b128 {AX(1)}, v{R.rd+1} offset:{nb}"],
        10: [f"ds_read_b128 {AX(2)}, v{R.rd+2} offset:{nb}",
             f"ds_read_b128 {vr(R.w0,4)}, v{R.l0a} offset:{lo+384}",
             f"ds_read_b32 v{R.w1d}, v{R.l1b} offset:{lo+384}"],
        12: [f"ds_read_b128 {AX(3)}, v{R.rd+3} offset:{nb}"],
    }
    interleave(sig_stream(0), m, after)
    m = agg_mfmas(0) + zh_mfmas(0)
    d = dma_issue(nb, R.w0, R.w1d)
    pre = {0: ["s_waitcnt lgkmcnt(1)"]}
    after = {1: ["s_waitcnt lgkmcnt(0)"] + d[0:4], 2: d[4:7], 3: d[7:10], 4: d[10:13], 5: d[13:15]}
    interleave(sig_stream(1), m, after, pre)

def gtrace():
    if not Opt.STAMP: return
    emit("s_memrealtime s[100:101]")
    emit("s_waitcnt lgkmcnt(0)")
    emit(f"s_mov_b32 m0, s{S_G}")
    emit("s_nop 0")
    emit(f"v_writelane_b32 v254, s100, m0")

def prio_check(tag):
    if not Opt.PRIO: return
    emit(f"s_cmp_lg_u32 s{S_G}, s{S_GP}")
    emit(f"s_cbranch_scc1 K2_np{tag}")
    emit("s_setprio 0")
    label(f"K2_np{tag}")

def pu_block():
    aw = [R.Z[0], R.H[0]]; uu = [R.Z[1], R.H[1]]
    for t in range(2):
        for sx in range(4):
            emit(mfma(AGG(t), AX(sx), vr(uu[t] + 4 * sx, 4), "0" if sx == 0 else AGG(t)))
    for t in range(2):
        for sx in range(4):
            emit(mfma(vr(uu[t], 16), AX(sx), vr(aw[t] + 4 * sx, 4), "0" if sx == 0 else vr(uu[t], 16)))
    emit("s_nop 7")
    for t in range(2):
        if t == 1 and not Opt.FOLD: emit("s_nop 3")
        if Opt.FOLD:
            for r in range(16):
                emit(f"v_mul_f32 v{uu[t]+r}, s{S_C}, v{uu[t]+r}")
        for sx in range(2):
            for j in range(4):
                emit(f"v_cvt_pk_bf16_f32 v{R.P+(sx*2+t)*4+j}, v{uu[t]+8*sx+2*j}, v{uu[t]+8*sx+2*j+1}")

def cnt_init(lane):
    emit(f"v_and_b32 v{R.w0+1}, 7, v{lane}")
    emit(f"v_mul_u32_u24 v{R.aoa}, {LST}, v{R.w0+1}")
    emit(f"v_add_u32 v{R.aoa}, {L0}, v{R.aoa}")
    emit(f"v_lshlrev_b32 v{R.w0+1}, 2, v{R.w0+1}")
    emit(f"ds_write_b32 v{R.w0+1}, v{R.aoa} offset:{CNT}")

KNAME = "standalone__edge_featured_mpnn_egc__graph_kernel"
P1_HIST = L0; P1_START = L0 + 1024; P1_SORT = L0 + 2048
OP = {0: "", 1: " nt", 2: " sc1", 3: " sc0 sc1"}[Opt.OUTPOL]
SPIN_MAX = 1 << 20

_pf = [0]
def prefetch(mask):
    if not mask: return 0
    npop = bin(mask).count("1")
    emit(f"s_lshl_b32 s{S_T0}, 1, s{S_WAVE}")
    emit(f"s_sub_u32 s{S_T1}, s{S_T0}, 1")
    emit(f"s_and_b32 s{S_T1}, s{S_T1}, {mask:#x}")
    emit(f"s_bcnt1_i32_b32 s{S_T1}, s{S_T1}")
    emit(f"s_add_u32 s{S_T1}, s{S_T1}, {_pf[0]}")
    emit(f"s_lshl_b32 s{S_T1}, s{S_T1}, 18")
    emit(f"s_and_b32 s{S_T0}, s{S_T0}, {mask:#x}")
    emit(f"s_cselect_b32 s{S_T1}, s{S_T1}, 0x7f000000")
    emit(f"buffer_load_dword v{R.pf}, v{R.pfo}, s[{SX}:{SX+3}], s{S_T1} offen")
    _pf[0] += npop
    return 1

def list_prefill():
    z = R.H[1]
    for r in range(4):
        emit(f"v_mov_b32 v{z+r}, 0x7fffff80")
        emit(f"v_mov_b32 v{z+4+r}, {0x1fffffe0 | TN:#x}")
    emit(f"v_lshlrev_b32 v{z+8}, 4, v0")
    emit(f"v_add_u32 v{z+9}, 0x4000, v{z+8}")
    emit(f"v_min_u32 v{z+9}, {8*LST-16}, v{z+9}")
    emit(f"v_add_u32 v{z+8}, {L0}, v{z+8}")
    emit(f"v_add_u32 v{z+9}, {L0}, v{z+9}")
    for (arr, off) in ((z, 0), (z + 4, L1 - L0)):
        emit(f"ds_write_b128 v{z+8}, {vr(arr,4)} offset:{off}")
        emit(f"ds_write_b128 v{z+8}, {vr(arr,4)} offset:{off+8192}")
        emit(f"ds_write_b128 v{z+9}, {vr(arr,4)} offset:{off}")

def gen_fused():
    nt = " nt" if Opt.NT_IDX else ""
    out.append(".p2align 8")
    out.append(f".globl {KNAME}")
    out.append(f".type {KNAME},@function")
    label(KNAME)
    emit("s_cmp_ge_u32 s2, 256")
    emit("s_cbranch_scc1 K2_end")
    emit("s_and_b32 s3, s2, 7")
    emit("s_lshl_b32 s3, s3, 5")
    emit("s_lshr_b32 s4, s2, 3")
    emit(f"s_add_u32 s{S_B}, s3, s4")
    emit(f"s_cmp_ge_u32 s{S_B}, {NB}")
    emit("s_cbranch_scc1 K2_end")
    stamp_begin(72); stamp()
    if Opt.STAMP: emit("s_memtime s[98:99]")
    emit("s_load_dwordx16 s[40:55], s[0:1], 0")
    emit("s_load_dwordx4 s[56:59], s[0:1], 64")
    emit("s_memrealtime s[60:61]")
    t0, t1 = R.t0, R.t1
    D = R.WB; S = R.WB + 8; GT = R.WB + 16; BA = R.WB + 24; RKS = R.WC; W = R.WV; TM = R.WV + 16
    emit(f"v_lshrrev_b32 v{t0}, 6, v0")
    emit(f"v_and_b32 v{t1}, 63, v0")
    emit(f"v_readfirstlane_b32 s{S_WAVE}, v{t0}")
    emit(f"v_lshlrev_b32 v{R.lane16}, 4, v{t1}")
    emit(f"v_lshlrev_b32 v{TM}, 4, v0")
    emit(f"v_cmp_gt_u32 s[{S_IT}:{S_IT+1}], 0x120, v0" if False else f"v_cmp_gt_u32 vcc, 0x120, v0")
    emit(f"v_mov_b32 v{R.w0}, 0x7ffffff0")
    emit(f"v_add_u32 v{TM+1}, 0x2000, v{TM}")
    emit(f"s_mul_i32 s{S_T0}, s{S_B}, 12800")
    emit(f"v_cndmask_b32 v{TM+1}, v{R.w0}, v{TM+1}, vcc")
    emit(f"s_mov_b64 s[{S_IT}:{S_IT+1}], vcc")
    if Opt.PRIO: emit("s_setprio 1")
    emit("s_waitcnt lgkmcnt(0)")
    srd(32, 46, E * 4)
    emit(f"buffer_load_dwordx4 {vr(D,4)}, v{TM}, s[32:35], s{S_T0} offen{nt}")
    emit(f"buffer_load_dwordx4 {vr(D+4,4)}, v{TM+1}, s[32:35], s{S_T0} offen{nt}")
    srd(36, 44, E * 4)
    emit(f"buffer_load_dwordx4 {vr(S,4)}, v{TM}, s[36:39], s{S_T0} offen{nt}")
    emit(f"buffer_load_dwordx4 {vr(S+4,4)}, v{TM+1}, s[36:39], s{S_T0} offen{nt}")
    srd(SX, 40, N * 128)
    srd(SE, 42, E * 32)
    srd(SO, 54, N * 128)
    srd(SW, 58, WS_SIZE)
    srd(40, 56, 256)
    i, h = R.w1n, R.w1d
    a, b = R.aoa, R.sa
    emit(f"v_and_b32 v{i}, 31, v{t1}")
    emit(f"v_lshrrev_b32 v{h}, 5, v{t1}")
    emit(f"v_lshlrev_b32 v{R.h16}, 4, v{h}")
    emit(f"v_mov_b32 v{R.zero}, 0")
    emit(f"s_or_b32 s{S_T0}, s{S_B}, s{S_WAVE}")
    emit(f"s_cmp_lg_u32 s{S_T0}, 0")
    emit("s_cbranch_scc1 F_notag")
    emit("s_and_b32 s61, s61, 0xff")
    emit("s_or_b32 s61, s61, 0x100")
    emit(f"v_mov_b32 v{R.w0+2}, s60")
    emit(f"v_mov_b32 v{R.w0+3}, s61")
    emit("s_mov_b64 exec, 1")
    emit(f"buffer_store_dwordx2 v[{R.w0+2}:{R.w0+3}], v{R.zero}, s[40:43], 0 offen sc1")
    emit("s_mov_b64 exec, -1")
    label("F_notag")
    RW = R.Z[0]
    emit(f"s_mul_i32 s{S_STG}, s{S_WAVE}, {BUFW}")
    emit(f"s_add_u32 s{S_STG}, s{S_STG}, {STG0}")
    emit(f"v_and_b32 v{t0}, 7, v{t1}")
    emit(f"v_lshlrev_b32 v{R.dmab}, 2, v{h}")
    emit(f"v_xor_b32 v{R.dmab}, v{R.dmab}, v{t0}")
    emit(f"v_lshlrev_b32 v{R.dmab}, 4, v{R.dmab}")
    emit(f"s_mul_i32 s{S_NODE0}, s{S_B}, 200")
    emit(f"s_mul_i32 s{S_T0}, s{S_WAVE}, {TN}")
    emit(f"s_add_u32 s{S_NODE0}, s{S_NODE0}, s{S_T0}")
    emit(f"s_lshl_b32 s{S_NODE0}, s{S_NODE0}, 7")
    emit(f"s_mov_b32 s{S_MSKE}, {0xffe0 if Opt.EZERO else 0x1fffffe0:#x}")
    if Opt.XZERO: emit("s_mov_b32 s71, 0xff80")
    emit(f"s_movk_i32 s{S_80}, 80")
    emit(f"s_mov_b32 s{S_C}, {NLOG2E:#x}")
    emit(f"s_mov_b32 s{S_MODE}, 0")
    emit(f"v_mov_b32 v{R.one}, 0x3f80")
    emit(f"v_and_b32 v{t0}, 19, v{i}")
    emit(f"v_and_b32 v{a}, 4, v{i}")
    emit(f"v_lshl_or_b32 v{t0}, v{a}, 1, v{t0}")
    emit(f"v_and_b32 v{a}, 8, v{i}")
    emit(f"v_lshrrev_b32 v{a}, 1, v{a}")
    emit(f"v_or_b32 v{t0}, v{t0}, v{a}")
    emit(f"v_lshlrev_b32 v{t0}, 1, v{t0}")
    emit(f"s_mul_i32 s{S_T0}, s{S_WAVE}, {SM_W}")
    emit(f"s_add_u32 s{S_T0}, s{S_T0}, {SM}")
    emit(f"v_add_u32 v{R.sc}, s{S_T0}, v{t0}")
    emit(f"v_mad_u32_u24 v{a}, v{i}, s{S_80}, v{R.h16}")
    emit(f"v_add_u32 v{R.sr}, s{S_T0}, v{a}")
    emit(f"v_add_u32 v{R.aoc}, {AOT}, v{R.h16}")
    emit(f"v_mov_b32 v{R.w0+2}, 0")
    emit(f"v_mov_b32 v{R.w0+3}, 0")
    emit(f"v_lshlrev_b32 v{b}, 3, v{t1}")
    emit(f"s_cmp_lg_u32 s{S_WAVE}, 7")
    emit("s_cbranch_scc1 F_noinit")
    emit(f"v_add_u32 v{a}, {P1_HIST}, v{b}")
    emit(f"ds_write_b64 v{a}, v[{R.w0+2}:{R.w0+3}]")
    emit(f"ds_write_b64 v{a}, v[{R.w0+2}:{R.w0+3}] offset:512")
    cnt_init(t1)
    emit(f"ds_write_b32 v{R.w0+1}, v{R.zero} offset:{CNT+32}")
    for k in range(5):
        emit(f"ds_write_b64 v{b}, v[{R.w0+2}:{R.w0+3}] offset:{AOT+512*k}")
    emit(f"v_mad_u32_u24 v{a}, v{i}, s{S_80}, v{t0}")
    emit(f"ds_write_b16 v{a}, v{R.one} offset:{AOT}")
    label("F_noinit")
    emit(f"v_add_u32 v{a}, s{S_T0}, v{b}")
    for k in range(5):
        emit(f"ds_write_b64 v{a}, v[{R.w0+2}:{R.w0+3}] offset:{512*k}")
    emit(f"v_and_b32 v{a}, 1, v{t1}")
    emit(f"v_xor_b32 v{a}, v{a}, v{h}")
    emit(f"v_lshlrev_b32 v{R.eh16}, 4, v{a}")
    emit(f"v_lshrrev_b32 v{a}, 4, v{i}")
    emit(f"v_xor_b32 v{a}, v{a}, v{h}")
    emit(f"v_lshlrev_b32 v{a}, 4, v{a}")
    emit(f"v_lshl_add_u32 v{a}, v{i}, 5, v{a}")
    emit(f"v_add_u32 v{R.rde}, s{S_STG}, v{a}")
    emit(f"v_add_u32 v{R.rde}, 0x1000, v{R.rde}")
    emit(f"v_and_b32 v{a}, 3, v{i}")
    emit(f"v_lshrrev_b32 v{b}, 4, v{i}")
    emit(f"v_lshl_add_u32 v{b}, v{b}, 2, v{a}")
    emit(f"v_xor_b32 v{b}, v{b}, v{h}")
    emit(f"v_lshlrev_b32 v{b}, 4, v{b}")
    emit(f"v_lshlrev_b32 v{a}, 10, v{a}")
    emit(f"v_lshrrev_b32 v{t0}, 2, v{i}")
    emit(f"v_lshl_add_u32 v{a}, v{t0}, 7, v{a}")
    emit(f"v_add_u32 v{a}, s{S_STG}, v{a}")
    emit(f"s_movk_i32 s{S_T2}, 96")
    for s in range(4):
        c = ["0", "32", "64", f"s{S_T2}"][s]
        emit(f"v_xad_u32 v{R.rd+s}, v{b}, {c}, v{a}")
    emit(f"s_mul_i32 s{S_T0}, s{S_WAVE}, {LST}")
    emit(f"s_add_u32 s{S_T0}, s{S_T0}, {L0}")
    emit(f"v_lshrrev_b32 v{a}, 3, v{t1}")
    emit(f"v_lshlrev_b32 v{a}, 4, v{a}")
    emit(f"v_add_u32 v{R.l0a}, s{S_T0}, v{a}")
    emit(f"v_lshlrev_b32 v{a}, 2, v{i}")
    emit(f"v_add_u32 v{a}, s{S_T0}, v{a}")
    emit(f"v_add_u32 v{R.l1a}, {L1-L0}, v{a}")
    emit(f"v_lshrrev_b32 v{a}, 1, v{t1}")
    emit(f"v_lshlrev_b32 v{a}, 2, v{a}")
    emit(f"v_add_u32 v{a}, s{S_T0}, v{a}")
    emit(f"v_add_u32 v{R.l1b}, {L1-L0}, v{a}")
    emit(f"s_lshr_b32 s{S_T0}, s2, 3")
    emit(f"s_lshl_b32 s{S_T0}, s{S_T0}, 13")
    emit(f"v_lshlrev_b32 v{R.pfo}, 7, v{t1}")
    emit(f"v_add_u32 v{R.pfo}, s{S_T0}, v{R.pfo}")
    emit(f"s_mov_b32 s{S_T3}, 83887")
    emit(f"s_mul_i32 s{S_T0}, s{S_B}, 102400")
    emit(f"v_lshlrev_b32 v{TM+2}, 7, v0")
    emit(f"v_add_u32 v{TM+2}, s{S_T0}, v{TM+2}")
    emit(f"v_add_u32 v{TM+3}, 0x10000, v{TM+2}")
    emit(f"v_mov_b32 v{TM+4}, 1")
    emit("s_waitcnt lgkmcnt(0)")
    emit("s_barrier")
    emit(f"v_lshrrev_b32 v{t0}, 3, v{t1}")
    emit(f"v_lshlrev_b32 v{t0}, 9, v{t0}")
    emit(f"s_mov_b32 m0, s{S_STG}")
    emit(f"s_mov_b32 s{S_T0}, s{S_NODE0}")
    for t in range(4):
        emit(f"v_xad_u32 v{R.AE+t}, v{R.dmab}, {16*t}, v{t0}")
        emit(f"buffer_load_dwordx4 v{R.AE+t}, s[{SX}:{SX+3}], s{S_T0} offen{' nt' if Opt.NT_XT else ''} lds")
        emit("s_add_u32 m0, m0, 0x400")
        emit(f"s_add_u32 s{S_T0}, s{S_T0}, 128")
    emit("s_waitcnt vmcnt(6)")
    stamp()
    for j in range(8): emit(f"v_mul_u32_u24 v{GT+j}, s{S_T3}, v{D+j}")
    for j in range(8): emit(f"v_lshrrev_b32 v{BA+j}, 24, v{GT+j}")
    for j in range(8): emit(f"v_lshlrev_b32 v{BA+j}, 2, v{BA+j}")
    for j in range(8): emit(f"v_add_u32 v{BA+j}, {P1_HIST}, v{BA+j}")
    for j in range(4): emit(f"ds_add_rtn_u32 v{RKS+j}, v{BA+j}, v{TM+4}")
    emit(f"s_mov_b64 exec, s[{S_IT}:{S_IT+1}]")
    for j in range(4, 8): emit(f"ds_add_rtn_u32 v{RKS+j}, v{BA+j}, v{TM+4}")
    emit("s_mov_b64 exec, -1")
    emit(f"v_lshlrev_b32 v{a}, 2, v{i}")
    emit(f"v_lshl_add_u32 v{a}, v{h}, 10, v{a}")
    def wsel(ks_reg):
        emit(f"s_cmp_lt_u32 s{ks_reg}, 13")
        emit("s_cselect_b32 s60, s50, s48")
        emit("s_cselect_b32 s61, s51, s49")
        emit(f"s_cselect_b32 s{S_T1}, 9, 13")
        emit(f"s_cmp_lt_u32 s{ks_reg}, 9")
        emit("s_cselect_b32 s60, s52, s60")
        emit("s_cselect_b32 s61, s53, s61")
        emit(f"s_cselect_b32 s{S_T1}, 0, s{S_T1}")
        emit(f"s_movk_i32 s{S_T2}, 0x2000")
        emit(f"s_cselect_b32 s62, 0x4800, s{S_T2}")
        emit("s_and_b32 s61, s61, 0xffff")
        emit("s_mov_b32 s63, 0x20000")
        emit(f"s_sub_u32 s{S_T1}, s{ks_reg}, s{S_T1}")
        emit(f"s_lshl_b32 s{S_T1}, s{S_T1}, 11")
    for rnd in range(2):
        emit(f"s_add_u32 s{S_T0}, s{S_WAVE}, {8*rnd}")
        wsel(S_T0)
        for q in range(8):
            emit(f"buffer_load_dword v{RW+8*rnd+q}, v{a}, s[60:63], s{S_T1} offen offset:{q*128}{' nt' if Opt.NT_W else ''}")
    emit(f"s_cmp_lg_u32 s{S_WAVE}, 0")
    emit("s_cbranch_scc1 F_now3")
    emit(f"s_mov_b32 s{S_T0}, 16")
    wsel(S_T0)
    for q in range(8):
        emit(f"buffer_load_dword v{RW+16+q}, v{a}, s[60:63], s{S_T1} offen offset:{q*128}{' nt' if Opt.NT_W else ''}")
    label("F_now3")
    emit(f"s_movk_i32 s{S_T2}, 96")
    for j in range(8): emit(f"v_lshrrev_b32 v{GT+j}, 21, v{GT+j}")
    for j in range(8): emit(f"v_mul_u32_u24 v{TM+8+j}, 25, v{GT+j}")
    for j in range(8): emit(f"v_sub_u32 v{D+j}, v{D+j}, v{TM+8+j}")
    for j in range(8): emit(f"v_lshl_or_b32 v{D+j}, v{GT+j}, 29, v{D+j}")
    for j in range(8):
        c = ["0", "32", "64", f"s{S_T2}"][j % 4]
        emit(f"v_add3_u32 v{W+2*j+1}, v{TM+2+j//4}, v{D+j}, {c}")
    emit("s_waitcnt lgkmcnt(0)")
    emit("s_barrier")
    TV = R.AO
    emit(f"s_cmp_lg_u32 s{S_WAVE}, 0")
    emit("s_cbranch_scc1 F_noscan")
    C0 = R.P
    emit(f"v_add_u32 v{C0+13}, {P1_HIST}, v{R.lane16}")
    emit(f"ds_read_b128 {vr(C0,4)}, v{C0+13}")
    emit("s_waitcnt lgkmcnt(0)")
    emit(f"v_add_u32 v{C0+4}, v{C0}, v{C0+1}")
    emit(f"v_add_u32 v{C0+5}, v{C0+4}, v{C0+2}")
    emit(f"v_add_u32 v{C0+6}, v{C0+5}, v{C0+3}")
    emit(f"v_mov_b32 v{C0+7}, v{C0+6}")
    sc = C0 + 7
    for sh in (1, 2, 4, 8):
        emit("s_nop 1")
        emit(f"v_add_u32_dpp v{sc}, v{sc}, v{sc} row_shr:{sh} row_mask:0xf bank_mask:0xf")
    emit("s_nop 1")
    emit(f"v_add_u32_dpp v{sc}, v{sc}, v{sc} row_bcast:15 row_mask:0xa bank_mask:0xf")
    emit("s_nop 1")
    emit(f"v_add_u32_dpp v{sc}, v{sc}, v{sc} row_bcast:31 row_mask:0xc bank_mask:0xf")
    emit(f"v_sub_u32 v{C0+8}, v{sc}, v{C0+6}")
    emit(f"v_add_u32 v{C0+9}, v{C0+8}, v{C0}")
    emit(f"v_add_u32 v{C0+10}, v{C0+8}, v{C0+4}")
    emit(f"v_add_u32 v{C0+11}, v{C0+8}, v{C0+5}")
    emit(f"ds_write_b128 v{C0+13}, {vr(C0+8,4)} offset:{P1_START-P1_HIST}")
    for j in range(4): emit(f"v_lshl_or_b32 v{TV+2*j}, v{C0+j}, 12, v{C0+8+j}")
    emit("s_waitcnt lgkmcnt(0)")
    label("F_noscan")
    emit("s_waitcnt vmcnt(20)")
    for j in range(8): emit(f"v_lshlrev_b32 v{W+2*j}, 7, v{S+j}")
    emit("s_barrier")
    for j in range(8): emit(f"ds_read_b32 v{GT+j}, v{BA+j} offset:{P1_START-P1_HIST}")
    emit(f"buffer_load_dwordx2 v[{R.AS}:{R.AS+1}], v{R.zero}, s[40:43], 0 offen sc1")
    nB = prefetch(Opt.PFB)
    emit("s_waitcnt lgkmcnt(0)")
    for j in range(8): emit(f"v_add_lshl_u32 v{GT+j}, v{GT+j}, v{RKS+j}, 3")
    if Opt.FAKEM:
        emit(f"s_mul_i32 s{S_T0}, s{S_B}, 102400")
        for j in range(Opt.FAKEM):
            emit(f"v_lshl_add_u32 v{W+2*j+1}, v{GT+j}, 2, v{D+j}")
            emit(f"v_add_u32 v{W+2*j+1}, s{S_T0}, v{W+2*j+1}")
    for j in range(8): emit(f"v_add_u32 v{GT+j}, {P1_SORT}, v{GT+j}")
    for j in range(4): emit(f"ds_write_b64 v{GT+j}, v[{W+2*j}:{W+2*j+1}]")
    emit(f"s_mov_b64 exec, s[{S_IT}:{S_IT+1}]")
    for j in range(4, 8): emit(f"ds_write_b64 v{GT+j}, v[{W+2*j}:{W+2*j+1}]")
    emit("s_mov_b64 exec, -1")
    emit(f"v_add_u32 v{TM+5}, {P1_SORT}, v{TM}")
    emit(f"v_cmp_gt_u32 vcc, 64, v0")
    emit(f"v_add_u32 v{TM+6}, 0x6000, v{TM}")
    emit(f"s_mul_i32 s{S_T3}, s{S_B}, {CHS*8}")
    emit(f"v_cndmask_b32 v{TM+6}, v{R.w0}, v{TM+6}, vcc")
    emit(f"v_add_u32 v{TM+7}, 0x2000, v{TM}")
    emit(f"v_add_u32 v{TM+8}, 0x4000, v{TM}")
    emit("s_waitcnt lgkmcnt(0)")
    emit("s_barrier")
    for k in range(4):
        emit(f"ds_read_b128 {vr(D+4*k,4)}, v{TM+5} offset:{8192*k}")
    offs = [TM, TM + 7, TM + 8, TM + 6]
    for k in range(4):
        emit(f"s_waitcnt lgkmcnt({3-k})")
        emit(f"buffer_store_dwordx4 {vr(D+4*k,4)}, v{offs[k]}, s[{SW}:{SW+3}], s{S_T3} offen sc1")
    stamp()
    emit(f"s_waitcnt vmcnt({4+nB})")
    S_N32 = 56; S_N8 = 57
    emit(f"s_mov_b32 s{S_T3}, 0")
    label("F_tagchk")
    emit(f"v_readfirstlane_b32 s{S_N8}, v{R.AS+1}")
    emit(f"v_readfirstlane_b32 s{S_N32}, v{R.AS}")
    emit("s_nop 3")
    emit(f"s_cmp_lg_u32 s{S_N8}, 0")
    emit("s_cbranch_scc1 F_tagok")
    emit(f"s_add_u32 s{S_T3}, s{S_T3}, 1")
    emit(f"s_cmp_ge_u32 s{S_T3}, {SPIN_MAX}")
    emit("s_cbranch_scc1 F_tagok")
    emit("s_sleep 2")
    emit(f"buffer_load_dwordx2 v[{R.AS}:{R.AS+1}], v{R.zero}, s[40:43], 0 offen sc1")
    emit("s_waitcnt vmcnt(0)")
    emit("s_branch F_tagchk")
    label("F_tagok")
    emit(f"s_and_b32 s{S_N8}, s{S_N8}, 0xff")
    emit("s_waitcnt vmcnt(0)")
    emit("s_barrier")
    stamp()
    emit(f"s_cmp_lg_u32 s{S_WAVE}, 0")
    emit("s_cbranch_scc1 F_notab")
    emit(f"s_lshl_b32 s{S_T0}, s{S_N8}, 24")
    for j in range(4):
        emit(f"v_or_b32 v{TV+2*j}, s{S_T0}, v{TV+2*j}")
        emit(f"v_mov_b32 v{TV+2*j+1}, s{S_N32}")
    emit(f"s_lshl_b32 s{S_T0}, s{S_B}, 11")
    emit(f"s_add_u32 s{S_T0}, s{S_T0}, {WS_TAB:#x}")
    emit(f"v_lshlrev_b32 v{t0}, 1, v{R.lane16}")
    emit(f"buffer_store_dwordx4 {vr(TV,4)}, v{t0}, s[{SW}:{SW+3}], s{S_T0} offen sc1")
    emit(f"buffer_store_dwordx4 {vr(TV+4,4)}, v{t0}, s[{SW}:{SW+3}], s{S_T0} offen offset:16 sc1")
    label("F_notab")
    UN = R.Z[1]; PK = R.AGG
    emit(f"s_mov_b32 s{S_T1}, 0x05040100")
    emit(f"s_mov_b32 s{S_T2}, 0x07060302")
    emit(f"s_lshl_b32 s{S_T0}, s{S_WAVE}, 11")
    emit(f"v_add_u32 v{t0}, s{S_T0}, v{R.lane16}")
    emit(f"v_add_u32 v{t0}, {WFL}, v{t0}")
    def pack(rnd, scaled):
        raw = RW + 8 * rnd; pk = PK + 8 * rnd
        if scaled:
            for q in range(8):
                emit(f"v_lshlrev_b32 v{UN+q}, 16, v{raw+q}")
                emit(f"v_and_b32 v{UN+8+q}, 0xffff0000, v{raw+q}")
            for q in range(16): emit(f"v_mul_f32 v{UN+q}, s{S_C}, v{UN+q}")
            for j in range(4):
                emit(f"v_cvt_pk_bf16_f32 v{pk+j}, v{UN+2*j}, v{UN+2*j+1}")
                emit(f"v_cvt_pk_bf16_f32 v{pk+4+j}, v{UN+8+2*j}, v{UN+8+2*j+1}")
        else:
            for j in range(4):
                emit(f"v_perm_b32 v{pk+j}, v{raw+2*j+1}, v{raw+2*j}, s{S_T1}")
                emit(f"v_perm_b32 v{pk+4+j}, v{raw+2*j+1}, v{raw+2*j}, s{S_T2}")
    def wr(rnd):
        pk = PK + 8 * rnd
        emit(f"ds_write_b128 v{t0}, {vr(pk,4)} offset:{rnd*16384}")
        emit(f"ds_write_b128 v{t0}, {vr(pk+4,4)} offset:{rnd*16384+1024}")
    if Opt.FOLD:
        emit(f"s_cmp_ge_u32 s{S_WAVE}, 4")
        emit("s_cbranch_scc1 F_p0s")
        pack(0, False)
        emit("s_branch F_p0d")
        label("F_p0s")
        pack(0, True)
        label("F_p0d")
    else:
        pack(0, False)
    wr(0)
    emit(f"s_cmp_eq_u32 s{S_WAVE}, 0")
    emit("s_cbranch_scc1 F_p1w0")
    pack(1, False)
    wr(1)
    emit("s_branch F_p1d")
    label("F_p1w0")
    pack(1, Opt.FOLD)
    wr(1)
    pack(2, False)
    wr(2)
    label("F_p1d")
    list_prefill()
    emit("s_waitcnt lgkmcnt(0)")
    emit("s_barrier")
    prefetch(Opt.PFC)
    emit(f"v_add_u32 v{R.t0}, {WFL}, v{R.lane16}")
    for sx in range(4):
        for t in range(2):
            emit(f"ds_read_b128 {vr([R.Z[1],R.H[1]][t]+4*sx,4)}, v{R.t0} offset:{(26+2*sx+t)*1024}")
    for sx in range(4):
        for t in range(2):
            emit(f"ds_read_b128 {vr([R.Z[0],R.H[0]][t]+4*sx,4)}, v{R.t0} offset:{(2*sx+t)*1024}")
    for f in range(8): emit(f"ds_read_b128 {vr(R.WB+4*f,4)}, v{R.t0} offset:{(8+f)*1024}")
    for f in range(2): emit(f"ds_read_b128 {vr(R.WC+4*f,4)}, v{R.t0} offset:{(16+f)*1024}")
    for f in range(8): emit(f"ds_read_b128 {vr(R.WV+4*f,4)}, v{R.t0} offset:{(18+f)*1024}")
    emit(f"s_lshl_b32 s{S_TABO}, s{S_B}, 3")
    emit(f"s_add_u32 s{S_TABO}, s{S_TABO}, {WS_TAB:#x}")
    for it in range(4): emit(f"s_add_u32 s{44+it}, s{S_TABO}, {it<<17:#x}")
    emit(f"v_lshrrev_b32 v{a}, 3, v0")
    emit(f"v_and_b32 v{b}, 7, v0")
    emit(f"v_lshlrev_b32 v{b}, 1, v{b}")
    emit(f"v_cmp_gt_u32 s[50:51], {NCH-3*64}, v{a}")
    emit(f"v_lshlrev_b32 v{R.w0+1}, 11, v{a}")
    emit(f"v_mul_u32_u24 v{a}, {CHS}, v{a}")
    emit(f"v_cndmask_b32 v{R.w0+2}, v{R.w0}, v{R.w0+1}, s[50:51]")
    emit(f"v_add_u32 v{a}, v{a}, v{b}")
    TB = R.AO
    def poll_loads():
        for it in range(4):
            emit(f"buffer_load_dwordx2 v[{TB+2*it}:{TB+2*it+1}], v{R.w0+1+(it==3)}, s[{SW}:{SW+3}], s{44+it} offen sc1")
    poll_loads()
    for s in range(4): emit(f"ds_read_b128 {AX(s)}, v{R.rd+s}")
    emit("s_waitcnt lgkmcnt(0)")
    pu_block()
    prefetch(Opt.PFD)
    stamp()
    emit(f"s_mov_b32 s{S_T3}, 0")
    label("F_poll")
    emit("s_waitcnt vmcnt(0)")
    for it in range(4):
        emit(f"v_xor_b32 v{R.AS+it}, s{S_N32}, v{TB+2*it+1}")
        emit(f"v_lshrrev_b32 v{R.AS+4+it}, 24, v{TB+2*it}")
        emit(f"v_xor_b32 v{R.AS+4+it}, s{S_N8}, v{R.AS+4+it}")
    emit(f"v_or_b32 v{R.AS+3}, v{R.AS+3}, v{R.AS+7}")
    emit(f"v_cndmask_b32 v{R.AS+3}, 0, v{R.AS+3}, s[50:51]")
    emit(f"v_or3_b32 v{R.AS}, v{R.AS}, v{R.AS+1}, v{R.AS+2}")
    emit(f"v_or3_b32 v{R.AS+4}, v{R.AS+4}, v{R.AS+5}, v{R.AS+6}")
    emit(f"v_or3_b32 v{R.AS}, v{R.AS}, v{R.AS+3}, v{R.AS+4}")
    emit(f"v_cmp_ne_u32 vcc, 0, v{R.AS}")
    emit("s_cbranch_vccz F_polled")
    emit(f"s_add_u32 s{S_T3}, s{S_T3}, 1")
    emit(f"s_cmp_ge_u32 s{S_T3}, {SPIN_MAX}")
    emit("s_cbranch_scc1 F_polled")
    if Opt.PSLEEP: emit(f"s_sleep {Opt.PSLEEP}")
    poll_loads()
    emit("s_branch F_poll")
    label("F_polled")
    stamp()
    BASE = R.AS; REM = R.AS + 4
    for it in range(4):
        emit(f"v_bfe_u32 v{REM+it}, v{TB+2*it}, 12, 12")
        emit(f"v_sub_u32 v{REM+it}, v{REM+it}, v{b}")
        emit(f"v_and_b32 v{BASE+it}, 0xfff, v{TB+2*it}")
        emit(f"v_add_u32 v{BASE+it}, {it*64*CHS}, v{BASE+it}")
        emit(f"v_add_lshl_u32 v{BASE+it}, v{BASE+it}, v{a}, 3")
    REC = R.Z[0]; RK = R.Z[1]; TA = R.H[1]
    def msk(k): return f"s[{S_MASK+2*k}:{S_MASK+2*k+1}]"
    def rec_loads():
        for l in range(8):
            it, p = l // 2, l % 2
            emit(f"v_cmp_lt_i32 {msk(2*l)}, {16*p}, v{REM+it}")
        for l in range(8):
            it, p = l // 2, l % 2
            tmp = R.w0 + 1 + (l % 3)
            emit(f"v_cndmask_b32 v{tmp}, v{R.w0}, v{BASE+it}, {msk(2*l)}")
            emit(f"buffer_load_dwordx4 {vr(REC+4*l,4)}, v{tmp}, s[{SW}:{SW+3}], 0 offen offset:{128*p} sc1")
        for l in range(8):
            it, p = l // 2, l % 2
            emit(f"v_cmp_lt_i32 {msk(2*l+1)}, {16*p+1}, v{REM+it}")
    emit(f"v_mov_b32 v{R.t0}, 4")
    emit(f"s_mov_b32 s{S_T3}, {L1-4}")
    label("K2_collect")
    rec_loads()
    nE = prefetch(Opt.PFE)
    for l in range(8):
        emit(f"s_waitcnt vmcnt({nE+7-l})")
        for r in range(2):
            k = 2 * l + r
            emit(f"v_lshrrev_b32 v{TA+k}, 27, v{REC+4*l+2*r+1}")
        for r in range(2):
            k = 2 * l + r
            emit(f"s_mov_b64 exec, {msk(k)}")
            emit(f"ds_add_rtn_u32 v{RK+k}, v{TA+k}, v{R.t0} offset:{CNT}")
        emit("s_mov_b64 exec, -1")
    for it in range(4):
        emit(f"v_subrev_u32 v{REM+it}, 32, v{REM+it}")
        emit(f"v_add_u32 v{BASE+it}, 0x100, v{BASE+it}")
    emit(f"v_max3_i32 v{R.t1}, v{REM}, v{REM+1}, v{REM+2}")
    emit(f"v_max_i32 v{R.t1}, v{R.t1}, v{REM+3}")
    emit(f"v_cmp_lt_i32 vcc, 0, v{R.t1}")
    emit("s_waitcnt lgkmcnt(0)")
    for k in range(16): emit(f"v_min_u32 v{RK+k}, s{S_T3}, v{RK+k}")
    for k in range(16):
        emit(f"s_mov_b64 exec, {msk(k)}")
        emit(f"ds_write2st64_b32 v{RK+k}, v{REC+2*k}, v{REC+2*k+1} offset0:0 offset1:{L1OFF}")
    emit("s_mov_b64 exec, -1")
    emit("s_waitcnt lgkmcnt(0)")
    emit("s_cbranch_vccnz K2_collect")
    emit("s_barrier")
    stamp()
    if Opt.STAG:
        emit(f"s_cmp_lt_u32 s{S_WAVE}, 4")
        emit("s_cbranch_scc1 K2_counts")
        emit(f"s_lshl_b32 s{S_T0}, s{S_WAVE}, 2")
        emit(f"v_mov_b32 v{R.t0}, s{S_T0}")
        label("K2_stag")
        emit(f"ds_read_b32 v{R.t1}, v{R.t0} offset:{CNT+16}")
        emit("s_waitcnt lgkmcnt(0)")
        emit(f"v_readfirstlane_b32 s{S_T0}, v{R.t1}")
        emit("s_sleep 2")
        emit(f"s_cmp_eq_u32 s{S_T0}, 0")
        emit("s_cbranch_scc1 K2_stag")
    label("K2_counts")
    emit(f"ds_read_b128 {AO(0)}, v{R.l0a}")
    emit(f"ds_read_b32 v{R.AS}, v{R.l1b}")
    emit(f"ds_read_b128 {AO(1)}, v{R.l0a} offset:128")
    emit(f"ds_read_b32 v{R.AS+1}, v{R.l1b} offset:128")
    emit(f"v_and_b32 v{R.t0}, 7, v0")
    emit(f"v_lshlrev_b32 v{R.t1}, 2, v{R.t0}")
    emit(f"ds_read_b32 v{R.t1}, v{R.t1} offset:{CNT}")
    emit(f"ds_read_b128 {vr(R.w0,4)}, v{R.l0a} offset:256")
    emit(f"ds_read_b32 v{R.w1d}, v{R.l1b} offset:256")
    emit(f"ds_read_b32 v{R.w1n}, v{R.l1a}")
    emit(f"v_mul_u32_u24 v{R.t0}, {LST}, v{R.t0}")
    emit(f"v_add_u32 v{R.t0}, {L0}, v{R.t0}")
    emit("s_waitcnt lgkmcnt(6)")
    for x in dma_issue(0, R.AO, R.AS): emit(x)
    emit("s_waitcnt lgkmcnt(0)")
    for x in dma_issue(BUF, R.AO + 4, R.AS + 1): emit(x)
    emit(f"v_sub_u32 v{R.t1}, v{R.t1}, v{R.t0}")
    emit(f"v_lshrrev_b32 v{R.t1}, 2, v{R.t1}")
    if Opt.STAG == 2: emit("s_waitcnt vmcnt(5)")
    if Opt.STAG == 3: emit("s_waitcnt vmcnt(0)")
    if Opt.STAG:
        emit(f"s_lshl_b32 s{S_T0}, s{S_WAVE}, 2")
        emit(f"v_mov_b32 v{R.t0}, s{S_T0}")
        emit(f"ds_write_b32 v{R.t0}, v{R.one} offset:{CNT+32}")
    emit(f"v_cmp_lt_u32 vcc, {CAP}, v{R.t1}")
    emit(f"v_cmp_ne_u32 s[{S_MASK}:{S_MASK+1}], 0, v{R.t1}")
    emit(f"v_readlane_b32 s{S_N}, v{R.t1}, s{S_WAVE}")
    for x in nl_addr(): emit(x)
    emit(f"ds_read_b128 {AO(0)}, v{R.aoa}")
    emit(f"ds_read_b128 {AO(1)}, v{R.aoa} offset:32")
    emit(f"s_or_b32 s{S_TOT}, s{S_MASK}, s{S_MASK+1}")
    emit("s_cbranch_vccnz K2_slow_init")
    emit(f"s_add_u32 s{S_NG}, s{S_N}, 31")
    emit(f"s_lshr_b32 s{S_NG}, s{S_NG}, 5")
    emit(f"s_cmp_eq_u32 s{S_NG}, 0")
    emit("s_cbranch_scc1 K2_main_done")
    for r in range(8): emit(f"v_mov_b32 v{R.AS+r}, 0")
    for r in (0, 1, 2, 3, 8, 9, 10, 11): emit(f"v_mov_b32 v{R.Z[1]+r}, 0")
    emit(f"s_mov_b32 s{S_G}, 0")
    if Opt.FIXNG: emit(f"s_movk_i32 s{S_NG}, {Opt.FIXNG}")
    if Opt.PRIO:
        emit(f"s_sub_u32 s{S_GP}, s{S_NG}, {Opt.PRIO}")
        emit(f"s_cmp_ge_u32 s{S_WAVE}, 4")
        emit(f"s_cselect_b32 s{S_GP}, -1, s{S_GP}")
    emit("s_waitcnt vmcnt(5)")
    emit(f"ds_read_b128 {AE}, v{R.rde}")
    for s in range(4): emit(f"ds_read_b128 {AX(s)}, v{R.rd+s}")
    emit("s_waitcnt lgkmcnt(0)")
    for x in dma_issue(0, R.w0, R.w1d): emit(x)
    for x in zh_mfmas(0): emit(x)
    emit("s_nop 7")
    emit("s_nop 3")
    stamp(); cstamp()
    label("K2_loop")
    group_body(0, 0)
    gtrace()
    emit(f"s_add_u32 s{S_G}, s{S_G}, 1")
    prio_check(0)
    emit(f"s_cmp_ge_u32 s{S_G}, s{S_NG}")
    emit("s_cbranch_scc1 K2_loop_exit")
    group_body(1, 128)
    gtrace()
    adv = 0 if Opt.FIXNG else 0x100
    emit(f"v_add_u32 v{R.l0a}, {adv:#x}, v{R.l0a}")
    emit(f"v_add_u32 v{R.l1a}, {adv:#x}, v{R.l1a}")
    emit(f"v_add_u32 v{R.l1b}, {adv:#x}, v{R.l1b}")
    emit(f"s_add_u32 s{S_G}, s{S_G}, 1")
    prio_check(1)
    emit(f"s_cmp_lt_u32 s{S_G}, s{S_NG}")
    emit("s_cbranch_scc1 K2_loop")
    label("K2_loop_exit")
    emit("s_nop 1")
    for x in agg_mfmas(1): emit(x)
    emit(f"s_lshr_b32 s{S_T0}, s{S_G}, 1")
    emit(f"s_lshl_b32 s{S_T0}, s{S_T0}, 8")
    emit(f"v_subrev_u32 v{R.l0a}, s{S_T0}, v{R.l0a}")
    emit(f"v_subrev_u32 v{R.l1a}, s{S_T0}, v{R.l1a}")
    emit(f"v_subrev_u32 v{R.l1b}, s{S_T0}, v{R.l1b}")
    label("K2_main_done")
    emit(f"s_cmp_lg_u32 s{S_MODE}, 0")
    emit("s_cbranch_scc1 K2_slow_next")
    label("K2_epi")
    stamp(); cstamp(); vstamp(S_NG)
    emit("s_nop 7")
    emit("s_nop 7")
    emit(f"v_and_b32 v{R.t0}, 31, v0")
    emit(f"v_lshlrev_b32 v{R.t0}, 2, v{R.t0}")
    emit(f"v_lshl_add_u32 v{R.t0}, v{R.h16}, 5, v{R.t0}")
    z = R.Z[0]
    regs = [(t, r) for r in range(13) for t in range(2)]
    def tmp(t, r): return z + 2 * r + t
    for (t, r) in regs: emit(f"v_mul_f32 v{tmp(t,r)}, s{S_C}, v{R.AGG+16*t+r}")
    for (t, r) in regs: emit(f"v_exp_f32 v{tmp(t,r)}, v{tmp(t,r)}")
    for (t, r) in regs: emit(f"v_add_f32 v{tmp(t,r)}, 1.0, v{tmp(t,r)}")
    for (t, r) in regs: emit(f"v_rcp_f32 v{tmp(t,r)}, v{tmp(t,r)}")
    for (t, r) in regs: emit(f"v_mul_f32 v{tmp(t,r)}, v{tmp(t,r)}, v{R.AGG+16*t+r}")
    for r in range(13):
        emit(f"v_cvt_pk_bf16_f32 v{R.Z[1]+r}, v{tmp(0,r)}, v{tmp(1,r)}")
    for r in range(12):
        row = (r // 4) * 8 + r % 4
        emit(f"buffer_store_dword v{R.Z[1]+r}, v{R.t0}, s[{SO}:{SO+3}], s{S_NODE0} offen offset:{row*128}{OP}")
    emit("s_mov_b64 exec, 0xffffffff")
    emit(f"buffer_store_dword v{R.Z[1]+12}, v{R.t0}, s[{SO}:{SO+3}], s{S_NODE0} offen offset:{24*128}{OP}")
    if Opt.STAMP:
        emit("s_waitcnt vmcnt(0)")
        stamp()
        emit(f"s_lshl_b32 s{S_T0}, s2, 3")
        emit(f"s_add_u32 s{S_T0}, s{S_T0}, s{S_WAVE}")
        assert _st["n"] == 13, _st["n"]; _st["n"] = 14
        emit("s_mov_b64 exec, 0xffffffff")
        emit(f"s_lshl_b32 s{S_T1}, s{S_T0}, 7")
        emit(f"s_add_u32 s{S_T1}, s{S_T1}, {STB + (2 << 20):#x}")
        emit(f"v_lshrrev_b32 v255, 2, v{R.lane16}")
        emit(f"buffer_store_dword v254, v255, s[{SW}:{SW+3}], s{S_T1} offen")
        stamp_flush(0, SW, S_T0, R.w0, S_T1)
    label("K2_end")
    emit("s_endpgm")
    label("K2_slow_init")
    emit(f"s_mov_b32 s{S_MODE}, 1")
    emit(f"s_mov_b32 s{S_IT}, 0")
    emit(f"s_mov_b32 s{S_P}, 0")
    emit("s_branch K2_slow_batch")
    label("K2_slow_next")
    emit(f"s_add_u32 s{S_P}, s{S_P}, 1")
    emit(f"s_cmp_lg_u32 s{S_TOT}, 0")
    emit("s_cbranch_scc1 K2_slow_batch")
    emit(f"s_mov_b32 s{S_P}, 0")
    emit(f"s_add_u32 s{S_IT}, s{S_IT}, 1")
    emit(f"s_cmp_ge_u32 s{S_IT}, 4")
    emit("s_cbranch_scc1 K2_epi")
    label("K2_slow_batch")
    emit("s_waitcnt vmcnt(0) lgkmcnt(0)")
    emit("s_barrier")
    emit(f"s_cmp_lg_u32 s{S_WAVE}, 0")
    emit("s_cbranch_scc1 K2_slow_nocnt")
    emit(f"v_and_b32 v{R.w1d}, 63, v0")
    cnt_init(R.w1d)
    label("K2_slow_nocnt")
    list_prefill()
    emit(f"v_lshrrev_b32 v{a}, 3, v0")
    emit(f"v_and_b32 v{b}, 7, v0")
    emit(f"v_lshlrev_b32 v{R.t0}, 11, v{a}")
    emit(f"s_lshl_b32 s{S_T0}, s{S_IT}, 17")
    emit(f"s_add_u32 s{S_T0}, s{S_T0}, s{S_TABO}")
    emit(f"buffer_load_dword v{R.t1}, v{R.t0}, s[{SW}:{SW+3}], s{S_T0} offen sc1")
    emit(f"s_lshl_b32 s{S_T0}, s{S_IT}, 6")
    emit(f"v_add_u32 v{a}, s{S_T0}, v{a}")
    emit(f"s_lshl_b32 s{S_T1}, s{S_P}, 3")
    emit(f"v_add_u32 v{b}, s{S_T1}, v{b}")
    emit(f"v_cmp_gt_u32 vcc, {NCH}, v{a}")
    emit(f"v_mul_u32_u24 v{a}, {CHS}, v{a}")
    emit(f"v_add_u32 v{a}, v{a}, v{b}")
    emit("s_waitcnt vmcnt(0) lgkmcnt(0)")
    emit("s_barrier")
    emit(f"v_cndmask_b32 v{R.t1}, 0, v{R.t1}, vcc")
    emit(f"v_bfe_u32 v{R.t0}, v{R.t1}, 12, 12")
    emit(f"v_and_b32 v{R.t1}, 0xfff, v{R.t1}")
    emit(f"v_add_lshl_u32 v{a}, v{a}, v{R.t1}, 3")
    emit(f"v_cmp_lt_u32 vcc, v{b}, v{R.t0}")
    emit(f"v_mov_b32 v{R.w0}, 0x7ffffff0")
    emit("s_nop 1")
    emit(f"v_cndmask_b32 v{a}, v{R.w0}, v{a}, vcc")
    emit(f"buffer_load_dwordx2 v[{R.w0+2}:{R.w0+3}], v{a}, s[{SW}:{SW+3}], 0 offen sc1")
    emit(f"v_mov_b32 v{R.t0}, 4")
    emit("s_waitcnt vmcnt(0)")
    emit(f"v_lshrrev_b32 v{a}, 27, v{R.w0+3}")
    emit("s_mov_b64 exec, vcc")
    emit(f"ds_add_rtn_u32 v{b}, v{a}, v{R.t0} offset:{CNT}")
    emit("s_waitcnt lgkmcnt(0)")
    emit(f"ds_write2st64_b32 v{b}, v{R.w0+2}, v{R.w0+3} offset0:0 offset1:{L1OFF}")
    emit("s_mov_b64 exec, -1")
    emit("s_waitcnt lgkmcnt(0)")
    emit("s_barrier")
    emit("s_branch K2_counts")

def kd(name, vgpr, sgpr):
    acc = (vgpr + 3) // 4 * 4
    out.append(".p2align 6")
    out.append(f".amdhsa_kernel {name}")
    out.append(f"  .amdhsa_next_free_vgpr {vgpr}")
    out.append(f"  .amdhsa_next_free_sgpr {sgpr}")
    out.append(f"  .amdhsa_accum_offset {acc}")
    out.append("  .amdhsa_group_segment_fixed_size 0")
    out.append("  .amdhsa_kernarg_size 80")
    out.append("  .amdhsa_user_sgpr_count 2")
    out.append("  .amdhsa_user_sgpr_kernarg_segment_ptr 1")
    out.append("  .amdhsa_system_sgpr_workgroup_id_x 1")
    out.append(".end_amdhsa_kernel")

hdr = open("standalone__edge_featured_mpnn_egc__graph.s.ref").read().split("\n")
for l in hdr:
    if l.startswith("; Override"): break
    out.append(l)
out.append(f"; @launch {'kernel='+KNAME+' ' if Opt.DBG else ''}grid=(256,1,1) block=(512,1,1) lds={K2_LDS}")
out.append('.amdgcn_target "amdgcn-amd-amdhsa--gfx950"')
out.append(".text")
gen_fused()
out.append('.section .rodata,"a"')
kd(KNAME, 256 if Opt.STAMP else K2_VGPR, 102 if Opt.STAMP else K2_SGPR)
print("\n".join(out))
```

```python
import sys

class Opt:
    FOLD = True
    NT_E = True
    NT_IDX = True
    NODMA = False
    NOLDS = False
    XZERO = False
    EZERO = False
    FIXNG = 0
    PRIO = 3
    PFB = 0
    PFC = 0
    PFD = 0x00
    PFE = 0x00
    OUTPOL = 0
    EPOL = 0
    XPOL = 0
    STAG = 0
    PSLEEP = 0
    NT_W = 0
    SKIPS = 0
    FAKEM = 0
    NT_XT = True
    NT_X = False
    STAMP = False
    DBG = 0

for a in sys.argv[1:]:
    if '=' in a:
        k, v = a.split('=')
        setattr(Opt, k, type(getattr(Opt, k))(int(v)))

N = 50000; E = 800000
NB = 250; CH = 3200; NCH = 250; TN = 25
CHS = 3216
WS_REC = 0
WS_TAB = 0x700000
WS_WF = 0x780000
WS_SIZE = 0x10000000
NLOG2E = 0xbfb8aa3b

out = []
def emit(s): out.append("    " + s)
def label(s): out.append(s + ":")
def comment(s): out.append("    ; " + s)

def srd(base, ptr, size):
    emit(f"s_mov_b32 s{base}, s{ptr}")
    emit(f"s_and_b32 s{base+1}, s{ptr+1}, 0xffff")
    emit(f"s_mov_b32 s{base+2}, {size:#x}")
    emit(f"s_mov_b32 s{base+3}, 0x20000")

STB = 0xF000000
_st = {"base": 72, "n": 0}
def stamp_begin(base):
    _st["base"] = base; _st["n"] = 0
def stamp(kind="s_memrealtime"):
    if not Opt.STAMP: return
    b = _st["base"] + 2 * _st["n"]; _st["n"] += 1
    emit(f"{kind} s[{b}:{b+1}]")
def cstamp(): stamp("s_memtime")
def vstamp(sreg):
    if not Opt.STAMP: return
    b = _st["base"] + 2 * _st["n"]; _st["n"] += 1
    emit(f"s_mov_b32 s{b}, s{sreg}")
    emit(f"s_mov_b32 s{b+1}, 0")
def dbg_flush(kidx, sel, va, sa):
    emit(f"s_load_dwordx2 s[{sa+4}:{sa+5}], s[0:1], 64")
    emit("s_waitcnt lgkmcnt(0)")
    if kidx == 0:
        emit(f"s_add_u32 s{sa+4}, s{sa+4}, 512")
        emit(f"s_addc_u32 s{sa+5}, s{sa+5}, 0")
    srd(sa, sa+4, 256)
    emit("s_mov_b64 exec, 1")
    emit(f"v_mov_b32 v{va+2}, 0")
    for (k, slot, kind) in sel:
        b = _st["base"] + 2 * k
        emit(f"v_mov_b32 v{va}, s{b}")
        if kind == 'min': emit(f"v_not_b32 v{va}, v{va}")
        emit(f"buffer_atomic_umax v{va}, v{va+2}, s[{sa}:{sa+3}], 0 offen offset:{4*slot}")
        emit("s_nop 1")

def stamp_flush(kidx, srdn, swave_global, va, tmp_s):
    if not Opt.STAMP: return
    if Opt.DBG:
        emit("s_waitcnt lgkmcnt(0)")
        if Opt.DBG == 2:
            emit(f"s_cmp_lg_u32 s{swave_global}, 804")
            emit("s_cbranch_scc1 K2_end")
            dbg_flush(1, [(7,4,'max'),(9,5,'max'),(8,6,'max'),(10,7,'max'),(0,8,'max'),(13,9,'max')], va, 32)
            return
        emit(f"s_and_b32 s{tmp_s}, s{swave_global}, 0x1c3")
        emit(f"s_cmp_lg_u32 s{tmp_s}, 0")
        emit("s_cbranch_scc1 K2_end")
        dbg_flush(1, [(0,4,'min'),(0,5,'max'),(1,6,'max'),(3,7,'max'),(5,8,'max'),(6,9,'max'),(7,10,'min'),(9,11,'min'),(9,12,'max'),(12,13,'max')], va, 32)
        return
    emit("s_waitcnt lgkmcnt(0)")
    emit("s_mov_b64 exec, 1")
    emit(f"s_lshl_b32 s{tmp_s}, s{swave_global}, 7")
    emit(f"s_add_u32 s{tmp_s}, s{tmp_s}, {STB + (kidx << 20):#x}")
    emit(f"v_mov_b32 v{va+2}, 0")
    for k in range(_st["n"]):
        b = _st["base"] + 2 * k
        emit(f"v_mov_b32 v{va}, s{b}")
        emit(f"v_mov_b32 v{va+1}, s{b+1}")
        emit(f"buffer_store_dwordx2 v[{va}:{va+1}], v{va+2}, s[{srdn}:{srdn+3}], s{tmp_s} offen offset:{8*k}")
        emit("s_nop 1")

def vr(b, n): return f"v[{b}:{b+n-1}]"

CNT = 0
AOT = 64
SM = AOT + 2560; SM_W = 2560
STG0 = SM + 8 * SM_W
assert STG0 % 16 == 0
BUFW = 5120
BUF = 8 * BUFW
WFL = STG0 + BUF
L0 = STG0 + 2 * BUF
CAP = 576; CAPT = 704
LST = CAPT * 4
L1 = L0 + 8 * LST
K2_LDS = L1 + 8 * LST
L1OFF = (L1 - L0) // 256
assert (L1 - L0) % 256 == 0 and K2_LDS <= 163840 and L0 % 16 == 0

class R: pass
_next = [1]
def alloc(n, align=1):
    b = _next[0]
    b = (b + align - 1) // align * align
    _next[0] = b + n
    return b
R.lane16 = alloc(1); R.dmab = alloc(1); R.rde = alloc(1)
R.rd = alloc(4)
R.l0a = alloc(1); R.l1a = alloc(1); R.h16 = alloc(1); R.aoc = alloc(1); R.sc = alloc(1); R.sr = alloc(1)
R.one = alloc(1); R.zero = alloc(1); R.eh16 = alloc(1); R.l1b = alloc(1)
R.w1d = alloc(1); R.w1n = alloc(1); R.aoa = alloc(1); R.sa = alloc(1); R.t0 = alloc(1); R.t1 = alloc(1)
R.pf = alloc(1); R.pfo = alloc(1)
R.w0 = alloc(4, 4)
R.WB = alloc(32, 4); R.WC = alloc(8, 4); R.WV = alloc(32, 4); R.P = alloc(16, 4)
R.AGG = alloc(32, 4)
R.Z = [alloc(16, 4), 0]; R.H = [alloc(16, 4), 0]
R.Z[1] = alloc(16, 4); R.H[1] = alloc(16, 4)
R.AX = alloc(16, 4); R.AE = alloc(4, 4); R.AO = alloc(8, 4); R.AS = alloc(8, 4)
K2_VGPR = _next[0]
assert K2_VGPR <= 256, K2_VGPR

SX = 8; SE = 12; SO = 16; SW = 20
S_B = 3; S_WAVE = 4; S_NG = 5; S_G = 6; S_MODE = 7
S_STG = 24; S_MSKE = 25; S_80 = 26; S_N = 27; S_IT = 28; S_P = 29; S_TOT = 30; S_T0 = 31
S_MASK = 32
S_T1 = 64; S_T2 = 65; S_C = 66; S_TABO = 67; S_NODE0 = 68; S_T3 = 69; S_GP = 70; S_TILE = 71
K2_SGPR = 72

def WB(s, t): return vr(R.WB + (s * 2 + t) * 4, 4)
def WV(s, t): return vr(R.WV + (s * 2 + t) * 4, 4)
def WC(t): return vr(R.WC + t * 4, 4)
def PP(s, t): return vr(R.P + (s * 2 + t) * 4, 4)
def AX(s): return vr(R.AX + s * 4, 4)
def AO(s): return vr(R.AO + s * 4, 4)
def AS(s): return vr(R.AS + s * 4, 4)
AE = vr(R.AE, 4)
def AGG(t): return vr(R.AGG + t * 16, 16)
def Zr(t): return vr(R.Z[t], 16)
def Hr(t): return vr(R.H[t], 16)
def mfma(d, a, b, c): return f"v_mfma_f32_32x32x16_bf16 {d}, {a}, {b}, {c}"

def zh_mfmas(t):
    z, h = Zr(t), Hr(t)
    m = [mfma(z, AO(0), PP(0, t), "0"), mfma(z, AO(1), PP(1, t), z), mfma(z, AE, WC(t), z)]
    for s in range(4):
        m.append(mfma(z, AX(s), WB(s, t), z))
        m.append(mfma(h, AX(s), WV(s, t), "0" if s == 0 else h))
    return m

def agg_mfmas(t):
    return [mfma(AGG(t), AS(0), vr(R.Z[t], 4), AGG(t)), mfma(AGG(t), AS(1), vr(R.Z[t] + 8, 4), AGG(t))]

def sig_stream(t):
    z, h = R.Z[t], R.H[t]
    st = []
    for m in range(4):
        rs = [4 * m + i for i in range(4)]
        if not Opt.FOLD:
            for r in rs: st.append((f"v_mul_f32 v{z+r}, s{S_C}, v{z+r}", 4))
        for r in rs: st.append((f"v_exp_f32 v{z+r}, v{z+r}", 8))
        for r in rs: st.append((f"v_add_f32 v{z+r}, 1.0, v{z+r}", 4))
        for r in rs: st.append((f"v_rcp_f32 v{z+r}, v{z+r}", 8))
        for r in rs: st.append((f"v_mul_f32 v{z+r}, v{z+r}, v{h+r}", 4))
        d = 8 * (m // 2) + 2 * (m % 2)
        st.append((f"v_cvt_pk_bf16_f32 v{z+d}, v{z+4*m}, v{z+4*m+1}", 4))
        st.append((f"v_cvt_pk_bf16_f32 v{z+d+1}, v{z+4*m+2}, v{z+4*m+3}", 4))
    return st

def dma_issue(bufoff, w0, w1):
    nte = [" nt", " sc1 nt", " sc0 sc1 nt", " sc0 nt"][Opt.EPOL] if Opt.NT_E else ""
    seq = [f"s_add_u32 m0, s{S_STG}, {bufoff}"]
    for t in range(4):
        if Opt.XZERO: seq.append(f"v_and_or_b32 v{w0+t}, v{w0+t}, s71, v{R.dmab}")
        else: seq.append(f"v_xad_u32 v{w0+t}, v{R.dmab}, {16*t}, v{w0+t}")
        seq.append(f"buffer_load_dwordx4 v{w0+t}, s[{SX}:{SX+3}], 0 offen{['', ' sc1', ' sc0', ' sc0 sc1'][Opt.XPOL]} lds")
        seq.append("s_add_u32 m0, m0, 0x400")
    seq.append(f"v_and_or_b32 v{w1}, v{w1}, s{S_MSKE}, v{R.eh16}")
    seq.append(f"buffer_load_dwordx4 v{w1}, s[{SE}:{SE+3}], 0 offen{nte} lds")
    return seq

def nl_addr():
    return [f"v_and_b32 v{R.w1n}, 31, v{R.w1n}",
            f"v_mad_u32_u24 v{R.aoa}, v{R.w1n}, s{S_80}, v{R.aoc}",
            f"v_mad_u32_u24 v{R.sa}, v{R.w1n}, s{S_80}, v{R.sc}"]

def interleave(valu, mfmas, after, pre=None):
    pre = pre or {}
    def keep(x):
        if Opt.NODMA and (x.startswith("buffer_load") or "vmcnt" in x): return False
        if Opt.NOLDS and (x.startswith("ds_") or "lgkmcnt" in x): return False
        return True
    total = sum(c for _, c in valu)
    n = len(mfmas)
    tail = 48 if not Opt.FOLD else 56
    spacing = (total - tail) / (n - 1)
    k = 0; cum = 0
    for ins, c in valu:
        while k < n and cum >= k * spacing - 1e-9:
            for x in pre.get(k, []):
                if keep(x): emit(x)
            if not (Opt.SKIPS and k in ((0, 2, 3) if Opt.SKIPS == 1 else (0, 1, 2, 3))): emit(mfmas[k])
            for x in after.get(k, []):
                if keep(x): emit(x)
            k += 1
        emit(ins); cum += c
    assert k == n, (k, n)

def group_body(par, lo):
    nb = BUF * (1 - par)
    m = agg_mfmas(1) + zh_mfmas(1)
    after = {
        0: [f"ds_read_b32 v{R.w1n}, v{R.l1a} offset:{lo+128}"],
        1: [f"ds_write_b16 v{R.sa}, v{R.one}",
            f"ds_read_b128 {AS(0)}, v{R.sr}",
            f"ds_read_b128 {AS(1)}, v{R.sr} offset:32",
            f"ds_write_b16 v{R.sa}, v{R.zero}"],
        3: ["s_waitcnt lgkmcnt(4)"] + nl_addr() +
           [f"ds_read_b128 {AO(0)}, v{R.aoa}", f"ds_read_b128 {AO(1)}, v{R.aoa} offset:32"],
        4: ["s_waitcnt vmcnt(5)", f"ds_read_b128 {AE}, v{R.rde} offset:{nb}"],
        6: [f"ds_read_b128 {AX(0)}, v{R.rd} offset:{nb}"],
        8: [f"ds_read_b128 {AX(1)}, v{R.rd+1} offset:{nb}"],
        10: [f"ds_read_b128 {AX(2)}, v{R.rd+2} offset:{nb}",
             f"ds_read_b128 {vr(R.w0,4)}, v{R.l0a} offset:{lo+384}",
             f"ds_read_b32 v{R.w1d}, v{R.l1b} offset:{lo+384}"],
        12: [f"ds_read_b128 {AX(3)}, v{R.rd+3} offset:{nb}"],
    }
    interleave(sig_stream(0), m, after)
    m = agg_mfmas(0) + zh_mfmas(0)
    d = dma_issue(nb, R.w0, R.w1d)
    pre = {0: ["s_waitcnt lgkmcnt(1)"]}
    after = {1: ["s_waitcnt lgkmcnt(0)"] + d[0:4], 2: d[4:7], 3: d[7:10], 4: d[10:13], 5: d[13:15]}
    interleave(sig_stream(1), m, after, pre)

def gtrace():
    if not Opt.STAMP: return
    emit("s_memrealtime s[100:101]")
    emit("s_waitcnt lgkmcnt(0)")
    emit(f"s_mov_b32 m0, s{S_G}")
    emit("s_nop 0")
    emit(f"v_writelane_b32 v254, s100, m0")

def prio_check(tag):
    if not Opt.PRIO: return
    emit(f"s_cmp_lg_u32 s{S_G}, s{S_GP}")
    emit(f"s_cbranch_scc1 K2_np{tag}")
    emit("s_setprio 0")
    label(f"K2_np{tag}")

def pu_block():
    aw = [R.Z[0], R.H[0]]; uu = [R.Z[1], R.H[1]]
    for t in range(2):
        for sx in range(4):
            emit(mfma(AGG(t), AX(sx), vr(uu[t] + 4 * sx, 4), "0" if sx == 0 else AGG(t)))
    for t in range(2):
        for sx in range(4):
            emit(mfma(vr(uu[t], 16), AX(sx), vr(aw[t] + 4 * sx, 4), "0" if sx == 0 else vr(uu[t], 16)))
    emit("s_nop 7")
    for t in range(2):
        if t == 1 and not Opt.FOLD: emit("s_nop 3")
        if Opt.FOLD:
            for r in range(16):
                emit(f"v_mul_f32 v{uu[t]+r}, s{S_C}, v{uu[t]+r}")
        for sx in range(2):
            for j in range(4):
                emit(f"v_cvt_pk_bf16_f32 v{R.P+(sx*2+t)*4+j}, v{uu[t]+8*sx+2*j}, v{uu[t]+8*sx+2*j+1}")

def cnt_init(lane):
    emit(f"v_and_b32 v{R.w0+1}, 7, v{lane}")
    emit(f"v_mul_u32_u24 v{R.aoa}, {LST}, v{R.w0+1}")
    emit(f"v_add_u32 v{R.aoa}, {L0}, v{R.aoa}")
    emit(f"v_lshlrev_b32 v{R.w0+1}, 2, v{R.w0+1}")
    emit(f"ds_write_b32 v{R.w0+1}, v{R.aoa} offset:{CNT}")

KNAME = "standalone__edge_featured_mpnn_egc__graph_kernel"
P1_HIST = L0; P1_START = L0 + 1024; P1_SORT = L0 + 2048
OP = {0: "", 1: " nt", 2: " sc1", 3: " sc0 sc1"}[Opt.OUTPOL]
SPIN_MAX = 1 << 20

_pf = [0]
def prefetch(mask):
    if not mask: return 0
    npop = bin(mask).count("1")
    emit(f"s_lshl_b32 s{S_T0}, 1, s{S_WAVE}")
    emit(f"s_sub_u32 s{S_T1}, s{S_T0}, 1")
    emit(f"s_and_b32 s{S_T1}, s{S_T1}, {mask:#x}")
    emit(f"s_bcnt1_i32_b32 s{S_T1}, s{S_T1}")
    emit(f"s_add_u32 s{S_T1}, s{S_T1}, {_pf[0]}")
    emit(f"s_lshl_b32 s{S_T1}, s{S_T1}, 18")
    emit(f"s_and_b32 s{S_T0}, s{S_T0}, {mask:#x}")
    emit(f"s_cselect_b32 s{S_T1}, s{S_T1}, 0x7f000000")
    emit(f"buffer_load_dword v{R.pf}, v{R.pfo}, s[{SX}:{SX+3}], s{S_T1} offen")
    _pf[0] += npop
    return 1

def list_prefill():
    z = R.H[1]
    for r in range(4):
        emit(f"v_mov_b32 v{z+r}, 0x7fffff80")
        emit(f"v_mov_b32 v{z+4+r}, {0x1fffffe0 | TN:#x}")
    emit(f"v_lshlrev_b32 v{z+8}, 4, v0")
    emit(f"v_add_u32 v{z+9}, 0x4000, v{z+8}")
    emit(f"v_min_u32 v{z+9}, {8*LST-16}, v{z+9}")
    emit(f"v_add_u32 v{z+8}, {L0}, v{z+8}")
    emit(f"v_add_u32 v{z+9}, {L0}, v{z+9}")
    for (arr, off) in ((z, 0), (z + 4, L1 - L0)):
        emit(f"ds_write_b128 v{z+8}, {vr(arr,4)} offset:{off}")
        emit(f"ds_write_b128 v{z+8}, {vr(arr,4)} offset:{off+8192}")
        emit(f"ds_write_b128 v{z+9}, {vr(arr,4)} offset:{off}")

def gen_fused():
    nt = " nt" if Opt.NT_IDX else ""
    out.append(".p2align 8")
    out.append(f".globl {KNAME}")
    out.append(f".type {KNAME},@function")
    label(KNAME)
    emit("s_cmp_ge_u32 s2, 256")
    emit("s_cbranch_scc1 K2_end")
    emit("s_and_b32 s3, s2, 7")
    emit("s_lshl_b32 s3, s3, 5")
    emit("s_lshr_b32 s4, s2, 3")
    emit(f"s_add_u32 s{S_B}, s3, s4")
    emit(f"s_cmp_ge_u32 s{S_B}, {NB}")
    emit("s_cbranch_scc1 K2_end")
    stamp_begin(72); stamp()
    if Opt.STAMP: emit("s_memtime s[98:99]")
    emit("s_load_dwordx16 s[40:55], s[0:1], 0")
    emit("s_load_dwordx4 s[56:59], s[0:1], 64")
    emit("s_memrealtime s[60:61]")
    t0, t1 = R.t0, R.t1
    D = R.WB; S = R.WB + 8; GT = R.WB + 16; BA = R.WB + 24; RKS = R.WC; W = R.WV; TM = R.WV + 16
    emit(f"v_lshrrev_b32 v{t0}, 6, v0")
    emit(f"v_and_b32 v{t1}, 63, v0")
    emit(f"v_readfirstlane_b32 s{S_WAVE}, v{t0}")
    emit(f"v_lshlrev_b32 v{R.lane16}, 4, v{t1}")
    emit(f"v_lshlrev_b32 v{TM}, 4, v0")
    emit(f"v_cmp_gt_u32 s[{S_IT}:{S_IT+1}], 0x120, v0" if False else f"v_cmp_gt_u32 vcc, 0x120, v0")
    emit(f"v_mov_b32 v{R.w0}, 0x7ffffff0")
    emit(f"v_add_u32 v{TM+1}, 0x2000, v{TM}")
    emit(f"s_mul_i32 s{S_T0}, s{S_B}, 12800")
    emit(f"v_cndmask_b32 v{TM+1}, v{R.w0}, v{TM+1}, vcc")
    emit(f"s_mov_b64 s[{S_IT}:{S_IT+1}], vcc")
    if Opt.PRIO: emit("s_setprio 1")
    emit("s_waitcnt lgkmcnt(0)")
    srd(32, 46, E * 4)
    emit(f"buffer_load_dwordx4 {vr(D,4)}, v{TM}, s[32:35], s{S_T0} offen{nt}")
    emit(f"buffer_load_dwordx4 {vr(D+4,4)}, v{TM+1}, s[32:35], s{S_T0} offen{nt}")
    srd(36, 44, E * 4)
    emit(f"buffer_load_dwordx4 {vr(S,4)}, v{TM}, s[36:39], s{S_T0} offen{nt}")
    emit(f"buffer_load_dwordx4 {vr(S+4,4)}, v{TM+1}, s[36:39], s{S_T0} offen{nt}")
    srd(SX, 40, N * 128)
    srd(SE, 42, E * 32)
    srd(SO, 54, N * 128)
    srd(SW, 58, WS_SIZE)
    srd(40, 56, 256)
    i, h = R.w1n, R.w1d
    a, b = R.aoa, R.sa
    emit(f"v_and_b32 v{i}, 31, v{t1}")
    emit(f"v_lshrrev_b32 v{h}, 5, v{t1}")
    emit(f"v_lshlrev_b32 v{R.h16}, 4, v{h}")
    emit(f"v_mov_b32 v{R.zero}, 0")
    emit(f"s_or_b32 s{S_T0}, s{S_B}, s{S_WAVE}")
    emit(f"s_cmp_lg_u32 s{S_T0}, 0")
    emit("s_cbranch_scc1 F_notag")
    emit("s_and_b32 s61, s61, 0xff")
    emit("s_or_b32 s61, s61, 0x100")
    emit(f"v_mov_b32 v{R.w0+2}, s60")
    emit(f"v_mov_b32 v{R.w0+3}, s61")
    emit("s_mov_b64 exec, 1")
    emit(f"buffer_store_dwordx2 v[{R.w0+2}:{R.w0+3}], v{R.zero}, s[40:43], 0 offen sc1")
    emit("s_mov_b64 exec, -1")
    label("F_notag")
    RW = R.Z[0]
    emit(f"s_mul_i32 s{S_STG}, s{S_WAVE}, {BUFW}")
    emit(f"s_add_u32 s{S_STG}, s{S_STG}, {STG0}")
    emit(f"v_and_b32 v{t0}, 7, v{t1}")
    emit(f"v_lshlrev_b32 v{R.dmab}, 2, v{h}")
    emit(f"v_xor_b32 v{R.dmab}, v{R.dmab}, v{t0}")
    emit(f"v_lshlrev_b32 v{R.dmab}, 4, v{R.dmab}")
    emit(f"s_mul_i32 s{S_NODE0}, s{S_B}, 200")
    emit(f"s_mul_i32 s{S_T0}, s{S_WAVE}, {TN}")
    emit(f"s_add_u32 s{S_NODE0}, s{S_NODE0}, s{S_T0}")
    emit(f"s_lshl_b32 s{S_NODE0}, s{S_NODE0}, 7")
    emit(f"s_mov_b32 s{S_MSKE}, {0xffe0 if Opt.EZERO else 0x1fffffe0:#x}")
    if Opt.XZERO: emit("s_mov_b32 s71, 0xff80")
    emit(f"s_movk_i32 s{S_80}, 80")
    emit(f"s_mov_b32 s{S_C}, {NLOG2E:#x}")
    emit(f"s_mov_b32 s{S_MODE}, 0")
    emit(f"v_mov_b32 v{R.one}, 0x3f80")
    emit(f"v_and_b32 v{t0}, 19, v{i}")
    emit(f"v_and_b32 v{a}, 4, v{i}")
    emit(f"v_lshl_or_b32 v{t0}, v{a}, 1, v{t0}")
    emit(f"v_and_b32 v{a}, 8, v{i}")
    emit(f"v_lshrrev_b32 v{a}, 1, v{a}")
    emit(f"v_or_b32 v{t0}, v{t0}, v{a}")
    emit(f"v_lshlrev_b32 v{t0}, 1, v{t0}")
    emit(f"s_mul_i32 s{S_T0}, s{S_WAVE}, {SM_W}")
    emit(f"s_add_u32 s{S_T0}, s{S_T0}, {SM}")
    emit(f"v_add_u32 v{R.sc}, s{S_T0}, v{t0}")
    emit(f"v_mad_u32_u24 v{a}, v{i}, s{S_80}, v{R.h16}")
    emit(f"v_add_u32 v{R.sr}, s{S_T0}, v{a}")
    emit(f"v_add_u32 v{R.aoc}, {AOT}, v{R.h16}")
    emit(f"v_mov_b32 v{R.w0+2}, 0")
    emit(f"v_mov_b32 v{R.w0+3}, 0")
    emit(f"v_lshlrev_b32 v{b}, 3, v{t1}")
    emit(f"s_cmp_lg_u32 s{S_WAVE}, 7")
    emit("s_cbranch_scc1 F_noinit")
    emit(f"v_add_u32 v{a}, {P1_HIST}, v{b}")
    emit(f"ds_write_b64 v{a}, v[{R.w0+2}:{R.w0+3}]")
    emit(f"ds_write_b64 v{a}, v[{R.w0+2}:{R.w0+3}] offset:512")
    cnt_init(t1)
    emit(f"ds_write_b32 v{R.w0+1}, v{R.zero} offset:{CNT+32}")
    for k in range(5):
        emit(f"ds_write_b64 v{b}, v[{R.w0+2}:{R.w0+3}] offset:{AOT+512*k}")
    emit(f"v_mad_u32_u24 v{a}, v{i}, s{S_80}, v{t0}")
    emit(f"ds_write_b16 v{a}, v{R.one} offset:{AOT}")
    label("F_noinit")
    emit(f"v_add_u32 v{a}, s{S_T0}, v{b}")
    for k in range(5):
        emit(f"ds_write_b64 v{a}, v[{R.w0+2}:{R.w0+3}] offset:{512*k}")
    emit(f"v_and_b32 v{a}, 1, v{t1}")
    emit(f"v_xor_b32 v{a}, v{a}, v{h}")
    emit(f"v_lshlrev_b32 v{R.eh16}, 4, v{a}")
    emit(f"v_lshrrev_b32 v{a}, 4, v{i}")
    emit(f"v_xor_b32 v{a}, v{a}, v{h}")
    emit(f"v_lshlrev_b32 v{a}, 4, v{a}")
    emit(f"v_lshl_add_u32 v{a}, v{i}, 5, v{a}")
    emit(f"v_add_u32 v{R.rde}, s{S_STG}, v{a}")
    emit(f"v_add_u32 v{R.rde}, 0x1000, v{R.rde}")
    emit(f"v_and_b32 v{a}, 3, v{i}")
    emit(f"v_lshrrev_b32 v{b}, 4, v{i}")
    emit(f"v_lshl_add_u32 v{b}, v{b}, 2, v{a}")
    emit(f"v_xor_b32 v{b}, v{b}, v{h}")
    emit(f"v_lshlrev_b32 v{b}, 4, v{b}")
    emit(f"v_lshlrev_b32 v{a}, 10, v{a}")
    emit(f"v_lshrrev_b32 v{t0}, 2, v{i}")
    emit(f"v_lshl_add_u32 v{a}, v{t0}, 7, v{a}")
    emit(f"v_add_u32 v{a}, s{S_STG}, v{a}")
    emit(f"s_movk_i32 s{S_T2}, 96")
    for s in range(4):
        c = ["0", "32", "64", f"s{S_T2}"][s]
        emit(f"v_xad_u32 v{R.rd+s}, v{b}, {c}, v{a}")
    emit(f"s_mul_i32 s{S_T0}, s{S_WAVE}, {LST}")
    emit(f"s_add_u32 s{S_T0}, s{S_T0}, {L0}")
    emit(f"v_lshrrev_b32 v{a}, 3, v{t1}")
    emit(f"v_lshlrev_b32 v{a}, 4, v{a}")
    emit(f"v_add_u32 v{R.l0a}, s{S_T0}, v{a}")
    emit(f"v_lshlrev_b32 v{a}, 2, v{i}")
    emit(f"v_add_u32 v{a}, s{S_T0}, v{a}")
    emit(f"v_add_u32 v{R.l1a}, {L1-L0}, v{a}")
    emit(f"v_lshrrev_b32 v{a}, 1, v{t1}")
    emit(f"v_lshlrev_b32 v{a}, 2, v{a}")
    emit(f"v_add_u32 v{a}, s{S_T0}, v{a}")
    emit(f"v_add_u32 v{R.l1b}, {L1-L0}, v{a}")
    emit(f"s_lshr_b32 s{S_T0}, s2, 3")
    emit(f"s_lshl_b32 s{S_T0}, s{S_T0}, 13")
    emit(f"v_lshlrev_b32 v{R.pfo}, 7, v{t1}")
    emit(f"v_add_u32 v{R.pfo}, s{S_T0}, v{R.pfo}")
    emit(f"s_mov_b32 s{S_T3}, 83887")
    emit(f"s_mul_i32 s{S_T0}, s{S_B}, 102400")
    emit(f"v_lshlrev_b32 v{TM+2}, 7, v0")
    emit(f"v_add_u32 v{TM+2}, s{S_T0}, v{TM+2}")
    emit(f"v_add_u32 v{TM+3}, 0x10000, v{TM+2}")
    emit(f"v_mov_b32 v{TM+4}, 1")
    emit("s_waitcnt lgkmcnt(0)")
    emit("s_barrier")
    emit(f"v_lshrrev_b32 v{t0}, 3, v{t1}")
    emit(f"v_lshlrev_b32 v{t0}, 9, v{t0}")
    emit(f"s_mov_b32 m0, s{S_STG}")
    emit(f"s_mov_b32 s{S_T0}, s{S_NODE0}")
    for t in range(4):
        emit(f"v_xad_u32 v{R.AE+t}, v{R.dmab}, {16*t}, v{t0}")
        emit(f"buffer_load_dwordx4 v{R.AE+t}, s[{SX}:{SX+3}], s{S_T0} offen{' nt' if Opt.NT_XT else ''} lds")
        emit("s_add_u32 m0, m0, 0x400")
        emit(f"s_add_u32 s{S_T0}, s{S_T0}, 128")
    emit("s_waitcnt vmcnt(6)")
    stamp()
    for j in range(8): emit(f"v_mul_u32_u24 v{GT+j}, s{S_T3}, v{D+j}")
    for j in range(8): emit(f"v_lshrrev_b32 v{BA+j}, 24, v{GT+j}")
    for j in range(8): emit(f"v_lshlrev_b32 v{BA+j}, 2, v{BA+j}")
    for j in range(8): emit(f"v_add_u32 v{BA+j}, {P1_HIST}, v{BA+j}")
    for j in range(4): emit(f"ds_add_rtn_u32 v{RKS+j}, v{BA+j}, v{TM+4}")
    emit(f"s_mov_b64 exec, s[{S_IT}:{S_IT+1}]")
    for j in range(4, 8): emit(f"ds_add_rtn_u32 v{RKS+j}, v{BA+j}, v{TM+4}")
    emit("s_mov_b64 exec, -1")
    emit(f"v_lshlrev_b32 v{a}, 2, v{i}")
    emit(f"v_lshl_add_u32 v{a}, v{h}, 10, v{a}")
    def wsel(ks_reg):
        emit(f"s_cmp_lt_u32 s{ks_reg}, 13")
        emit("s_cselect_b32 s60, s50, s48")
        emit("s_cselect_b32 s61, s51, s49")
        emit(f"s_cselect_b32 s{S_T1}, 9, 13")
        emit(f"s_cmp_lt_u32 s{ks_reg}, 9")
        emit("s_cselect_b32 s60, s52, s60")
        emit("s_cselect_b32 s61, s53, s61")
        emit(f"s_cselect_b32 s{S_T1}, 0, s{S_T1}")
        emit(f"s_movk_i32 s{S_T2}, 0x2000")
        emit(f"s_cselect_b32 s62, 0x4800, s{S_T2}")
        emit("s_and_b32 s61, s61, 0xffff")
        emit("s_mov_b32 s63, 0x20000")
        emit(f"s_sub_u32 s{S_T1}, s{ks_reg}, s{S_T1}")
        emit(f"s_lshl_b32 s{S_T1}, s{S_T1}, 11")
    for rnd in range(2):
        emit(f"s_add_u32 s{S_T0}, s{S_WAVE}, {8*rnd}")
        wsel(S_T0)
        for q in range(8):
            emit(f"buffer_load_dword v{RW+8*rnd+q}, v{a}, s[60:63], s{S_T1} offen offset:{q*128}{' nt' if Opt.NT_W else ''}")
    emit(f"s_cmp_lg_u32 s{S_WAVE}, 0")
    emit("s_cbranch_scc1 F_now3")
    emit(f"s_mov_b32 s{S_T0}, 16")
    wsel(S_T0)
    for q in range(8):
        emit(f"buffer_load_dword v{RW+16+q}, v{a}, s[60:63], s{S_T1} offen offset:{q*128}{' nt' if Opt.NT_W else ''}")
    label("F_now3")
    emit(f"s_movk_i32 s{S_T2}, 96")
    for j in range(8): emit(f"v_lshrrev_b32 v{GT+j}, 21, v{GT+j}")
    for j in range(8): emit(f"v_mul_u32_u24 v{TM+8+j}, 25, v{GT+j}")
    for j in range(8): emit(f"v_sub_u32 v{D+j}, v{D+j}, v{TM+8+j}")
    for j in range(8): emit(f"v_lshl_or_b32 v{D+j}, v{GT+j}, 29, v{D+j}")
    for j in range(8):
        c = ["0", "32", "64", f"s{S_T2}"][j % 4]
        emit(f"v_add3_u32 v{W+2*j+1}, v{TM+2+j//4}, v{D+j}, {c}")
    emit("s_waitcnt lgkmcnt(0)")
    emit("s_barrier")
    TV = R.AO
    emit(f"s_cmp_lg_u32 s{S_WAVE}, 0")
    emit("s_cbranch_scc1 F_noscan")
    C0 = R.P
    emit(f"v_add_u32 v{C0+13}, {P1_HIST}, v{R.lane16}")
    emit(f"ds_read_b128 {vr(C0,4)}, v{C0+13}")
    emit("s_waitcnt lgkmcnt(0)")
    emit(f"v_add_u32 v{C0+4}, v{C0}, v{C0+1}")
    emit(f"v_add_u32 v{C0+5}, v{C0+4}, v{C0+2}")
    emit(f"v_add_u32 v{C0+6}, v{C0+5}, v{C0+3}")
    emit(f"v_mov_b32 v{C0+7}, v{C0+6}")
    sc = C0 + 7
    for sh in (1, 2, 4, 8):
        emit("s_nop 1")
        emit(f"v_add_u32_dpp v{sc}, v{sc}, v{sc} row_shr:{sh} row_mask:0xf bank_mask:0xf")
    emit("s_nop 1")
    emit(f"v_add_u32_dpp v{sc}, v{sc}, v{sc} row_bcast:15 row_mask:0xa bank_mask:0xf")
    emit("s_nop 1")
    emit(f"v_add_u32_dpp v{sc}, v{sc}, v{sc} row_bcast:31 row_mask:0xc bank_mask:0xf")
    emit(f"v_sub_u32 v{C0+8}, v{sc}, v{C0+6}")
    emit(f"v_add_u32 v{C0+9}, v{C0+8}, v{C0}")
    emit(f"v_add_u32 v{C0+10}, v{C0+8}, v{C0+4}")
    emit(f"v_add_u32 v{C0+11}, v{C0+8}, v{C0+5}")
    emit(f"ds_write_b128 v{C0+13}, {vr(C0+8,4)} offset:{P1_START-P1_HIST}")
    for j in range(4): emit(f"v_lshl_or_b32 v{TV+2*j}, v{C0+j}, 12, v{C0+8+j}")
    emit("s_waitcnt lgkmcnt(0)")
    label("F_noscan")
    emit("s_waitcnt vmcnt(20)")
    for j in range(8): emit(f"v_lshlrev_b32 v{W+2*j}, 7, v{S+j}")
    emit("s_barrier")
    for j in range(8): emit(f"ds_read_b32 v{GT+j}, v{BA+j} offset:{P1_START-P1_HIST}")
    emit(f"buffer_load_dwordx2 v[{R.AS}:{R.AS+1}], v{R.zero}, s[40:43], 0 offen sc1")
    nB = prefetch(Opt.PFB)
    emit("s_waitcnt lgkmcnt(0)")
    for j in range(8): emit(f"v_add_lshl_u32 v{GT+j}, v{GT+j}, v{RKS+j}, 3")
    if Opt.FAKEM:
        emit(f"s_mul_i32 s{S_T0}, s{S_B}, 102400")
        for j in range(Opt.FAKEM):
            emit(f"v_lshl_add_u32 v{W+2*j+1}, v{GT+j}, 2, v{D+j}")
            emit(f"v_add_u32 v{W+2*j+1}, s{S_T0}, v{W+2*j+1}")
    for j in range(8): emit(f"v_add_u32 v{GT+j}, {P1_SORT}, v{GT+j}")
    for j in range(4): emit(f"ds_write_b64 v{GT+j}, v[{W+2*j}:{W+2*j+1}]")
    emit(f"s_mov_b64 exec, s[{S_IT}:{S_IT+1}]")
    for j in range(4, 8): emit(f"ds_write_b64 v{GT+j}, v[{W+2*j}:{W+2*j+1}]")
    emit("s_mov_b64 exec, -1")
    emit(f"v_add_u32 v{TM+5}, {P1_SORT}, v{TM}")
    emit(f"v_cmp_gt_u32 vcc, 64, v0")
    emit(f"v_add_u32 v{TM+6}, 0x6000, v{TM}")
    emit(f"s_mul_i32 s{S_T3}, s{S_B}, {CHS*8}")
    emit(f"v_cndmask_b32 v{TM+6}, v{R.w0}, v{TM+6}, vcc")
    emit(f"v_add_u32 v{TM+7}, 0x2000, v{TM}")
    emit(f"v_add_u32 v{TM+8}, 0x4000, v{TM}")
    emit("s_waitcnt lgkmcnt(0)")
    emit("s_barrier")
    for k in range(4):
        emit(f"ds_read_b128 {vr(D+4*k,4)}, v{TM+5} offset:{8192*k}")
    offs = [TM, TM + 7, TM + 8, TM + 6]
    for k in range(4):
        emit(f"s_waitcnt lgkmcnt({3-k})")
        emit(f"buffer_store_dwordx4 {vr(D+4*k,4)}, v{offs[k]}, s[{SW}:{SW+3}], s{S_T3} offen sc1")
    stamp()
    emit(f"s_waitcnt vmcnt({4+nB})")
    S_N32 = 56; S_N8 = 57
    emit(f"s_mov_b32 s{S_T3}, 0")
    label("F_tagchk")
    emit(f"v_readfirstlane_b32 s{S_N8}, v{R.AS+1}")
    emit(f"v_readfirstlane_b32 s{S_N32}, v{R.AS}")
    emit("s_nop 3")
    emit(f"s_cmp_lg_u32 s{S_N8}, 0")
    emit("s_cbranch_scc1 F_tagok")
    emit(f"s_add_u32 s{S_T3}, s{S_T3}, 1")
    emit(f"s_cmp_ge_u32 s{S_T3}, {SPIN_MAX}")
    emit("s_cbranch_scc1 F_tagok")
    emit("s_sleep 2")
    emit(f"buffer_load_dwordx2 v[{R.AS}:{R.AS+1}], v{R.zero}, s[40:43], 0 offen sc1")
    emit("s_waitcnt vmcnt(0)")
    emit("s_branch F_tagchk")
    label("F_tagok")
    emit(f"s_and_b32 s{S_N8}, s{S_N8}, 0xff")
    emit("s_waitcnt vmcnt(0)")
    emit("s_barrier")
    stamp()
    emit(f"s_cmp_lg_u32 s{S_WAVE}, 0")
    emit("s_cbranch_scc1 F_notab")
    emit(f"s_lshl_b32 s{S_T0}, s{S_N8}, 24")
    for j in range(4):
        emit(f"v_or_b32 v{TV+2*j}, s{S_T0}, v{TV+2*j}")
        emit(f"v_mov_b32 v{TV+2*j+1}, s{S_N32}")
    emit(f"s_lshl_b32 s{S_T0}, s{S_B}, 11")
    emit(f"s_add_u32 s{S_T0}, s{S_T0}, {WS_TAB:#x}")
    emit(f"v_lshlrev_b32 v{t0}, 1, v{R.lane16}")
    emit(f"buffer_store_dwordx4 {vr(TV,4)}, v{t0}, s[{SW}:{SW+3}], s{S_T0} offen sc1")
    emit(f"buffer_store_dwordx4 {vr(TV+4,4)}, v{t0}, s[{SW}:{SW+3}], s{S_T0} offen offset:16 sc1")
    label("F_notab")
    UN = R.Z[1]; PK = R.AGG
    emit(f"s_mov_b32 s{S_T1}, 0x05040100")
    emit(f"s_mov_b32 s{S_T2}, 0x07060302")
    emit(f"s_lshl_b32 s{S_T0}, s{S_WAVE}, 11")
    emit(f"v_add_u32 v{t0}, s{S_T0}, v{R.lane16}")
    emit(f"v_add_u32 v{t0}, {WFL}, v{t0}")
    def pack(rnd, scaled):
        raw = RW + 8 * rnd; pk = PK + 8 * rnd
        if scaled:
            for q in range(8):
                emit(f"v_lshlrev_b32 v{UN+q}, 16, v{raw+q}")
                emit(f"v_and_b32 v{UN+8+q}, 0xffff0000, v{raw+q}")
            for q in range(16): emit(f"v_mul_f32 v{UN+q}, s{S_C}, v{UN+q}")
            for j in range(4):
                emit(f"v_cvt_pk_bf16_f32 v{pk+j}, v{UN+2*j}, v{UN+2*j+1}")
                emit(f"v_cvt_pk_bf16_f32 v{pk+4+j}, v{UN+8+2*j}, v{UN+8+2*j+1}")
        else:
            for j in range(4):
                emit(f"v_perm_b32 v{pk+j}, v{raw+2*j+1}, v{raw+2*j}, s{S_T1}")
                emit(f"v_perm_b32 v{pk+4+j}, v{raw+2*j+1}, v{raw+2*j}, s{S_T2}")
    def wr(rnd):
        pk = PK + 8 * rnd
        emit(f"ds_write_b128 v{t0}, {vr(pk,4)} offset:{rnd*16384}")
        emit(f"ds_write_b128 v{t0}, {vr(pk+4,4)} offset:{rnd*16384+1024}")
    if Opt.FOLD:
        emit(f"s_cmp_ge_u32 s{S_WAVE}, 4")
        emit("s_cbranch_scc1 F_p0s")
        pack(0, False)
        emit("s_branch F_p0d")
        label("F_p0s")
        pack(0, True)
        label("F_p0d")
    else:
        pack(0, False)
    wr(0)
    emit(f"s_cmp_eq_u32 s{S_WAVE}, 0")
    emit("s_cbranch_scc1 F_p1w0")
    pack(1, False)
    wr(1)
    emit("s_branch F_p1d")
    label("F_p1w0")
    pack(1, Opt.FOLD)
    wr(1)
    pack(2, False)
    wr(2)
    label("F_p1d")
    list_prefill()
    emit("s_waitcnt lgkmcnt(0)")
    emit("s_barrier")
    prefetch(Opt.PFC)
    emit(f"v_add_u32 v{R.t0}, {WFL}, v{R.lane16}")
    for sx in range(4):
        for t in range(2):
            emit(f"ds_read_b128 {vr([R.Z[1],R.H[1]][t]+4*sx,4)}, v{R.t0} offset:{(26+2*sx+t)*1024}")
    for sx in range(4):
        for t in range(2):
            emit(f"ds_read_b128 {vr([R.Z[0],R.H[0]][t]+4*sx,4)}, v{R.t0} offset:{(2*sx+t)*1024}")
    for f in range(8): emit(f"ds_read_b128 {vr(R.WB+4*f,4)}, v{R.t0} offset:{(8+f)*1024}")
    for f in range(2): emit(f"ds_read_b128 {vr(R.WC+4*f,4)}, v{R.t0} offset:{(16+f)*1024}")
    for f in range(8): emit(f"ds_read_b128 {vr(R.WV+4*f,4)}, v{R.t0} offset:{(18+f)*1024}")
    emit(f"s_lshl_b32 s{S_TABO}, s{S_B}, 3")
    emit(f"s_add_u32 s{S_TABO}, s{S_TABO}, {WS_TAB:#x}")
    for it in range(4): emit(f"s_add_u32 s{44+it}, s{S_TABO}, {it<<17:#x}")
    emit(f"v_lshrrev_b32 v{a}, 3, v0")
    emit(f"v_and_b32 v{b}, 7, v0")
    emit(f"v_lshlrev_b32 v{b}, 1, v{b}")
    emit(f"v_cmp_gt_u32 s[50:51], {NCH-3*64}, v{a}")
    emit(f"v_lshlrev_b32 v{R.w0+1}, 11, v{a}")
    emit(f"v_mul_u32_u24 v{a}, {CHS}, v{a}")
    emit(f"v_cndmask_b32 v{R.w0+2}, v{R.w0}, v{R.w0+1}, s[50:51]")
    emit(f"v_add_u32 v{a}, v{a}, v{b}")
    TB = R.AO
    def poll_loads():
        for it in range(4):
            emit(f"buffer_load_dwordx2 v[{TB+2*it}:{TB+2*it+1}], v{R.w0+1+(it==3)}, s[{SW}:{SW+3}], s{44+it} offen sc1")
    poll_loads()
    for s in range(4): emit(f"ds_read_b128 {AX(s)}, v{R.rd+s}")
    emit("s_waitcnt lgkmcnt(0)")
    pu_block()
    prefetch(Opt.PFD)
    stamp()
    emit(f"s_mov_b32 s{S_T3}, 0")
    label("F_poll")
    emit("s_waitcnt vmcnt(0)")
    for it in range(4):
        emit(f"v_xor_b32 v{R.AS+it}, s{S_N32}, v{TB+2*it+1}")
        emit(f"v_lshrrev_b32 v{R.AS+4+it}, 24, v{TB+2*it}")
        emit(f"v_xor_b32 v{R.AS+4+it}, s{S_N8}, v{R.AS+4+it}")
    emit(f"v_or_b32 v{R.AS+3}, v{R.AS+3}, v{R.AS+7}")
    emit(f"v_cndmask_b32 v{R.AS+3}, 0, v{R.AS+3}, s[50:51]")
    emit(f"v_or3_b32 v{R.AS}, v{R.AS}, v{R.AS+1}, v{R.AS+2}")
    emit(f"v_or3_b32 v{R.AS+4}, v{R.AS+4}, v{R.AS+5}, v{R.AS+6}")
    emit(f"v_or3_b32 v{R.AS}, v{R.AS}, v{R.AS+3}, v{R.AS+4}")
    emit(f"v_cmp_ne_u32 vcc, 0, v{R.AS}")
    emit("s_cbranch_vccz F_polled")
    emit(f"s_add_u32 s{S_T3}, s{S_T3}, 1")
    emit(f"s_cmp_ge_u32 s{S_T3}, {SPIN_MAX}")
    emit("s_cbranch_scc1 F_polled")
    if Opt.PSLEEP: emit(f"s_sleep {Opt.PSLEEP}")
    poll_loads()
    emit("s_branch F_poll")
    label("F_polled")
    stamp()
    BASE = R.AS; REM = R.AS + 4
    for it in range(4):
        emit(f"v_bfe_u32 v{REM+it}, v{TB+2*it}, 12, 12")
        emit(f"v_sub_u32 v{REM+it}, v{REM+it}, v{b}")
        emit(f"v_and_b32 v{BASE+it}, 0xfff, v{TB+2*it}")
        emit(f"v_add_u32 v{BASE+it}, {it*64*CHS}, v{BASE+it}")
        emit(f"v_add_lshl_u32 v{BASE+it}, v{BASE+it}, v{a}, 3")
    REC = R.Z[0]; RK = R.Z[1]; TA = R.H[1]
    def msk(k): return f"s[{S_MASK+2*k}:{S_MASK+2*k+1}]"
    def rec_loads():
        for l in range(8):
            it, p = l // 2, l % 2
            emit(f"v_cmp_lt_i32 {msk(2*l)}, {16*p}, v{REM+it}")
        for l in range(8):
            it, p = l // 2, l % 2
            tmp = R.w0 + 1 + (l % 3)
            emit(f"v_cndmask_b32 v{tmp}, v{R.w0}, v{BASE+it}, {msk(2*l)}")
            emit(f"buffer_load_dwordx4 {vr(REC+4*l,4)}, v{tmp}, s[{SW}:{SW+3}], 0 offen offset:{128*p} sc1")
        for l in range(8):
            it, p = l // 2, l % 2
            emit(f"v_cmp_lt_i32 {msk(2*l+1)}, {16*p+1}, v{REM+it}")
    emit(f"v_mov_b32 v{R.t0}, 4")
    emit(f"s_mov_b32 s{S_T3}, {L1-4}")
    label("K2_collect")
    rec_loads()
    nE = prefetch(Opt.PFE)
    for l in range(8):
        emit(f"s_waitcnt vmcnt({nE+7-l})")
        for r in range(2):
            k = 2 * l + r
            emit(f"v_lshrrev_b32 v{TA+k}, 27, v{REC+4*l+2*r+1}")
        for r in range(2):
            k = 2 * l + r
            emit(f"s_mov_b64 exec, {msk(k)}")
            emit(f"ds_add_rtn_u32 v{RK+k}, v{TA+k}, v{R.t0} offset:{CNT}")
        emit("s_mov_b64 exec, -1")
    for it in range(4):
        emit(f"v_subrev_u32 v{REM+it}, 32, v{REM+it}")
        emit(f"v_add_u32 v{BASE+it}, 0x100, v{BASE+it}")
    emit(f"v_max3_i32 v{R.t1}, v{REM}, v{REM+1}, v{REM+2}")
    emit(f"v_max_i32 v{R.t1}, v{R.t1}, v{REM+3}")
    emit(f"v_cmp_lt_i32 vcc, 0, v{R.t1}")
    emit("s_waitcnt lgkmcnt(0)")
    for k in range(16): emit(f"v_min_u32 v{RK+k}, s{S_T3}, v{RK+k}")
    for k in range(16):
        emit(f"s_mov_b64 exec, {msk(k)}")
        emit(f"ds_write2st64_b32 v{RK+k}, v{REC+2*k}, v{REC+2*k+1} offset0:0 offset1:{L1OFF}")
    emit("s_mov_b64 exec, -1")
    emit("s_waitcnt lgkmcnt(0)")
    emit("s_cbranch_vccnz K2_collect")
    emit("s_barrier")
    stamp()
    if Opt.STAG:
        emit(f"s_cmp_lt_u32 s{S_WAVE}, 4")
        emit("s_cbranch_scc1 K2_counts")
        emit(f"s_lshl_b32 s{S_T0}, s{S_WAVE}, 2")
        emit(f"v_mov_b32 v{R.t0}, s{S_T0}")
        label("K2_stag")
        emit(f"ds_read_b32 v{R.t1}, v{R.t0} offset:{CNT+16}")
        emit("s_waitcnt lgkmcnt(0)")
        emit(f"v_readfirstlane_b32 s{S_T0}, v{R.t1}")
        emit("s_sleep 2")
        emit(f"s_cmp_eq_u32 s{S_T0}, 0")
        emit("s_cbranch_scc1 K2_stag")
    label("K2_counts")
    emit(f"ds_read_b128 {AO(0)}, v{R.l0a}")
    emit(f"ds_read_b32 v{R.AS}, v{R.l1b}")
    emit(f"ds_read_b128 {AO(1)}, v{R.l0a} offset:128")
    emit(f"ds_read_b32 v{R.AS+1}, v{R.l1b} offset:128")
    emit(f"v_and_b32 v{R.t0}, 7, v0")
    emit(f"v_lshlrev_b32 v{R.t1}, 2, v{R.t0}")
    emit(f"ds_read_b32 v{R.t1}, v{R.t1} offset:{CNT}")
    emit(f"ds_read_b128 {vr(R.w0,4)}, v{R.l0a} offset:256")
    emit(f"ds_read_b32 v{R.w1d}, v{R.l1b} offset:256")
    emit(f"ds_read_b32 v{R.w1n}, v{R.l1a}")
    emit(f"v_mul_u32_u24 v{R.t0}, {LST}, v{R.t0}")
    emit(f"v_add_u32 v{R.t0}, {L0}, v{R.t0}")
    emit("s_waitcnt lgkmcnt(6)")
    for x in dma_issue(0, R.AO, R.AS): emit(x)
    emit("s_waitcnt lgkmcnt(0)")
    for x in dma_issue(BUF, R.AO + 4, R.AS + 1): emit(x)
    emit(f"v_sub_u32 v{R.t1}, v{R.t1}, v{R.t0}")
    emit(f"v_lshrrev_b32 v{R.t1}, 2, v{R.t1}")
    if Opt.STAG == 2: emit("s_waitcnt vmcnt(5)")
    if Opt.STAG == 3: emit("s_waitcnt vmcnt(0)")
    if Opt.STAG:
        emit(f"s_lshl_b32 s{S_T0}, s{S_WAVE}, 2")
        emit(f"v_mov_b32 v{R.t0}, s{S_T0}")
        emit(f"ds_write_b32 v{R.t0}, v{R.one} offset:{CNT+32}")
    emit(f"v_cmp_lt_u32 vcc, {CAP}, v{R.t1}")
    emit(f"v_cmp_ne_u32 s[{S_MASK}:{S_MASK+1}], 0, v{R.t1}")
    emit(f"v_readlane_b32 s{S_N}, v{R.t1}, s{S_WAVE}")
    for x in nl_addr(): emit(x)
    emit(f"ds_read_b128 {AO(0)}, v{R.aoa}")
    emit(f"ds_read_b128 {AO(1)}, v{R.aoa} offset:32")
    emit(f"s_or_b32 s{S_TOT}, s{S_MASK}, s{S_MASK+1}")
    emit("s_cbranch_vccnz K2_slow_init")
    emit(f"s_add_u32 s{S_NG}, s{S_N}, 31")
    emit(f"s_lshr_b32 s{S_NG}, s{S_NG}, 5")
    emit(f"s_cmp_eq_u32 s{S_NG}, 0")
    emit("s_cbranch_scc1 K2_main_done")
    for r in range(8): emit(f"v_mov_b32 v{R.AS+r}, 0")
    for r in (0, 1, 2, 3, 8, 9, 10, 11): emit(f"v_mov_b32 v{R.Z[1]+r}, 0")
    emit(f"s_mov_b32 s{S_G}, 0")
    if Opt.FIXNG: emit(f"s_movk_i32 s{S_NG}, {Opt.FIXNG}")
    if Opt.PRIO:
        emit(f"s_sub_u32 s{S_GP}, s{S_NG}, {Opt.PRIO}")
        emit(f"s_cmp_ge_u32 s{S_WAVE}, 4")
        emit(f"s_cselect_b32 s{S_GP}, -1, s{S_GP}")
    emit("s_waitcnt vmcnt(5)")
    emit(f"ds_read_b128 {AE}, v{R.rde}")
    for s in range(4): emit(f"ds_read_b128 {AX(s)}, v{R.rd+s}")
    emit("s_waitcnt lgkmcnt(0)")
    for x in dma_issue(0, R.w0, R.w1d): emit(x)
    for x in zh_mfmas(0): emit(x)
    emit("s_nop 7")
    emit("s_nop 3")
    stamp(); cstamp()
    label("K2_loop")
    group_body(0, 0)
    gtrace()
    emit(f"s_add_u32 s{S_G}, s{S_G}, 1")
    prio_check(0)
    emit(f"s_cmp_ge_u32 s{S_G}, s{S_NG}")
    emit("s_cbranch_scc1 K2_loop_exit")
    group_body(1, 128)
    gtrace()
    adv = 0 if Opt.FIXNG else 0x100
    emit(f"v_add_u32 v{R.l0a}, {adv:#x}, v{R.l0a}")
    emit(f"v_add_u32 v{R.l1a}, {adv:#x}, v{R.l1a}")
    emit(f"v_add_u32 v{R.l1b}, {adv:#x}, v{R.l1b}")
    emit(f"s_add_u32 s{S_G}, s{S_G}, 1")
    prio_check(1)
    emit(f"s_cmp_lt_u32 s{S_G}, s{S_NG}")
    emit("s_cbranch_scc1 K2_loop")
    label("K2_loop_exit")
    emit("s_nop 1")
    for x in agg_mfmas(1): emit(x)
    emit(f"s_lshr_b32 s{S_T0}, s{S_G}, 1")
    emit(f"s_lshl_b32 s{S_T0}, s{S_T0}, 8")
    emit(f"v_subrev_u32 v{R.l0a}, s{S_T0}, v{R.l0a}")
    emit(f"v_subrev_u32 v{R.l1a}, s{S_T0}, v{R.l1a}")
    emit(f"v_subrev_u32 v{R.l1b}, s{S_T0}, v{R.l1b}")
    label("K2_main_done")
    emit(f"s_cmp_lg_u32 s{S_MODE}, 0")
    emit("s_cbranch_scc1 K2_slow_next")
    label("K2_epi")
    stamp(); cstamp(); vstamp(S_NG)
    emit("s_nop 7")
    emit("s_nop 7")
    emit(f"v_and_b32 v{R.t0}, 31, v0")
    emit(f"v_lshlrev_b32 v{R.t0}, 2, v{R.t0}")
    emit(f"v_lshl_add_u32 v{R.t0}, v{R.h16}, 5, v{R.t0}")
    z = R.Z[0]
    regs = [(t, r) for r in range(13) for t in range(2)]
    def tmp(t, r): return z + 2 * r + t
    for (t, r) in regs: emit(f"v_mul_f32 v{tmp(t,r)}, s{S_C}, v{R.AGG+16*t+r}")
    for (t, r) in regs: emit(f"v_exp_f32 v{tmp(t,r)}, v{tmp(t,r)}")
    for (t, r) in regs: emit(f"v_add_f32 v{tmp(t,r)}, 1.0, v{tmp(t,r)}")
    for (t, r) in regs: emit(f"v_rcp_f32 v{tmp(t,r)}, v{tmp(t,r)}")
    for (t, r) in regs: emit(f"v_mul_f32 v{tmp(t,r)}, v{tmp(t,r)}, v{R.AGG+16*t+r}")
    for r in range(13):
        emit(f"v_cvt_pk_bf16_f32 v{R.Z[1]+r}, v{tmp(0,r)}, v{tmp(1,r)}")
    for r in range(12):
        row = (r // 4) * 8 + r % 4
        emit(f"buffer_store_dword v{R.Z[1]+r}, v{R.t0}, s[{SO}:{SO+3}], s{S_NODE0} offen offset:{row*128}{OP}")
    emit("s_mov_b64 exec, 0xffffffff")
    emit(f"buffer_store_dword v{R.Z[1]+12}, v{R.t0}, s[{SO}:{SO+3}], s{S_NODE0} offen offset:{24*128}{OP}")
    if Opt.STAMP:
        emit("s_waitcnt vmcnt(0)")
        stamp()
        emit(f"s_lshl_b32 s{S_T0}, s2, 3")
        emit(f"s_add_u32 s{S_T0}, s{S_T0}, s{S_WAVE}")
        assert _st["n"] == 13, _st["n"]; _st["n"] = 14
        emit("s_mov_b64 exec, 0xffffffff")
        emit(f"s_lshl_b32 s{S_T1}, s{S_T0}, 7")
        emit(f"s_add_u32 s{S_T1}, s{S_T1}, {STB + (2 << 20):#x}")
        emit(f"v_lshrrev_b32 v255, 2, v{R.lane16}")
        emit(f"buffer_store_dword v254, v255, s[{SW}:{SW+3}], s{S_T1} offen")
        stamp_flush(0, SW, S_T0, R.w0, S_T1)
    label("K2_end")
    emit("s_endpgm")
    label("K2_slow_init")
    emit(f"s_mov_b32 s{S_MODE}, 1")
    emit(f"s_mov_b32 s{S_IT}, 0")
    emit(f"s_mov_b32 s{S_P}, 0")
    emit("s_branch K2_slow_batch")
    label("K2_slow_next")
    emit(f"s_add_u32 s{S_P}, s{S_P}, 1")
    emit(f"s_cmp_lg_u32 s{S_TOT}, 0")
    emit("s_cbranch_scc1 K2_slow_batch")
    emit(f"s_mov_b32 s{S_P}, 0")
    emit(f"s_add_u32 s{S_IT}, s{S_IT}, 1")
    emit(f"s_cmp_ge_u32 s{S_IT}, 4")
    emit("s_cbranch_scc1 K2_epi")
    label("K2_slow_batch")
    emit("s_waitcnt vmcnt(0) lgkmcnt(0)")
    emit("s_barrier")
    emit(f"s_cmp_lg_u32 s{S_WAVE}, 0")
    emit("s_cbranch_scc1 K2_slow_nocnt")
    emit(f"v_and_b32 v{R.w1d}, 63, v0")
    cnt_init(R.w1d)
    label("K2_slow_nocnt")
    list_prefill()
    emit(f"v_lshrrev_b32 v{a}, 3, v0")
    emit(f"v_and_b32 v{b}, 7, v0")
    emit(f"v_lshlrev_b32 v{R.t0}, 11, v{a}")
    emit(f"s_lshl_b32 s{S_T0}, s{S_IT}, 17")
    emit(f"s_add_u32 s{S_T0}, s{S_T0}, s{S_TABO}")
    emit(f"buffer_load_dword v{R.t1}, v{R.t0}, s[{SW}:{SW+3}], s{S_T0} offen sc1")
    emit(f"s_lshl_b32 s{S_T0}, s{S_IT}, 6")
    emit(f"v_add_u32 v{a}, s{S_T0}, v{a}")
    emit(f"s_lshl_b32 s{S_T1}, s{S_P}, 3")
    emit(f"v_add_u32 v{b}, s{S_T1}, v{b}")
    emit(f"v_cmp_gt_u32 vcc, {NCH}, v{a}")
    emit(f"v_mul_u32_u24 v{a}, {CHS}, v{a}")
    emit(f"v_add_u32 v{a}, v{a}, v{b}")
    emit("s_waitcnt vmcnt(0) lgkmcnt(0)")
    emit("s_barrier")
    emit(f"v_cndmask_b32 v{R.t1}, 0, v{R.t1}, vcc")
    emit(f"v_bfe_u32 v{R.t0}, v{R.t1}, 12, 12")
    emit(f"v_and_b32 v{R.t1}, 0xfff, v{R.t1}")
    emit(f"v_add_lshl_u32 v{a}, v{a}, v{R.t1}, 3")
    emit(f"v_cmp_lt_u32 vcc, v{b}, v{R.t0}")
    emit(f"v_mov_b32 v{R.w0}, 0x7ffffff0")
    emit("s_nop 1")
    emit(f"v_cndmask_b32 v{a}, v{R.w0}, v{a}, vcc")
    emit(f"buffer_load_dwordx2 v[{R.w0+2}:{R.w0+3}], v{a}, s[{SW}:{SW+3}], 0 offen sc1")
    emit(f"v_mov_b32 v{R.t0}, 4")
    emit("s_waitcnt vmcnt(0)")
    emit(f"v_lshrrev_b32 v{a}, 27, v{R.w0+3}")
    emit("s_mov_b64 exec, vcc")
    emit(f"ds_add_rtn_u32 v{b}, v{a}, v{R.t0} offset:{CNT}")
    emit("s_waitcnt lgkmcnt(0)")
    emit(f"ds_write2st64_b32 v{b}, v{R.w0+2}, v{R.w0+3} offset0:0 offset1:{L1OFF}")
    emit("s_mov_b64 exec, -1")
    emit("s_waitcnt lgkmcnt(0)")
    emit("s_barrier")
    emit("s_branch K2_counts")

def kd(name, vgpr, sgpr):
    acc = (vgpr + 3) // 4 * 4
    out.append(".p2align 6")
    out.append(f".amdhsa_kernel {name}")
    out.append(f"  .amdhsa_next_free_vgpr {vgpr}")
    out.append(f"  .amdhsa_next_free_sgpr {sgpr}")
    out.append(f"  .amdhsa_accum_offset {acc}")
    out.append("  .amdhsa_group_segment_fixed_size 0")
    out.append("  .amdhsa_kernarg_size 80")
    out.append("  .amdhsa_user_sgpr_count 2")
    out.append("  .amdhsa_user_sgpr_kernarg_segment_ptr 1")
    out.append("  .amdhsa_system_sgpr_workgroup_id_x 1")
    out.append(".end_amdhsa_kernel")

hdr = open("standalone__edge_featured_mpnn_egc__graph.s.ref").read().split("\n")
for l in hdr:
    if l.startswith("; Override"): break
    out.append(l)
out.append(f"; @launch {'kernel='+KNAME+' ' if Opt.DBG else ''}grid=(256,1,1) block=(512,1,1) lds={K2_LDS}")
out.append('.amdgcn_target "amdgcn-amd-amdhsa--gfx950"')
out.append(".text")
gen_fused()
out.append('.section .rodata,"a"')
kd(KNAME, 256 if Opt.STAMP else K2_VGPR, 102 if Opt.STAMP else K2_SGPR)
print("\n".join(out))
```
